```python
import torch

def _softmax(x, axis=-1):
    return torch.softmax(x, dim=axis)
def _gelu(x):
    return torch.nn.functional.gelu(x, approximate="tanh")
def _silu(x):
    return torch.nn.functional.silu(x)
def _sigmoid(x):
    return torch.sigmoid(x)
def _layernorm(x, axis=-1, eps=1e-5):
    m = x.mean(dim=axis, keepdim=True)
    v = x.var(dim=axis, keepdim=True, unbiased=False)
    return (x - m) / torch.sqrt(v + eps)
def _scatter_add(tgt, idx, src, axis=0):
    return tgt.clone().index_add_(axis, idx, src)
def _segment_sum(src, seg, n):
    out = torch.zeros((n,) + src.shape[1:], dtype=src.dtype)
    return out.index_add_(0, seg, src)
def _pad(x, pw):
    flat = tuple(v for pair in reversed(pw) for v in pair)
    return torch.nn.functional.pad(x, flat)

kernel_name = 'standalone__grouped_kv_mqa__prompt'

def setup_inputs():

    _w = (lambda a: (lambda t: t.to(torch.bfloat16) if t.is_floating_point() else t)(torch.as_tensor(a)))
    B, S, D, H = 1, 2048, 576, 32
    Dh = D // H
    return {
        "x": _w((lambda *s: torch.randn(*s, dtype=torch.bfloat16) * 0.05)(B, S, D)),
        "wq": _w((lambda *s: torch.randn(*s, dtype=torch.bfloat16) * 0.8)(D, H * Dh)),
        "wk": _w((lambda *s: torch.randn(*s, dtype=torch.bfloat16) * 0.8)(D, Dh)),
        "wv": _w((lambda *s: torch.randn(*s, dtype=torch.bfloat16) * 0.05)(D, Dh)),
        "wo": _w((lambda *s: torch.randn(*s, dtype=torch.bfloat16) * 0.05)(H * Dh, D)),
    }

def reference(x, wq, wk, wv, wo):
    B, S, D = x.shape
    H = 32
    Dh = D // H
    q = (lambda x, *d: x.permute(*d))((x @ wq).reshape(B, S, H, Dh), 0, 2, 1, 3)
    k = x @ wk
    v = x @ wv
    scores = torch.einsum("bhqd,bkd->bhqk", q, k) * (Dh ** -0.5)
    p = _softmax(scores, axis=-1)
    o = torch.einsum("bhqk,bkd->bhqd", p, v)
    return (lambda x, *d: x.permute(*d))(o, 0, 2, 1, 3).reshape(B, S, H * Dh) @ wo
```

```python
class Asm:
    def __init__(self):
        self.lines = []
    def __call__(self, s=""):
        for ln in s.split("\n"):
            ln = ln.strip()
            if not ln:
                continue
            if ln.endswith(":") or ln.startswith("."):
                self.lines.append(ln)
            else:
                self.lines.append("    " + ln)
    def c(self, s):
        self.lines.append("    ; " + s)
    def text(self):
        return "\n".join(self.lines) + "\n"

def v(a, n=1):
    return f"v{a}" if n == 1 else f"v[{a}:{a+n-1}]"
def s(a, n=1):
    return f"s{a}" if n == 1 else f"s[{a}:{a+n-1}]"

def srd(A, d, ptr, nbytes):
    A(f"s_mov_b32 s{d}, s{ptr}")
    A(f"s_mov_b32 s{d+1}, s{ptr+1}")
    A(f"s_mov_b32 s{d+2}, {nbytes}")
    A(f"s_mov_b32 s{d+3}, 0x00020000")

def kernel_begin(A, name):
    A(".text")
    A(f".globl {name}")
    A(".p2align 8")
    A(f".type {name},@function")
    A(f"{name}:")

def kernel_desc(A, name, vgpr, sgpr):
    acc = (vgpr + 3) // 4 * 4
    A('.section .rodata,"a"')
    A(".p2align 6")
    A(f".amdhsa_kernel {name}")
    A.lines.append(f"  .amdhsa_next_free_vgpr {vgpr}")
    A.lines.append(f"  .amdhsa_next_free_sgpr {sgpr}")
    A.lines.append(f"  .amdhsa_accum_offset {acc}")
    A.lines.append("  .amdhsa_group_segment_fixed_size 0")
    A.lines.append("  .amdhsa_kernarg_size 64")
    A.lines.append("  .amdhsa_user_sgpr_count 2")
    A.lines.append("  .amdhsa_user_sgpr_kernarg_segment_ptr 1")
    A.lines.append("  .amdhsa_system_sgpr_workgroup_id_x 1")
    A(".end_amdhsa_kernel")

def magic_div(d, maxn):
    for sh in range(1, 24):
        mul = -(-(1 << sh) // d)
        if all(((n * mul) >> sh) == n // d for n in range(maxn)):
            return mul, sh
    raise ValueError
```

```python
import sys, struct, math
sys.path.insert(0, 'work')
from gen_common import *

S_, D_, H_, DH = 2048, 576, 32, 18
ROWB = D_ * 2
TILE_B = 2368
KV_B = 64 * TILE_B
OIMG_OFF = 0x40000
OHALF_B = 36864
OIMG_B = 64 * OHALF_B
CSCALE = (DH ** -0.5) * math.log2(math.e)
def f32bits(x): return struct.unpack('<I', struct.pack('<f', x))[0]
def nib(tab): return sum(t << (4 * i) for i, t in enumerate(tab))

A = Asm()
HEADER = open('standalone__grouped_kv_mqa__prompt.s.ref').read().split('\n')
hdr = [l for l in HEADER if l.startswith(';') and '@launch' not in l and 'Override launch' not in l and 'grid=ceil' not in l]

def lane_decode(A, vl, vwave, swave):
    A(f"v_and_b32 v{vl}, 63, v0")
    A(f"v_lshrrev_b32 v{vwave}, 6, v0")
    A("s_nop 0")
    A(f"v_readfirstlane_b32 s{swave}, v{vwave}")

def kv_kernel(A):
    name = "kv_kernel"
    XB, WKB, WVB = 0, 36864, 36864 + 28224
    kernel_begin(A, name)
    A("s_cmp_ge_u32 s2, 64")
    A("s_cbranch_scc1 L_kv_end")
    A("s_load_dwordx2 s[4:5], s[0:1], 0")
    A("s_load_dwordx4 s[8:11], s[0:1], 16")
    A("s_load_dwordx2 s[6:7], s[0:1], 56")
    lane_decode(A, 1, 2, 28)
    A("v_lshrrev_b32 v4, 3, v1")
    A("v_lshl_add_u32 v4, v2, 3, v4")
    A("v_lshrrev_b32 v5, 1, v4")
    A("v_and_b32 v5, 7, v5")
    A("v_and_b32 v6, 7, v1")
    A("v_xor_b32 v5, v5, v6")
    A("v_lshlrev_b32 v5, 4, v5")
    A("s_lshl_b32 s29, s2, 5")
    A("v_add_u32 v4, s29, v4")
    A(f"v_mul_u32_u24 v3, {ROWB}, v4")
    A("v_add_u32 v3, v3, v5")
    mul, sh = magic_div(3, 64)
    A(f"v_mul_u32_u24 v4, {mul}, v1")
    A(f"v_lshrrev_b32 v4, {sh}, v4")
    A("v_mul_u32_u24 v5, 3, v4")
    A("v_sub_u32 v5, v1, v5")
    A("v_mul_u32_u24 v7, 36, v4")
    A("v_lshl_add_u32 v7, v5, 4, v7")
    A("s_waitcnt lgkmcnt(0)")
    srd(A, 12, 4, S_ * ROWB)
    srd(A, 16, 8, D_ * 36)
    srd(A, 20, 10, D_ * 36)
    srd(A, 24, 6, KV_B)
    A("s_lshl_b32 s30, s28, 10")
    for sg in range(9):
        A(f"s_add_u32 m0, s30, {XB + sg * 3968}")
        A("s_nop 0")
        A(f"buffer_load_dwordx4 v3, s[12:15], 0 offen offset:{sg*128} lds")
    A("s_mov_b32 exec_hi, 0x7fffffff")
    A("s_mul_i32 s31, s28, 756")
    A("s_mul_i32 s30, s28, 1008")
    for j in range(7):
        A(f"s_add_u32 m0, s30, {WKB + j * 4 * 1008}")
        A(f"s_add_u32 s32, s31, {j * 4 * 756}")
        A(f"buffer_load_dwordx4 v7, s[16:19], s32 offen lds")
        A(f"s_add_u32 m0, s30, {WVB + j * 4 * 1008}")
        A("s_nop 0")
        A(f"buffer_load_dwordx4 v7, s[20:23], s32 offen lds")
    A("s_mov_b64 exec, -1")
    A("v_and_b32 v4, 31, v1")
    A("v_and_b32 v5, 0x13, v4")
    A("v_lshrrev_b32 v6, 1, v4")
    A("v_and_b32 v6, 4, v6")
    A("v_or_b32 v5, v5, v6")
    A("v_lshlrev_b32 v6, 1, v4")
    A("v_and_b32 v6, 8, v6")
    A("v_or_b32 v5, v5, v6")
    A("s_cmp_eq_u32 s28, 1")
    A("s_cselect_b64 vcc, -1, 0")
    A("v_cndmask_b32 v4, v4, v5, vcc")
    A("v_lshrrev_b32 v5, 1, v4")
    A("v_and_b32 v5, 7, v5")
    A("v_lshrrev_b32 v6, 5, v1")
    for u in range(4):
        A(f"v_add_u32 v8, {2*u}, v6")
        A("v_xor_b32 v8, v8, v5")
        A("v_lshlrev_b32 v8, 4, v8")
        A(f"v_lshl_add_u32 v{10+u}, v4, 7, v8")
    A("v_bfe_u32 v4, v1, 2, 2")
    A("v_lshl_add_u32 v4, v6, 3, v4")
    A("v_mul_u32_u24 v4, 48, v4")
    A("v_and_b32 v5, 3, v1")
    A("v_bfe_u32 v8, v1, 4, 1")
    A("v_lshl_add_u32 v5, v8, 2, v5")
    A("v_lshlrev_b32 v5, 2, v5")
    A(f"s_mov_b32 s33, {nib([0,2,1,3,4,0,0,0]):#x}")
    A(f"s_mov_b32 s34, {nib([0,1,2,3,4,0,0,0]):#x}")
    A("s_cmp_eq_u32 s28, 1")
    A("s_cselect_b32 s33, s34, s33")
    A(f"s_mov_b32 s35, {WKB}")
    A(f"s_cselect_b32 s35, {WVB}, s35")
    A("v_lshrrev_b32 v5, v5, s33")
    A("v_and_b32 v5, 15, v5")
    A("v_lshl_add_u32 v14, v5, 3, v4")
    A("v_add_u32 v14, s35, v14")
    A("s_waitcnt vmcnt(0)")
    A("s_barrier")
    A("s_cmp_ge_u32 s28, 2")
    A("s_cbranch_scc1 L_kv_end")
    A("s_cmp_eq_u32 s28, 1")
    A("s_cbranch_scc1 L_kv_v")
    DD = 16
    FB = 32
    def reads(t):
        b = FB + 8 * (t % 4)
        A(f"ds_read_b128 {v(b,4)}, v{10 + (t & 3)} offset:{(t >> 2) * 4096}")
        A(f"ds_read_b64_tr_b16 {v(b+4,2)}, v14 offset:{t*768}")
        A(f"ds_read_b64_tr_b16 {v(b+6,2)}, v14 offset:{t*768+192}")
    for which in ("k", "v"):
        if which == "v":
            A("L_kv_v:")
        for t in range(3): reads(t)
        for t in range(36):
            if t + 3 < 36:
                reads(t + 3)
                A("s_waitcnt lgkmcnt(9)")
            else:
                A(f"s_waitcnt lgkmcnt({3 * (35 - t)})")
            b = FB + 8 * (t % 4)
            cc = "0" if t == 0 else v(DD, 16)
            if which == "k":
                A(f"v_mfma_f32_32x32x16_bf16 {v(DD,16)}, {v(b+4,4)}, {v(b,4)}, {cc}")
            else:
                A(f"v_mfma_f32_32x32x16_bf16 {v(DD,16)}, {v(b,4)}, {v(b+4,4)}, {cc}")
        A(f"s_mul_i32 s36, s2, {TILE_B}")
        A("s_nop 11")
        if which == "k":
            for i in range(5):
                A(f"v_cvt_pk_bf16_f32 v{32+i}, v{DD+2*i}, v{DD+2*i+1}")
            A("v_lshlrev_b32 v4, 4, v1")
            A("buffer_store_dwordx4 v[32:35], v4, s[24:27], s36 offen")
            A("v_lshlrev_b32 v4, 2, v1")
            A("s_mov_b32 exec_hi, 0")
            A("buffer_store_dword v36, v4, s[24:27], s36 offen offset:2240")
            A("s_endpgm")
        else:
            for i in range(8):
                A(f"v_cvt_pk_bf16_f32 v{32+i}, v{DD+2*i}, v{DD+2*i+1}")
            A("v_and_b32 v4, 31, v1")
            A("v_cmp_eq_u32 vcc, 18, v4")
            A("v_mov_b32 v5, 0x3f803f80")
            A("v_lshrrev_b32 v6, 5, v1")
            for i in range(8):
                A(f"v_cndmask_b32 v{32+i}, v{32+i}, v5, vcc")
            A("v_mul_u32_u24 v6, 304, v6")
            A("v_lshl_add_u32 v6, v4, 4, v6")
            A("v_cmp_gt_u32 vcc, 19, v4")
            A("s_and_saveexec_b64 s[38:39], vcc")
            A("buffer_store_dwordx4 v[32:35], v6, s[24:27], s36 offen offset:1024")
            A(f"buffer_store_dwordx4 v[36:39], v6, s[24:27], s36 offen offset:{1024+608}")
    A("L_kv_end:")
    A("s_endpgm")
    kernel_desc(A, name, 64, 48)
    return f"; @launch kernel={name} grid=(64,1,1) block=(256,1,1) lds={WVB + 28224}"

def wg_decode(A, stb, shg):
    A(f"s_and_b32 s{stb}, s2, 7")
    A(f"s_lshr_b32 s{shg}, s2, 6")
    A(f"s_lshl_b32 s{shg}, s{shg}, 3")
    A(f"s_add_u32 s{stb}, s{stb}, s{shg}")
    A(f"s_lshr_b32 s{shg}, s2, 3")
    A(f"s_and_b32 s{shg}, s{shg}, 7")

def attn_kernel(A):
    name = "attn_kernel"
    XB, WB = 0, 73728
    kernel_begin(A, name)
    A("s_cmp_ge_u32 s2, 256")
    A("s_cbranch_scc1 L_at_end")
    A("s_load_dwordx4 s[4:7], s[0:1], 0")
    A("s_load_dwordx2 s[8:9], s[0:1], 56")
    lane_decode(A, 1, 2, 28)
    wg_decode(A, 29, 30)
    A("v_lshrrev_b32 v4, 3, v1")
    A("v_lshl_add_u32 v4, v2, 3, v4")
    A("v_lshrrev_b32 v5, 1, v4")
    A("v_and_b32 v5, 7, v5")
    A("v_and_b32 v6, 7, v1")
    A("v_xor_b32 v5, v5, v6")
    A("v_lshlrev_b32 v5, 4, v5")
    A("s_lshl_b32 s31, s29, 6")
    A("v_add_u32 v4, s31, v4")
    A(f"v_mul_u32_u24 v3, {ROWB}, v4")
    A("v_add_u32 v3, v3, v5")
    mul, sh = magic_div(19, 64)
    A(f"v_mul_u32_u24 v4, {mul}, v1")
    A(f"v_lshrrev_b32 v4, {sh}, v4")
    A("v_mul_u32_u24 v5, 19, v4")
    A("v_sub_u32 v5, v1, v5")
    A("v_min_u32 v5, 17, v5")
    A("v_cmp_le_u32 vcc, 9, v5")
    A("v_lshlrev_b32 v4, 1, v4")
    A("v_subrev_u32 v6, 9, v5")
    A("v_cndmask_b32 v5, v5, v6, vcc")
    A("v_addc_co_u32 v4, vcc, 0, v4, vcc")
    A(f"v_mul_u32_u24 v7, {ROWB}, v4")
    A("v_lshl_add_u32 v7, v5, 4, v7")
    A("s_mul_i32 s31, s30, 144")
    A("v_add_u32 v7, s31, v7")
    A("s_waitcnt lgkmcnt(0)")
    srd(A, 12, 4, S_ * ROWB)
    srd(A, 16, 6, D_ * ROWB)
    srd(A, 20, 8, KV_B)
    A(f"s_add_u32 s24, s8, {OIMG_OFF}")
    A("s_addc_u32 s25, s9, 0")
    A(f"s_mov_b32 s26, {OIMG_B}")
    A("s_mov_b32 s27, 0x00020000")
    A("s_lshl_b32 s32, s28, 10")
    A("s_mul_i32 s33, s28, 912")
    A("s_mul_i32 s34, s28, 6912")
    def dma_x(sg):
        A(f"s_add_u32 m0, s32, {XB + sg * (8192 - 128)}")
        A("s_mov_b64 exec, -1")
        A(f"buffer_load_dwordx4 v3, s[12:15], 0 offen offset:{sg*128} lds")
    def dma_w(j):
        A(f"s_add_u32 m0, s33, {WB + j * 8 * 912}")
        A(f"s_add_u32 s35, s34, {j * 8 * 6912}")
        A(f"s_mov_b32 exec_hi, {(1 << 25) - 1:#x}")
        A("buffer_load_dwordx4 v7, s[16:19], s35 offen lds")
    for q in range(3):
        dma_w(4*q); dma_x(3*q); dma_w(4*q+1); dma_x(3*q+1); dma_w(4*q+2); dma_x(3*q+2); dma_w(4*q+3)
    A("s_mov_b64 exec, -1")
    A("v_and_b32 v4, 31, v1")
    A("s_and_b32 s36, s28, 1")
    A("s_lshl_b32 s37, s36, 5")
    A("v_add_u32 v4, s37, v4")
    A("v_lshrrev_b32 v5, 1, v4")
    A("v_and_b32 v5, 7, v5")
    A("v_lshrrev_b32 v6, 5, v1")
    for u in range(4):
        A(f"v_add_u32 v8, {2*u}, v6")
        A("v_xor_b32 v8, v8, v5")
        A("v_lshlrev_b32 v8, 4, v8")
        A(f"v_lshl_add_u32 v{10+u}, v4, 7, v8")
    A("v_mul_u32_u24 v4, 1216, v6")
    A("v_bfe_u32 v5, v1, 3, 1")
    A("v_mul_u32_u24 v5, 304, v5")
    A("v_add_u32 v4, v4, v5")
    A("v_bfe_u32 v5, v1, 2, 1")
    A("v_mul_u32_u24 v5, 144, v5")
    A("v_add_u32 v4, v4, v5")
    A("v_and_b32 v5, 3, v1")
    A("v_bfe_u32 v8, v1, 4, 1")
    A("v_lshl_add_u32 v5, v8, 2, v5")
    A("v_lshlrev_b32 v5, 2, v5")
    A("s_lshr_b32 s38, s28, 1")
    A("s_and_b32 s39, s38, 1")
    A(f"s_mov_b32 s40, {nib([0,2,1,3,4,0,0,0]):#x}")
    A(f"s_mov_b32 s41, {nib([0,2,1,3,2,4,4,0]):#x}")
    A("s_cmp_eq_u32 s39, 1")
    A("s_cselect_b32 s40, s41, s40")
    A("s_mul_i32 s41, s38, 36")
    A("s_and_b32 s41, s41, 0xf8")
    A(f"s_add_u32 s41, s41, {WB}")
    A("v_lshrrev_b32 v5, v5, s40")
    A("v_and_b32 v5, 15, v5")
    A("v_lshl_add_u32 v14, v5, 3, v4")
    A("v_add_u32 v14, s41, v14")
    A(f"v_add_u32 v15, {18 * 2432}, v14")
    DD = 16; FB = 32
    def reads(t):
        b = FB + 8 * (t % 4)
        sg = t >> 2
        if sg == 8 and (t & 3) == 0:
            for u in range(4): A(f"v_add_u32 v{10+u}, 8192, v{10+u}")
        A(f"ds_read_b128 {v(b,4)}, v{10 + (t & 3)} offset:{min(sg,7) * 8192}")
        wa, wt = (14, t) if t < 18 else (15, t - 18)
        A(f"ds_read_b64_tr_b16 {v(b+4,2)}, v{wa} offset:{wt*2432}")
        A(f"ds_read_b64_tr_b16 {v(b+6,2)}, v{wa} offset:{wt*2432+608}")
    for q in range(3):
        A(f"s_waitcnt vmcnt({14 - 7*q})")
        A("s_barrier")
        t0 = 12 * q
        for t in range(t0, t0 + 3): reads(t)
        for t in range(t0, t0 + 12):
            if t + 3 < t0 + 12:
                reads(t + 3)
                A("s_waitcnt lgkmcnt(9)")
            else:
                A(f"s_waitcnt lgkmcnt({3 * (t0 + 11 - t)})")
            b = FB + 8 * (t % 4)
            cc = "0" if t == 0 else v(DD, 16)
            A(f"v_mfma_f32_32x32x16_bf16 {v(DD,16)}, {v(b+4,4)}, {v(b,4)}, {cc}")
    A("s_barrier")
    A("v_lshlrev_b32 v3, 4, v1")
    A("v_add_u32 v3, s32, v3")
    A("s_mov_b32 s35, 0")
    for r in range(19):
        A(f"s_add_u32 m0, s32, {r * 8192}")
        A(f"s_mov_b32 s35, {r * 8192}")
        A("buffer_load_dwordx4 v3, s[20:23], s35 offen lds")
    QM, QR = 4, 8
    A(f"s_mov_b32 s42, {f32bits(CSCALE):#x}")
    for i in range(16):
        A(f"v_mul_f32 v{DD+i}, s42, v{DD+i}")
    A("v_mov_b32 v8, 0")
    A("v_mov_b32 v9, 0")
    A("s_cmp_eq_u32 s39, 1")
    A("s_cbranch_scc1 L_at_qodd")
    for i in range(4):
        A(f"v_cvt_pk_bf16_f32 v{QM+i}, v{DD+2*i}, v{DD+2*i+1}")
    A("s_mov_b32 exec_hi, 0")
    A(f"v_cvt_pk_bf16_f32 v{QR}, v{DD+8}, v{DD+9}")
    A("s_branch L_at_qdone")
    A("L_at_qodd:")
    for i in range(4):
        A(f"v_cvt_pk_bf16_f32 v{QM+i}, v{DD+2+2*i}, v{DD+3+2*i}")
    A("s_mov_b32 exec_hi, 0")
    A(f"v_cvt_pk_bf16_f32 v{QR}, v{DD+14}, v{DD+15}")
    A("L_at_qdone:")
    A("s_mov_b64 exec, -1")
    AK, AV, AR = 10, 11, 12
    IDX = 13
    KF, KR = 16, 20
    VF0, VF1 = 24, 28
    SS = [32, 48]
    OO = 64
    T0, T1, T2, T3 = 80, 81, 82, 83
    A(f"v_lshlrev_b32 v{AK}, 4, v1")
    A(f"v_and_b32 v{T0}, 31, v1")
    A(f"v_lshlrev_b32 v{AR}, 2, v{T0}")
    def slot(i):
        if i < 16:
            a, h, b = i >> 3, (i >> 2) & 1, i & 3
            return 4 * a + b if h == 0 else 12 - 4 * a + b
        if i <= 18: return i
        if 20 <= i <= 27: return slot(0)
        return slot(4)
    A(f"v_lshrrev_b32 v{T1}, 2, v{T0}")
    A(f"v_lshlrev_b32 v{T1}, 2, v{T1}")
    A(f"s_mov_b32 s43, {nib([0,3,1,2,4,0,0,3]):#x}")
    A(f"v_lshrrev_b32 v{T1}, v{T1}, s43")
    A(f"v_and_b32 v{T1}, 15, v{T1}")
    A(f"v_lshlrev_b32 v{T1}, 2, v{T1}")
    A(f"v_and_b32 v{T2}, 3, v{T0}")
    A(f"v_add_u32 v{T2}, v{T1}, v{T2}")
    A(f"v_cmp_gt_u32 vcc, 19, v{T0}")
    A(f"v_mov_b32 v{T3}, 12")
    A("s_nop 0")
    A(f"v_cndmask_b32 v{T1}, v{T1}, v{T2}, vcc")
    A(f"v_cmp_eq_u32 vcc, 19, v{T0}")
    A(f"v_lshrrev_b32 v{T2}, 5, v1")
    A(f"v_mul_u32_u24 v{T2}, 304, v{T2}")
    A(f"v_cndmask_b32 v{T1}, v{T1}, v{T3}, vcc")
    A(f"v_lshl_add_u32 v{AV}, v{T1}, 4, v{T2}")
    A(f"v_mov_b32 v{IDX}, 0xdddd")
    A(f"v_mov_b32 v{KR+1}, 0x3f803f80")
    for i in range(16): A(f"v_mov_b32 v{OO+i}, 0")
    for i in range(4): A(f"v_mov_b32 v{VF1+i}, 0")
    for i in range(8): A(f"v_mov_b32 v{SS[1]+8+i}, 0")
    def rdK(t): A(f"ds_read_b128 {v(KF,4)}, v{AK} offset:{t*TILE_B}")
    def rdR(t): A(f"ds_read_b32 v{KR}, v{AR} offset:{t*TILE_B+2240}")
    def rdV(t, m): A(f"ds_read_b128 {v(VF0 if m == 0 else VF1,4)}, v{AV} offset:{t*TILE_B+1024+608*m}")
    def M16(sd): A(f"v_mfma_f32_32x32x16_bf16 {v(sd,16)}, {v(KF,4)}, {v(QM,4)}, 0")
    def M8(sd): A(f"v_mfma_f32_32x32x8_bf16 {v(sd,16)}, {v(KR,2)}, {v(QR,2)}, {v(sd,16)}")
    def PV(m, sd): A(f"v_smfmac_f32_32x32x32_bf16 {v(OO,16)}, {v(VF0 if m == 0 else VF1,4)}, {v(sd+8*m,8)}, v{IDX}")
    def EX(sd, a, b):
        for i in range(a, b): A(f"v_exp_f32 v{sd+i}, v{sd+i}")
    def rowmax(sd, dst, tmp):
        A(f"v_max3_f32 v{dst}, v{sd}, v{sd+1}, v{sd+2}")
        for i in range(3, 15, 2):
            A(f"v_max3_f32 v{dst}, v{dst}, v{sd+i}, v{sd+i+1}")
        A(f"v_max_f32 v{dst}, v{dst}, v{sd+15}")
        A(f"v_mov_b32 v{tmp}, v{dst}")
        A("s_nop 1")
        A(f"v_permlane32_swap_b32 v{dst}, v{tmp}")
        A("s_nop 0")
        A(f"v_max_f32 v{dst}, v{dst}, v{tmp}")
    A("s_waitcnt vmcnt(17)")
    A("s_barrier")
    rdK(0); rdR(0)
    A("s_waitcnt lgkmcnt(0)")
    M16(SS[0]); M8(SS[0])
    A("s_nop 11")
    rowmax(SS[0], T0, T1)
    A("s_mov_b32 exec_hi, 0")
    A(f"v_cvt_pk_bf16_f32 v{QR+1}, -v{T0}, 0")
    A("s_mov_b64 exec, -1")
    A("s_nop 1")
    M16(SS[0]); M8(SS[0])
    rdK(1); rdR(1); rdV(0, 0)
    A("s_mov_b32 s44, 0")
    A("s_nop 7")
    A(".p2align 6")
    A("L_at_loop:")
    for t in range(16):
        c = t & 1
        if t == 3:
            A("s_waitcnt vmcnt(14)")
            A("s_barrier")
        if t == 13:
            A("s_waitcnt vmcnt(0)")
            A("s_barrier")
        A("s_waitcnt lgkmcnt(3)")
        A("s_nop 0")
        PV(1, SS[1-c])
        rdV(t, 1)
        EX(SS[c], 0, 4)
        A("s_waitcnt lgkmcnt(3)")
        M16(SS[1-c])
        rdK(t + 2)
        EX(SS[c], 4, 8)
        A("s_waitcnt lgkmcnt(3)")
        M8(SS[1-c])
        rdR(t + 2)
        EX(SS[c], 8, 12)
        A("s_waitcnt lgkmcnt(3)")
        PV(0, SS[c])
        EX(SS[c], 12, 16)
        rdV(t + 1, 0)
    for r in (AK, AV, AR):
        A(f"v_add_u32 v{r}, {16*TILE_B}, v{r}")
    A("s_add_u32 s44, s44, 1")
    A("s_cmp_lt_u32 s44, 4")
    A("s_cbranch_scc1 L_at_loop")
    A("s_waitcnt lgkmcnt(3)")
    PV(1, SS[1])
    A("s_nop 11")
    A(f"v_mov_b32 v{T0}, v{OO+10}")
    A(f"v_mov_b32 v{T1}, v{OO+10}")
    A(f"v_mul_f32 v{T2}, 0, v{OO}")
    A(f"v_fma_f32 v{T2}, 0, v{OO+1}, v{T2}")
    A(f"v_permlane32_swap_b32 v{T0}, v{T1}")
    for i in range(2, 10):
        A(f"v_fma_f32 v{T2}, 0, v{OO+i}, v{T2}")
    A(f"v_add_f32 v{T2}, v{T2}, v{T0}")
    A(f"s_mov_b32 s45, {f32bits(2.0**-32):#x}")
    A(f"s_mov_b32 s46, {f32bits(2.0**64):#x}")
    A(f"v_cmp_nle_f32 vcc, s45, v{T2}")
    A(f"v_cmp_nge_f32 s[48:49], s46, v{T2}")
    A("s_or_b64 vcc, vcc, s[48:49]")
    A("s_cbranch_vccnz L_at_slow")
    A("L_at_fin:")
    A(f"v_rcp_f32 v{T0}, v{T0}")
    A("s_lshl_b32 s45, s29, 1")
    A("s_add_u32 s45, s45, s36")
    A(f"s_mul_i32 s45, s45, {OHALF_B}")
    for i in range(10):
        A(f"v_mul_f32 v{OO+i}, v{OO+i}, v{T0}")
    for i in range(5):
        A(f"v_cvt_pk_bf16_f32 v{KF+i}, v{OO+2*i}, v{OO+2*i+1}")
    A("s_lshl_b32 s46, s30, 2")
    A("s_add_u32 s46, s46, s38")
    A("s_lshl_b32 s46, s46, 10")
    A("s_add_u32 s46, s46, s45")
    A(f"v_lshlrev_b32 v{T1}, 4, v1")
    A(f"buffer_store_dwordx4 {v(KF,4)}, v{T1}, s[24:27], s46 offen")
    A("s_and_b32 s46, s30, 1")
    A("s_lshl_b32 s46, s46, 1")
    A("s_xor_b32 s46, s46, s38")
    A("s_lshl_b32 s46, s46, 2")
    A("s_lshl_b32 s47, s30, 9")
    A("s_add_u32 s46, s46, s47")
    A("s_add_u32 s46, s46, s45")
    A("s_add_u32 s46, s46, 32768")
    A("s_mov_b32 exec_hi, 0")
    A(f"buffer_store_dword v{KF+4}, v{T1}, s[24:27], s46 offen")
    A("L_at_end:")
    A("s_endpgm")
    A("L_at_slow:")
    MM = 84
    A("s_waitcnt lgkmcnt(0)")
    for r in (AK, AV, AR):
        A(f"v_subrev_u32 v{r}, {64*TILE_B}, v{r}")
    A(f"v_mov_b32 v{QR+1}, 0")
    A(f"v_mov_b32 v{MM}, 0xff800000")
    for i in range(16): A(f"v_mov_b32 v{OO+i}, 0")
    A("s_mov_b32 s44, 0")
    A("L_at_sloop:")
    rdK(0); rdR(0); rdV(0, 0); rdV(0, 1)
    A("s_waitcnt lgkmcnt(0)")
    M16(SS[0]); M8(SS[0])
    A("s_nop 11")
    rowmax(SS[0], T0, T1)
    A(f"v_max_f32 v{T0}, v{T0}, v{MM}")
    A(f"v_sub_f32 v{T1}, v{MM}, v{T0}")
    A(f"v_exp_f32 v{T1}, v{T1}")
    A(f"v_mov_b32 v{MM}, v{T0}")
    for i in range(16): A(f"v_mul_f32 v{OO+i}, v{OO+i}, v{T1}")
    for i in range(16): A(f"v_sub_f32 v{SS[0]+i}, v{SS[0]+i}, v{T0}")
    EX(SS[0], 0, 16)
    A("s_nop 1")
    PV(0, SS[0]); PV(1, SS[0])
    for r in (AK, AV, AR):
        A(f"v_add_u32 v{r}, {TILE_B}, v{r}")
    A("s_add_u32 s44, s44, 1")
    A("s_cmp_lt_u32 s44, 64")
    A("s_cbranch_scc1 L_at_sloop")
    A("s_nop 11")
    A(f"v_mov_b32 v{T0}, v{OO+10}")
    A(f"v_mov_b32 v{T1}, v{OO+10}")
    A("s_nop 1")
    A(f"v_permlane32_swap_b32 v{T0}, v{T1}")
    A("s_nop 0")
    A("s_branch L_at_fin")
    kernel_desc(A, name, 88, 56)
    return f"; @launch kernel={name} grid=(256,1,1) block=(512,1,1) lds=163840"

def out_kernel(A):
    name = "out_kernel"
    WB, RB = 0, 92160
    kernel_begin(A, name)
    A("s_cmp_ge_u32 s2, 256")
    A("s_cbranch_scc1 L_o_end")
    A("s_load_dwordx4 s[4:7], s[0:1], 32")
    A("s_load_dwordx2 s[8:9], s[0:1], 56")
    lane_decode(A, 1, 2, 28)
    wg_decode(A, 29, 30)
    mul, sh = magic_div(10, 64)
    A(f"v_mul_u32_u24 v4, {mul}, v1")
    A(f"v_lshrrev_b32 v4, {sh}, v4")
    A("v_mul_u32_u24 v5, 10, v4")
    A("v_sub_u32 v5, v1, v5")
    A("v_min_u32 v5, 8, v5")
    A(f"v_mul_u32_u24 v3, {ROWB}, v4")
    A("v_lshl_add_u32 v3, v5, 4, v3")
    A("s_mul_i32 s31, s30, 144")
    A("v_add_u32 v3, s31, v3")
    A("s_and_b32 s36, s28, 3")
    A("s_lshr_b32 s37, s28, 2")
    A("v_and_b32 v4, 15, v1")
    A("v_lshrrev_b32 v5, 4, v1")
    A("s_and_b32 s38, s36, 1")
    A("s_lshl_b32 s38, s38, 4")
    A("v_add_u32 v4, s38, v4")
    A("v_lshlrev_b32 v7, 4, v4")
    A("v_lshrrev_b32 v8, 1, v5")
    A("v_and_b32 v9, 1, v5")
    A("v_lshl_add_u32 v6, v8, 10, v7")
    A("v_lshl_add_u32 v6, v9, 9, v6")
    A("v_lshl_add_u32 v7, v5, 9, v7")
    A("s_lshl_b32 s39, s29, 1")
    A("s_lshr_b32 s40, s36, 1")
    A("s_add_u32 s39, s39, s40")
    A(f"s_mul_i32 s39, s39, {OHALF_B}")
    A("s_lshl_b32 s40, s37, 14")
    A("s_add_u32 s40, s40, s39")
    A("s_lshl_b32 s41, s37, 11")
    A("s_add_u32 s41, s41, s39")
    A("s_add_u32 s41, s41, 32768")
    A("s_waitcnt lgkmcnt(0)")
    srd(A, 12, 4, D_ * ROWB)
    srd(A, 16, 6, S_ * ROWB)
    A(f"s_add_u32 s20, s8, {OIMG_OFF}")
    A("s_addc_u32 s21, s9, 0")
    A(f"s_mov_b32 s22, {OIMG_B}")
    A("s_mov_b32 s23, 0x00020000")
    OB = 16
    for t in range(8):
        if t % 2 == 0 and t > 0:
            A("s_add_u32 s40, s40, 4096")
        A(f"buffer_load_dwordx4 {v(OB+4*t,4)}, v6, s[20:23], s40 offen offset:{(t&1)*2048}")
    A(f"buffer_load_dwordx4 {v(OB+32,4)}, v7, s[20:23], s41 offen")
    A("s_mul_i32 s33, s28, 960")
    A("s_mul_i32 s34, s28, 6912")
    A(f"s_mov_b32 exec_hi, {(1 << 28) - 1:#x}")
    for j in range(12):
        A(f"s_add_u32 m0, s33, {WB + j * 8 * 960}")
        A(f"s_add_u32 s35, s34, {j * 8 * 6912}")
        A("buffer_load_dwordx4 v3, s[12:15], s35 offen lds")
    A("s_mov_b64 exec, -1")
    A("v_bfe_u32 v4, v1, 2, 2")
    A("v_and_b32 v14, 3, v1")
    A("v_lshlrev_b32 v14, 3, v14")
    A("s_mul_i32 s42, s37, 288")
    A("v_mul_u32_u24 v10, 18, v8")
    A("v_add_u32 v10, v10, v4")
    A("v_add_u32 v10, s42, v10")
    A("v_mul_u32_u24 v11, 12, v9")
    A("v_lshlrev_b32 v12, 2, v9")
    A("v_add_u32 v12, 4, v12")
    A("v_add_u32 v12, v10, v12")
    A("v_add_u32 v10, v10, v11")
    A("v_mul_u32_u24 v10, 160, v10")
    A("v_mul_u32_u24 v11, 160, v12")
    A("v_add_u32 v10, v10, v14")
    A("v_add_u32 v11, v11, v14")
    A("v_mul_u32_u24 v12, 72, v5")
    A("v_add_u32 v12, s42, v12")
    A("v_and_b32 v13, 1, v4")
    A("v_add3_u32 v12, v12, v13, 16")
    A("v_lshrrev_b32 v13, 1, v4")
    A("v_lshl_add_u32 v13, v9, 1, v13")
    A("v_xor_b32 v15, 2, v13")
    A("v_mul_u32_u24 v13, 18, v13")
    A("v_mul_u32_u24 v15, 18, v15")
    A("v_add_u32 v15, v12, v15")
    A("v_add_u32 v12, v12, v13")
    A("v_mul_u32_u24 v12, 160, v12")
    A("v_mul_u32_u24 v13, 160, v15")
    A("v_add_u32 v12, v12, v14")
    A("v_add_u32 v13, v13, v14")
    DD = 52
    FB = 72
    def reads(t):
        b = FB + 20 * (t % 2)
        a0, a1, off = (10, 11, t * 36 * 160) if t < 8 else (12, 13, 0)
        for c in range(5):
            A(f"ds_read_b64_tr_b16 {v(b+4*c,2)}, v{a0} offset:{off + 32*c}")
            A(f"ds_read_b64_tr_b16 {v(b+4*c+2,2)}, v{a1} offset:{off + 32*c}")
    A("s_waitcnt vmcnt(0)")
    A("s_barrier")
    reads(0)
    for t in range(9):
        b = FB + 20 * (t % 2)
        for c in range(5):
            A(f"s_waitcnt lgkmcnt({8 if t < 8 else 8 - 2*c})" if not (t < 8) else "s_waitcnt lgkmcnt(8)")
            cc = "0" if t == 0 else v(DD+4*c, 4)
            A(f"v_mfma_f32_16x16x32_bf16 {v(DD+4*c,4)}, {v(b+4*c,4)}, {v(OB+4*t,4)}, {cc}")
            if t < 8:
                nb = FB + 20 * ((t+1) % 2)
                a0, a1, off = (10, 11, (t+1) * 36 * 160) if t + 1 < 8 else (12, 13, 0)
                A(f"ds_read_b64_tr_b16 {v(nb+4*c,2)}, v{a0} offset:{off + 32*c}")
                A(f"ds_read_b64_tr_b16 {v(nb+4*c+2,2)}, v{a1} offset:{off + 32*c}")
    A("v_lshlrev_b32 v4, 4, v1")
    A("s_mul_i32 s43, s36, 5120")
    A(f"s_add_u32 s43, s43, {RB}")
    A("v_add_u32 v4, s43, v4")
    A("s_nop 7")
    A("s_cmp_eq_u32 s37, 0")
    A("s_cbranch_scc1 L_o_fin")
    for c in range(5):
        A(f"ds_write_b128 v4, {v(DD+4*c,4)} offset:{1024*c}")
    A("s_waitcnt lgkmcnt(0)")
    A("s_barrier")
    A("s_endpgm")
    A("L_o_fin:")
    A("s_barrier")
    for c in range(5):
        A(f"ds_read_b128 {v(FB+4*c,4)}, v4 offset:{1024*c}")
    A("v_and_b32 v6, 15, v1")
    A("s_lshl_b32 s43, s29, 6")
    A("s_lshl_b32 s44, s36, 4")
    A("s_add_u32 s43, s43, s44")
    A("v_add_u32 v6, s43, v6")
    A(f"v_mul_u32_u24 v6, {ROWB}, v6")
    A("v_lshl_add_u32 v6, v5, 3, v6")
    A("v_add_u32 v6, s31, v6")
    for c in range(5):
        A(f"s_waitcnt lgkmcnt({4-c})")
        for i in range(4):
            A(f"v_add_f32 v{DD+4*c+i}, v{DD+4*c+i}, v{FB+4*c+i}")
        A(f"v_cvt_pk_bf16_f32 v{DD+4*c}, v{DD+4*c}, v{DD+4*c+1}")
        A(f"v_cvt_pk_bf16_f32 v{DD+4*c+1}, v{DD+4*c+2}, v{DD+4*c+3}")
        if c == 4:
            A("s_mov_b32 exec_hi, 0")
        A(f"buffer_store_dwordx2 {v(DD+4*c,2)}, v6, s[16:19], 0 offen offset:{32*c}")
    A("L_o_end:")
    A("s_endpgm")
    kernel_desc(A, name, 112, 48)
    return f"; @launch kernel={name} grid=(256,1,1) block=(512,1,1) lds={RB + 20480}"

A('.amdgcn_target "amdgcn-amd-amdhsa--gfx950"')
L = [kv_kernel(A), attn_kernel(A), out_kernel(A)]
out = "\n".join(hdr) + "\n" + "\n".join(L) + "\n" + A.text()
path = sys.argv[1] if len(sys.argv) > 1 else 'standalone__grouped_kv_mqa__prompt.s'
open(path, 'w').write(out)
print("wrote", path, len(out))
```

```python
import sys, struct, math
sys.path.insert(0, 'work')
from gen_common import *

S_, D_, H_, DH = 2048, 576, 32, 18
ROWB = D_ * 2
TILE_B = 2368
KV_B = 64 * TILE_B
OIMG_OFF = 0x40000
OHALF_B = 36864
OIMG_B = 64 * OHALF_B
CSCALE = (DH ** -0.5) * math.log2(math.e)
def f32bits(x): return struct.unpack('<I', struct.pack('<f', x))[0]
def nib(tab): return sum(t << (4 * i) for i, t in enumerate(tab))

DIAG = 'diag' in sys.argv
def stamp(A, i, real=False):
    if DIAG:
        A(f"s_mem{'real' if real else ''}time s[{64+2*i}:{65+2*i}]")
def stamp_flush(A, n, wsptr, kid, swave):
    if not DIAG: return
    A("s_waitcnt lgkmcnt(0)")
    A(f"s_add_u32 s92, s{wsptr}, {0x400000 + kid*0x40000}")
    A(f"s_addc_u32 s93, s{wsptr+1}, 0")
    A("s_mov_b32 s94, 0x40000")
    A("s_mov_b32 s95, 0x00020000")
    A("s_lshl_b32 s96, s2, 3")
    A(f"s_add_u32 s96, s96, s{swave}")
    A("s_lshl_b32 s96, s96, 6")
    A("s_mov_b64 exec, 1")
    A("v_mov_b32 v2, 0")
    for i in range(n):
        A(f"v_mov_b32 v3, s{64+2*i}")
        A(f"buffer_store_dword v3, v2, s[92:95], s96 offen offset:{4*i}")
        A("s_nop 1")
A = Asm()
HEADER = open('standalone__grouped_kv_mqa__prompt.s.ref').read().split('\n')
hdr = [l for l in HEADER if l.startswith(';') and '@launch' not in l and 'Override launch' not in l and 'grid=ceil' not in l]

def lane_decode(A, vl, vwave, swave):
    A(f"v_and_b32 v{vl}, 63, v0")
    A(f"v_lshrrev_b32 v{vwave}, 6, v0")
    A("s_nop 0")
    A(f"v_readfirstlane_b32 s{swave}, v{vwave}")

def kv_kernel(A):
    name = "kv_kernel"
    XB, WKB, WVB = 0, 36864, 36864 + 28224
    kernel_begin(A, name)
    A("s_cmp_ge_u32 s2, 64")
    A("s_cbranch_scc1 L_kv_end")
    stamp(A, 0); stamp(A, 8, True)
    A("s_load_dwordx2 s[4:5], s[0:1], 0")
    A("s_load_dwordx4 s[8:11], s[0:1], 16")
    A("s_load_dwordx2 s[6:7], s[0:1], 56")
    lane_decode(A, 1, 2, 28)
    A("v_lshrrev_b32 v4, 3, v1")
    A("v_lshl_add_u32 v4, v2, 3, v4")
    A("v_lshrrev_b32 v5, 1, v4")
    A("v_and_b32 v5, 7, v5")
    A("v_and_b32 v6, 7, v1")
    A("v_xor_b32 v5, v5, v6")
    A("v_lshlrev_b32 v5, 4, v5")
    A("s_lshl_b32 s29, s2, 5")
    A("v_add_u32 v4, s29, v4")
    A(f"v_mul_u32_u24 v3, {ROWB}, v4")
    A("v_add_u32 v3, v3, v5")
    mul, sh = magic_div(3, 64)
    A(f"v_mul_u32_u24 v4, {mul}, v1")
    A(f"v_lshrrev_b32 v4, {sh}, v4")
    A("v_mul_u32_u24 v5, 3, v4")
    A("v_sub_u32 v5, v1, v5")
    A("v_mul_u32_u24 v7, 36, v4")
    A("v_lshl_add_u32 v7, v5, 4, v7")
    A("s_waitcnt lgkmcnt(0)")
    stamp(A, 1)
    srd(A, 12, 4, S_ * ROWB)
    srd(A, 16, 8, D_ * 36)
    srd(A, 20, 10, D_ * 36)
    srd(A, 24, 6, KV_B)
    A("s_lshl_b32 s30, s28, 10")
    for sg in range(9):
        A(f"s_add_u32 m0, s30, {XB + sg * 3968}")
        A("s_nop 0")
        A(f"buffer_load_dwordx4 v3, s[12:15], 0 offen offset:{sg*128} lds")
    A("s_mov_b32 exec_hi, 0x7fffffff")
    A("s_mul_i32 s31, s28, 756")
    A("s_mul_i32 s30, s28, 1008")
    for j in range(7):
        A(f"s_add_u32 m0, s30, {WKB + j * 4 * 1008}")
        A(f"s_add_u32 s32, s31, {j * 4 * 756}")
        A(f"buffer_load_dwordx4 v7, s[16:19], s32 offen lds")
        A(f"s_add_u32 m0, s30, {WVB + j * 4 * 1008}")
        A("s_nop 0")
        A(f"buffer_load_dwordx4 v7, s[20:23], s32 offen lds")
    A("s_mov_b64 exec, -1")
    A("v_and_b32 v4, 31, v1")
    A("v_and_b32 v5, 0x13, v4")
    A("v_lshrrev_b32 v6, 1, v4")
    A("v_and_b32 v6, 4, v6")
    A("v_or_b32 v5, v5, v6")
    A("v_lshlrev_b32 v6, 1, v4")
    A("v_and_b32 v6, 8, v6")
    A("v_or_b32 v5, v5, v6")
    A("s_cmp_eq_u32 s28, 1")
    A("s_cselect_b64 vcc, -1, 0")
    A("v_cndmask_b32 v4, v4, v5, vcc")
    A("v_lshrrev_b32 v5, 1, v4")
    A("v_and_b32 v5, 7, v5")
    A("v_lshrrev_b32 v6, 5, v1")
    for u in range(4):
        A(f"v_add_u32 v8, {2*u}, v6")
        A("v_xor_b32 v8, v8, v5")
        A("v_lshlrev_b32 v8, 4, v8")
        A(f"v_lshl_add_u32 v{10+u}, v4, 7, v8")
    A("v_bfe_u32 v4, v1, 2, 2")
    A("v_lshl_add_u32 v4, v6, 3, v4")
    A("v_mul_u32_u24 v4, 48, v4")
    A("v_and_b32 v5, 3, v1")
    A("v_bfe_u32 v8, v1, 4, 1")
    A("v_lshl_add_u32 v5, v8, 2, v5")
    A("v_lshlrev_b32 v5, 2, v5")
    A(f"s_mov_b32 s33, {nib([0,2,1,3,4,0,0,0]):#x}")
    A(f"s_mov_b32 s34, {nib([0,1,2,3,4,0,0,0]):#x}")
    A("s_cmp_eq_u32 s28, 1")
    A("s_cselect_b32 s33, s34, s33")
    A(f"s_mov_b32 s35, {WKB}")
    A(f"s_cselect_b32 s35, {WVB}, s35")
    A("v_lshrrev_b32 v5, v5, s33")
    A("v_and_b32 v5, 15, v5")
    A("v_lshl_add_u32 v14, v5, 3, v4")
    A("v_add_u32 v14, s35, v14")
    stamp(A, 2)
    A("s_waitcnt vmcnt(0)")
    A("s_barrier")
    stamp(A, 3)
    if DIAG: A("s_waitcnt lgkmcnt(0)")
    A("s_cmp_ge_u32 s28, 2")
    A("s_cbranch_scc1 L_kv_end")
    A("s_cmp_eq_u32 s28, 1")
    A("s_cbranch_scc1 L_kv_v")
    DD = 16
    FB = 32
    def reads(t):
        b = FB + 8 * (t % 4)
        A(f"ds_read_b128 {v(b,4)}, v{10 + (t & 3)} offset:{(t >> 2) * 4096}")
        A(f"ds_read_b64_tr_b16 {v(b+4,2)}, v14 offset:{t*768}")
        A(f"ds_read_b64_tr_b16 {v(b+6,2)}, v14 offset:{t*768+192}")
    for which in ("k", "v"):
        if which == "v":
            A("L_kv_v:")
        for t in range(3): reads(t)
        for t in range(36):
            if t + 3 < 36:
                reads(t + 3)
                A("s_waitcnt lgkmcnt(9)")
            else:
                A(f"s_waitcnt lgkmcnt({3 * (35 - t)})")
            b = FB + 8 * (t % 4)
            cc = "0" if t == 0 else v(DD, 16)
            if which == "k":
                A(f"v_mfma_f32_32x32x16_bf16 {v(DD,16)}, {v(b+4,4)}, {v(b,4)}, {cc}")
            else:
                A(f"v_mfma_f32_32x32x16_bf16 {v(DD,16)}, {v(b,4)}, {v(b+4,4)}, {cc}")
        A(f"s_mul_i32 s36, s2, {TILE_B}")
        stamp(A, 4); stamp(A, 5)
        A("s_nop 11")
        if which == "k":
            for i in range(5):
                A(f"v_cvt_pk_bf16_f32 v{32+i}, v{DD+2*i}, v{DD+2*i+1}")
            A("v_lshlrev_b32 v4, 4, v1")
            A("buffer_store_dwordx4 v[32:35], v4, s[24:27], s36 offen")
            A("v_lshlrev_b32 v4, 2, v1")
            A("s_mov_b32 exec_hi, 0")
            A("buffer_store_dword v36, v4, s[24:27], s36 offen offset:2240")
            if DIAG: A("s_waitcnt vmcnt(0)")
            stamp(A, 6); stamp(A, 9, True); stamp(A, 7)
            stamp_flush(A, 10, 6, 0, 28)
            A("s_endpgm")
        else:
            for i in range(8):
                A(f"v_cvt_pk_bf16_f32 v{32+i}, v{DD+2*i}, v{DD+2*i+1}")
            A("v_and_b32 v4, 31, v1")
            A("v_cmp_eq_u32 vcc, 18, v4")
            A("v_mov_b32 v5, 0x3f803f80")
            A("v_lshrrev_b32 v6, 5, v1")
            for i in range(8):
                A(f"v_cndmask_b32 v{32+i}, v{32+i}, v5, vcc")
            A("v_mul_u32_u24 v6, 304, v6")
            A("v_lshl_add_u32 v6, v4, 4, v6")
            A("v_cmp_gt_u32 vcc, 19, v4")
            A("s_and_saveexec_b64 s[38:39], vcc")
            A("buffer_store_dwordx4 v[32:35], v6, s[24:27], s36 offen offset:1024")
            A(f"buffer_store_dwordx4 v[36:39], v6, s[24:27], s36 offen offset:{1024+608}")
    A("L_kv_end:")
    A("s_endpgm")
    kernel_desc(A, name, 64, 100 if DIAG else 48)
    return f"; @launch kernel={name} grid=(64,1,1) block=(256,1,1) lds={WVB + 28224}"

def wg_decode(A, stb, shg):
    A(f"s_and_b32 s{stb}, s2, 7")
    A(f"s_lshr_b32 s{shg}, s2, 6")
    A(f"s_lshl_b32 s{shg}, s{shg}, 3")
    A(f"s_add_u32 s{stb}, s{stb}, s{shg}")
    A(f"s_lshr_b32 s{shg}, s2, 3")
    A(f"s_and_b32 s{shg}, s{shg}, 7")

def attn_kernel(A):
    name = "attn_kernel"
    XB, WB = 0, 73728
    kernel_begin(A, name)
    A("s_cmp_ge_u32 s2, 256")
    A("s_cbranch_scc1 L_at_end")
    stamp(A, 0); stamp(A, 8, True)
    A("s_load_dwordx4 s[4:7], s[0:1], 0")
    A("s_load_dwordx2 s[8:9], s[0:1], 56")
    lane_decode(A, 1, 2, 28)
    wg_decode(A, 29, 30)
    A("v_lshrrev_b32 v4, 3, v1")
    A("v_lshl_add_u32 v4, v2, 3, v4")
    A("v_lshrrev_b32 v5, 1, v4")
    A("v_and_b32 v5, 7, v5")
    A("v_and_b32 v6, 7, v1")
    A("v_xor_b32 v5, v5, v6")
    A("v_lshlrev_b32 v5, 4, v5")
    A("s_lshl_b32 s31, s29, 6")
    A("v_add_u32 v4, s31, v4")
    A(f"v_mul_u32_u24 v3, {ROWB}, v4")
    A("v_add_u32 v3, v3, v5")
    mul, sh = magic_div(19, 64)
    A(f"v_mul_u32_u24 v4, {mul}, v1")
    A(f"v_lshrrev_b32 v4, {sh}, v4")
    A("v_mul_u32_u24 v5, 19, v4")
    A("v_sub_u32 v5, v1, v5")
    A("v_min_u32 v5, 17, v5")
    A("v_cmp_le_u32 vcc, 9, v5")
    A("v_lshlrev_b32 v4, 1, v4")
    A("v_subrev_u32 v6, 9, v5")
    A("v_cndmask_b32 v5, v5, v6, vcc")
    A("v_addc_co_u32 v4, vcc, 0, v4, vcc")
    A(f"v_mul_u32_u24 v7, {ROWB}, v4")
    A("v_lshl_add_u32 v7, v5, 4, v7")
    A("s_mul_i32 s31, s30, 144")
    A("v_add_u32 v7, s31, v7")
    A("s_waitcnt lgkmcnt(0)")
    srd(A, 12, 4, S_ * ROWB)
    srd(A, 16, 6, D_ * ROWB)
    srd(A, 20, 8, KV_B)
    A(f"s_add_u32 s24, s8, {OIMG_OFF}")
    A("s_addc_u32 s25, s9, 0")
    A(f"s_mov_b32 s26, {OIMG_B}")
    A("s_mov_b32 s27, 0x00020000")
    A("s_lshl_b32 s32, s28, 10")
    A("s_mul_i32 s33, s28, 912")
    A("s_mul_i32 s34, s28, 6912")
    def dma_x(sg):
        A(f"s_add_u32 m0, s32, {XB + sg * (8192 - 128)}")
        A("s_mov_b64 exec, -1")
        A(f"buffer_load_dwordx4 v3, s[12:15], 0 offen offset:{sg*128} lds")
    def dma_w(j):
        A(f"s_add_u32 m0, s33, {WB + j * 8 * 912}")
        A(f"s_add_u32 s35, s34, {j * 8 * 6912}")
        A(f"s_mov_b32 exec_hi, {(1 << 25) - 1:#x}")
        A("buffer_load_dwordx4 v7, s[16:19], s35 offen lds")
    for q in range(3):
        dma_w(4*q); dma_x(3*q); dma_w(4*q+1); dma_x(3*q+1); dma_w(4*q+2); dma_x(3*q+2); dma_w(4*q+3)
    A("s_mov_b64 exec, -1")
    A("v_and_b32 v4, 31, v1")
    A("s_and_b32 s36, s28, 1")
    A("s_lshl_b32 s37, s36, 5")
    A("v_add_u32 v4, s37, v4")
    A("v_lshrrev_b32 v5, 1, v4")
    A("v_and_b32 v5, 7, v5")
    A("v_lshrrev_b32 v6, 5, v1")
    for u in range(4):
        A(f"v_add_u32 v8, {2*u}, v6")
        A("v_xor_b32 v8, v8, v5")
        A("v_lshlrev_b32 v8, 4, v8")
        A(f"v_lshl_add_u32 v{10+u}, v4, 7, v8")
    A("v_mul_u32_u24 v4, 1216, v6")
    A("v_bfe_u32 v5, v1, 3, 1")
    A("v_mul_u32_u24 v5, 304, v5")
    A("v_add_u32 v4, v4, v5")
    A("v_bfe_u32 v5, v1, 2, 1")
    A("v_mul_u32_u24 v5, 144, v5")
    A("v_add_u32 v4, v4, v5")
    A("v_and_b32 v5, 3, v1")
    A("v_bfe_u32 v8, v1, 4, 1")
    A("v_lshl_add_u32 v5, v8, 2, v5")
    A("v_lshlrev_b32 v5, 2, v5")
    A("s_lshr_b32 s38, s28, 1")
    A("s_and_b32 s39, s38, 1")
    A(f"s_mov_b32 s40, {nib([0,2,1,3,4,0,0,0]):#x}")
    A(f"s_mov_b32 s41, {nib([0,2,1,3,2,4,4,0]):#x}")
    A("s_cmp_eq_u32 s39, 1")
    A("s_cselect_b32 s40, s41, s40")
    A("s_mul_i32 s41, s38, 36")
    A("s_and_b32 s41, s41, 0xf8")
    A(f"s_add_u32 s41, s41, {WB}")
    A("v_lshrrev_b32 v5, v5, s40")
    A("v_and_b32 v5, 15, v5")
    A("v_lshl_add_u32 v14, v5, 3, v4")
    A("v_add_u32 v14, s41, v14")
    A(f"v_add_u32 v15, {18 * 2432}, v14")
    DD = 16; FB = 32
    def reads(t):
        b = FB + 8 * (t % 4)
        sg = t >> 2
        if sg == 8 and (t & 3) == 0:
            for u in range(4): A(f"v_add_u32 v{10+u}, 8192, v{10+u}")
        A(f"ds_read_b128 {v(b,4)}, v{10 + (t & 3)} offset:{min(sg,7) * 8192}")
        wa, wt = (14, t) if t < 18 else (15, t - 18)
        A(f"ds_read_b64_tr_b16 {v(b+4,2)}, v{wa} offset:{wt*2432}")
        A(f"ds_read_b64_tr_b16 {v(b+6,2)}, v{wa} offset:{wt*2432+608}")
    for q in range(3):
        A(f"s_waitcnt vmcnt({14 - 7*q})")
        A("s_barrier")
        if q == 0: stamp(A, 1); A("s_waitcnt lgkmcnt(0)") if DIAG else None
        t0 = 12 * q
        for t in range(t0, t0 + 3): reads(t)
        for t in range(t0, t0 + 12):
            if t + 3 < t0 + 12:
                reads(t + 3)
                A("s_waitcnt lgkmcnt(9)")
            else:
                A(f"s_waitcnt lgkmcnt({3 * (t0 + 11 - t)})")
            b = FB + 8 * (t % 4)
            cc = "0" if t == 0 else v(DD, 16)
            A(f"v_mfma_f32_32x32x16_bf16 {v(DD,16)}, {v(b+4,4)}, {v(b,4)}, {cc}")
    A("s_barrier")
    stamp(A, 2)
    A("v_lshlrev_b32 v3, 4, v1")
    A("v_add_u32 v3, s32, v3")
    A("s_mov_b32 s35, 0")
    for r in range(19):
        A(f"s_add_u32 m0, s32, {r * 8192}")
        A(f"s_mov_b32 s35, {r * 8192}")
        A("buffer_load_dwordx4 v3, s[20:23], s35 offen lds")
    QM, QR = 4, 8
    A(f"s_mov_b32 s42, {f32bits(CSCALE):#x}")
    for i in range(16):
        A(f"v_mul_f32 v{DD+i}, s42, v{DD+i}")
    A("v_mov_b32 v8, 0")
    A("v_mov_b32 v9, 0")
    A("s_cmp_eq_u32 s39, 1")
    A("s_cbranch_scc1 L_at_qodd")
    for i in range(4):
        A(f"v_cvt_pk_bf16_f32 v{QM+i}, v{DD+2*i}, v{DD+2*i+1}")
    A("s_mov_b32 exec_hi, 0")
    A(f"v_cvt_pk_bf16_f32 v{QR}, v{DD+8}, v{DD+9}")
    A("s_branch L_at_qdone")
    A("L_at_qodd:")
    for i in range(4):
        A(f"v_cvt_pk_bf16_f32 v{QM+i}, v{DD+2+2*i}, v{DD+3+2*i}")
    A("s_mov_b32 exec_hi, 0")
    A(f"v_cvt_pk_bf16_f32 v{QR}, v{DD+14}, v{DD+15}")
    A("L_at_qdone:")
    A("s_mov_b64 exec, -1")
    AK, AV, AR = 10, 11, 12
    IDX = 13
    KF, KR = 16, 20
    VF0, VF1 = 24, 28
    SS = [32, 48]
    OO = 64
    T0, T1, T2, T3 = 80, 81, 82, 83
    A(f"v_lshlrev_b32 v{AK}, 4, v1")
    A(f"v_and_b32 v{T0}, 31, v1")
    A(f"v_lshlrev_b32 v{AR}, 2, v{T0}")
    def slot(i):
        if i < 16:
            a, h, b = i >> 3, (i >> 2) & 1, i & 3
            return 4 * a + b if h == 0 else 12 - 4 * a + b
        if i <= 18: return i
        if 20 <= i <= 27: return slot(0)
        return slot(4)
    A(f"v_lshrrev_b32 v{T1}, 2, v{T0}")
    A(f"v_lshlrev_b32 v{T1}, 2, v{T1}")
    A(f"s_mov_b32 s43, {nib([0,3,1,2,4,0,0,3]):#x}")
    A(f"v_lshrrev_b32 v{T1}, v{T1}, s43")
    A(f"v_and_b32 v{T1}, 15, v{T1}")
    A(f"v_lshlrev_b32 v{T1}, 2, v{T1}")
    A(f"v_and_b32 v{T2}, 3, v{T0}")
    A(f"v_add_u32 v{T2}, v{T1}, v{T2}")
    A(f"v_cmp_gt_u32 vcc, 19, v{T0}")
    A(f"v_mov_b32 v{T3}, 12")
    A("s_nop 0")
    A(f"v_cndmask_b32 v{T1}, v{T1}, v{T2}, vcc")
    A(f"v_cmp_eq_u32 vcc, 19, v{T0}")
    A(f"v_lshrrev_b32 v{T2}, 5, v1")
    A(f"v_mul_u32_u24 v{T2}, 304, v{T2}")
    A(f"v_cndmask_b32 v{T1}, v{T1}, v{T3}, vcc")
    A(f"v_lshl_add_u32 v{AV}, v{T1}, 4, v{T2}")
    A(f"v_mov_b32 v{IDX}, 0xdddd")
    A(f"v_mov_b32 v{KR+1}, 0x3f803f80")
    for i in range(16): A(f"v_mov_b32 v{OO+i}, 0")
    for i in range(4): A(f"v_mov_b32 v{VF1+i}, 0")
    for i in range(8): A(f"v_mov_b32 v{SS[1]+8+i}, 0")
    def rdK(t): A(f"ds_read_b128 {v(KF,4)}, v{AK} offset:{t*TILE_B}")
    def rdR(t): A(f"ds_read_b32 v{KR}, v{AR} offset:{t*TILE_B+2240}")
    def rdV(t, m): A(f"ds_read_b128 {v(VF0 if m == 0 else VF1,4)}, v{AV} offset:{t*TILE_B+1024+608*m}")
    def M16(sd): A(f"v_mfma_f32_32x32x16_bf16 {v(sd,16)}, {v(KF,4)}, {v(QM,4)}, 0")
    def M8(sd): A(f"v_mfma_f32_32x32x8_bf16 {v(sd,16)}, {v(KR,2)}, {v(QR,2)}, {v(sd,16)}")
    def PV(m, sd): A(f"v_smfmac_f32_32x32x32_bf16 {v(OO,16)}, {v(VF0 if m == 0 else VF1,4)}, {v(sd+8*m,8)}, v{IDX}")
    def EX(sd, a, b):
        for i in range(a, b): A(f"v_exp_f32 v{sd+i}, v{sd+i}")
    def rowmax(sd, dst, tmp):
        A(f"v_max3_f32 v{dst}, v{sd}, v{sd+1}, v{sd+2}")
        for i in range(3, 15, 2):
            A(f"v_max3_f32 v{dst}, v{dst}, v{sd+i}, v{sd+i+1}")
        A(f"v_max_f32 v{dst}, v{dst}, v{sd+15}")
        A(f"v_mov_b32 v{tmp}, v{dst}")
        A("s_nop 1")
        A(f"v_permlane32_swap_b32 v{dst}, v{tmp}")
        A("s_nop 0")
        A(f"v_max_f32 v{dst}, v{dst}, v{tmp}")
    A("s_waitcnt vmcnt(17)")
    A("s_barrier")
    stamp(A, 3)
    rdK(0); rdR(0)
    A("s_waitcnt lgkmcnt(0)")
    M16(SS[0]); M8(SS[0])
    A("s_nop 11")
    rowmax(SS[0], T0, T1)
    A("s_mov_b32 exec_hi, 0")
    A(f"v_cvt_pk_bf16_f32 v{QR+1}, -v{T0}, 0")
    A("s_mov_b64 exec, -1")
    A("s_nop 1")
    M16(SS[0]); M8(SS[0])
    stamp(A, 4)
    if DIAG: A("s_waitcnt lgkmcnt(0)")
    rdK(1); rdR(1); rdV(0, 0)
    A("s_mov_b32 s44, 0")
    A("s_nop 7")
    A(".p2align 6")
    A("L_at_loop:")
    for t in range(16):
        c = t & 1
        if t == 3:
            A("s_waitcnt vmcnt(14)")
            A("s_barrier")
        if t == 13:
            A("s_waitcnt vmcnt(0)")
            A("s_barrier")
        A("s_waitcnt lgkmcnt(3)")
        A("s_nop 0")
        PV(1, SS[1-c])
        rdV(t, 1)
        EX(SS[c], 0, 4)
        A("s_waitcnt lgkmcnt(3)")
        M16(SS[1-c])
        rdK(t + 2)
        EX(SS[c], 4, 8)
        A("s_waitcnt lgkmcnt(3)")
        M8(SS[1-c])
        rdR(t + 2)
        EX(SS[c], 8, 12)
        A("s_waitcnt lgkmcnt(3)")
        PV(0, SS[c])
        EX(SS[c], 12, 16)
        rdV(t + 1, 0)
    for r in (AK, AV, AR):
        A(f"v_add_u32 v{r}, {16*TILE_B}, v{r}")
    A("s_add_u32 s44, s44, 1")
    A("s_cmp_lt_u32 s44, 4")
    A("s_cbranch_scc1 L_at_loop")
    A("s_waitcnt lgkmcnt(3)")
    PV(1, SS[1])
    stamp(A, 5)
    A("s_nop 11")
    A(f"v_mov_b32 v{T0}, v{OO+10}")
    A(f"v_mov_b32 v{T1}, v{OO+10}")
    A(f"v_mul_f32 v{T2}, 0, v{OO}")
    A(f"v_fma_f32 v{T2}, 0, v{OO+1}, v{T2}")
    A(f"v_permlane32_swap_b32 v{T0}, v{T1}")
    for i in range(2, 10):
        A(f"v_fma_f32 v{T2}, 0, v{OO+i}, v{T2}")
    A(f"v_add_f32 v{T2}, v{T2}, v{T0}")
    A(f"s_mov_b32 s45, {f32bits(2.0**-32):#x}")
    A(f"s_mov_b32 s46, {f32bits(2.0**64):#x}")
    A(f"v_cmp_nle_f32 vcc, s45, v{T2}")
    A(f"v_cmp_nge_f32 s[48:49], s46, v{T2}")
    A("s_or_b64 vcc, vcc, s[48:49]")
    A("s_cbranch_vccnz L_at_slow")
    A("L_at_fin:")
    A(f"v_rcp_f32 v{T0}, v{T0}")
    A("s_lshl_b32 s45, s29, 1")
    A("s_add_u32 s45, s45, s36")
    A(f"s_mul_i32 s45, s45, {OHALF_B}")
    for i in range(10):
        A(f"v_mul_f32 v{OO+i}, v{OO+i}, v{T0}")
    for i in range(5):
        A(f"v_cvt_pk_bf16_f32 v{KF+i}, v{OO+2*i}, v{OO+2*i+1}")
    A("s_lshl_b32 s46, s30, 2")
    A("s_add_u32 s46, s46, s38")
    A("s_lshl_b32 s46, s46, 10")
    A("s_add_u32 s46, s46, s45")
    A(f"v_lshlrev_b32 v{T1}, 4, v1")
    A(f"buffer_store_dwordx4 {v(KF,4)}, v{T1}, s[24:27], s46 offen")
    A("s_and_b32 s46, s30, 1")
    A("s_lshl_b32 s46, s46, 1")
    A("s_xor_b32 s46, s46, s38")
    A("s_lshl_b32 s46, s46, 2")
    A("s_lshl_b32 s47, s30, 9")
    A("s_add_u32 s46, s46, s47")
    A("s_add_u32 s46, s46, s45")
    A("s_add_u32 s46, s46, 32768")
    A("s_mov_b32 exec_hi, 0")
    A(f"buffer_store_dword v{KF+4}, v{T1}, s[24:27], s46 offen")
    if DIAG: A("s_waitcnt vmcnt(0)")
    stamp(A, 6); stamp(A, 9, True); stamp(A, 7)
    stamp_flush(A, 10, 8, 1, 28)
    A("L_at_end:")
    A("s_endpgm")
    A("L_at_slow:")
    MM = 84
    A("s_waitcnt lgkmcnt(0)")
    for r in (AK, AV, AR):
        A(f"v_subrev_u32 v{r}, {64*TILE_B}, v{r}")
    A(f"v_mov_b32 v{QR+1}, 0")
    A(f"v_mov_b32 v{MM}, 0xff800000")
    for i in range(16): A(f"v_mov_b32 v{OO+i}, 0")
    A("s_mov_b32 s44, 0")
    A("L_at_sloop:")
    rdK(0); rdR(0); rdV(0, 0); rdV(0, 1)
    A("s_waitcnt lgkmcnt(0)")
    M16(SS[0]); M8(SS[0])
    A("s_nop 11")
    rowmax(SS[0], T0, T1)
    A(f"v_max_f32 v{T0}, v{T0}, v{MM}")
    A(f"v_sub_f32 v{T1}, v{MM}, v{T0}")
    A(f"v_exp_f32 v{T1}, v{T1}")
    A(f"v_mov_b32 v{MM}, v{T0}")
    for i in range(16): A(f"v_mul_f32 v{OO+i}, v{OO+i}, v{T1}")
    for i in range(16): A(f"v_sub_f32 v{SS[0]+i}, v{SS[0]+i}, v{T0}")
    EX(SS[0], 0, 16)
    A("s_nop 1")
    PV(0, SS[0]); PV(1, SS[0])
    for r in (AK, AV, AR):
        A(f"v_add_u32 v{r}, {TILE_B}, v{r}")
    A("s_add_u32 s44, s44, 1")
    A("s_cmp_lt_u32 s44, 64")
    A("s_cbranch_scc1 L_at_sloop")
    A("s_nop 11")
    A(f"v_mov_b32 v{T0}, v{OO+10}")
    A(f"v_mov_b32 v{T1}, v{OO+10}")
    A("s_nop 1")
    A(f"v_permlane32_swap_b32 v{T0}, v{T1}")
    A("s_nop 0")
    A("s_branch L_at_fin")
    kernel_desc(A, name, 88, 100 if DIAG else 56)
    return f"; @launch kernel={name} grid=(256,1,1) block=(512,1,1) lds=163840"

def out_kernel(A):
    name = "out_kernel"
    WB, RB = 0, 92160
    kernel_begin(A, name)
    A("s_cmp_ge_u32 s2, 256")
    A("s_cbranch_scc1 L_o_end")
    stamp(A, 0); stamp(A, 8, True)
    A("s_load_dwordx4 s[4:7], s[0:1], 32")
    A("s_load_dwordx2 s[8:9], s[0:1], 56")
    lane_decode(A, 1, 2, 28)
    wg_decode(A, 29, 30)
    mul, sh = magic_div(10, 64)
    A(f"v_mul_u32_u24 v4, {mul}, v1")
    A(f"v_lshrrev_b32 v4, {sh}, v4")
    A("v_mul_u32_u24 v5, 10, v4")
    A("v_sub_u32 v5, v1, v5")
    A("v_min_u32 v5, 8, v5")
    A(f"v_mul_u32_u24 v3, {ROWB}, v4")
    A("v_lshl_add_u32 v3, v5, 4, v3")
    A("s_mul_i32 s31, s30, 144")
    A("v_add_u32 v3, s31, v3")
    A("s_and_b32 s36, s28, 3")
    A("s_lshr_b32 s37, s28, 2")
    A("v_and_b32 v4, 15, v1")
    A("v_lshrrev_b32 v5, 4, v1")
    A("s_and_b32 s38, s36, 1")
    A("s_lshl_b32 s38, s38, 4")
    A("v_add_u32 v4, s38, v4")
    A("v_lshlrev_b32 v7, 4, v4")
    A("v_lshrrev_b32 v8, 1, v5")
    A("v_and_b32 v9, 1, v5")
    A("v_lshl_add_u32 v6, v8, 10, v7")
    A("v_lshl_add_u32 v6, v9, 9, v6")
    A("v_lshl_add_u32 v7, v5, 9, v7")
    A("s_lshl_b32 s39, s29, 1")
    A("s_lshr_b32 s40, s36, 1")
    A("s_add_u32 s39, s39, s40")
    A(f"s_mul_i32 s39, s39, {OHALF_B}")
    A("s_lshl_b32 s40, s37, 14")
    A("s_add_u32 s40, s40, s39")
    A("s_lshl_b32 s41, s37, 11")
    A("s_add_u32 s41, s41, s39")
    A("s_add_u32 s41, s41, 32768")
    A("s_waitcnt lgkmcnt(0)")
    stamp(A, 1)
    srd(A, 12, 4, D_ * ROWB)
    srd(A, 16, 6, S_ * ROWB)
    A(f"s_add_u32 s20, s8, {OIMG_OFF}")
    A("s_addc_u32 s21, s9, 0")
    A(f"s_mov_b32 s22, {OIMG_B}")
    A("s_mov_b32 s23, 0x00020000")
    OB = 16
    for t in range(8):
        if t % 2 == 0 and t > 0:
            A("s_add_u32 s40, s40, 4096")
        A(f"buffer_load_dwordx4 {v(OB+4*t,4)}, v6, s[20:23], s40 offen offset:{(t&1)*2048}")
    A(f"buffer_load_dwordx4 {v(OB+32,4)}, v7, s[20:23], s41 offen")
    A("s_mul_i32 s33, s28, 960")
    A("s_mul_i32 s34, s28, 6912")
    A(f"s_mov_b32 exec_hi, {(1 << 28) - 1:#x}")
    for j in range(12):
        A(f"s_add_u32 m0, s33, {WB + j * 8 * 960}")
        A(f"s_add_u32 s35, s34, {j * 8 * 6912}")
        A("buffer_load_dwordx4 v3, s[12:15], s35 offen lds")
    A("s_mov_b64 exec, -1")
    A("v_bfe_u32 v4, v1, 2, 2")
    A("v_and_b32 v14, 3, v1")
    A("v_lshlrev_b32 v14, 3, v14")
    A("s_mul_i32 s42, s37, 288")
    A("v_mul_u32_u24 v10, 18, v8")
    A("v_add_u32 v10, v10, v4")
    A("v_add_u32 v10, s42, v10")
    A("v_mul_u32_u24 v11, 12, v9")
    A("v_lshlrev_b32 v12, 2, v9")
    A("v_add_u32 v12, 4, v12")
    A("v_add_u32 v12, v10, v12")
    A("v_add_u32 v10, v10, v11")
    A("v_mul_u32_u24 v10, 160, v10")
    A("v_mul_u32_u24 v11, 160, v12")
    A("v_add_u32 v10, v10, v14")
    A("v_add_u32 v11, v11, v14")
    A("v_mul_u32_u24 v12, 72, v5")
    A("v_add_u32 v12, s42, v12")
    A("v_and_b32 v13, 1, v4")
    A("v_add3_u32 v12, v12, v13, 16")
    A("v_lshrrev_b32 v13, 1, v4")
    A("v_lshl_add_u32 v13, v9, 1, v13")
    A("v_xor_b32 v15, 2, v13")
    A("v_mul_u32_u24 v13, 18, v13")
    A("v_mul_u32_u24 v15, 18, v15")
    A("v_add_u32 v15, v12, v15")
    A("v_add_u32 v12, v12, v13")
    A("v_mul_u32_u24 v12, 160, v12")
    A("v_mul_u32_u24 v13, 160, v15")
    A("v_add_u32 v12, v12, v14")
    A("v_add_u32 v13, v13, v14")
    DD = 52
    FB = 72
    def reads(t):
        b = FB + 20 * (t % 2)
        a0, a1, off = (10, 11, t * 36 * 160) if t < 8 else (12, 13, 0)
        for c in range(5):
            A(f"ds_read_b64_tr_b16 {v(b+4*c,2)}, v{a0} offset:{off + 32*c}")
            A(f"ds_read_b64_tr_b16 {v(b+4*c+2,2)}, v{a1} offset:{off + 32*c}")
    stamp(A, 2)
    A("s_waitcnt vmcnt(0)")
    A("s_barrier")
    stamp(A, 3)
    if DIAG: A("s_waitcnt lgkmcnt(0)")
    reads(0)
    for t in range(9):
        b = FB + 20 * (t % 2)
        for c in range(5):
            A(f"s_waitcnt lgkmcnt({8 if t < 8 else 8 - 2*c})" if not (t < 8) else "s_waitcnt lgkmcnt(8)")
            cc = "0" if t == 0 else v(DD+4*c, 4)
            A(f"v_mfma_f32_16x16x32_bf16 {v(DD+4*c,4)}, {v(b+4*c,4)}, {v(OB+4*t,4)}, {cc}")
            if t < 8:
                nb = FB + 20 * ((t+1) % 2)
                a0, a1, off = (10, 11, (t+1) * 36 * 160) if t + 1 < 8 else (12, 13, 0)
                A(f"ds_read_b64_tr_b16 {v(nb+4*c,2)}, v{a0} offset:{off + 32*c}")
                A(f"ds_read_b64_tr_b16 {v(nb+4*c+2,2)}, v{a1} offset:{off + 32*c}")
    stamp(A, 4)
    A("v_lshlrev_b32 v4, 4, v1")
    A("s_mul_i32 s43, s36, 5120")
    A(f"s_add_u32 s43, s43, {RB}")
    A("v_add_u32 v4, s43, v4")
    A("s_nop 7")
    A("s_cmp_eq_u32 s37, 0")
    A("s_cbranch_scc1 L_o_fin")
    for c in range(5):
        A(f"ds_write_b128 v4, {v(DD+4*c,4)} offset:{1024*c}")
    A("s_waitcnt lgkmcnt(0)")
    A("s_barrier")
    A("s_endpgm")
    A("L_o_fin:")
    A("s_barrier")
    stamp(A, 5)
    if DIAG: A("s_waitcnt lgkmcnt(0)")
    for c in range(5):
        A(f"ds_read_b128 {v(FB+4*c,4)}, v4 offset:{1024*c}")
    A("v_and_b32 v6, 15, v1")
    A("s_lshl_b32 s43, s29, 6")
    A("s_lshl_b32 s44, s36, 4")
    A("s_add_u32 s43, s43, s44")
    A("v_add_u32 v6, s43, v6")
    A(f"v_mul_u32_u24 v6, {ROWB}, v6")
    A("v_lshl_add_u32 v6, v5, 3, v6")
    A("v_add_u32 v6, s31, v6")
    for c in range(5):
        A(f"s_waitcnt lgkmcnt({4-c})")
        for i in range(4):
            A(f"v_add_f32 v{DD+4*c+i}, v{DD+4*c+i}, v{FB+4*c+i}")
        A(f"v_cvt_pk_bf16_f32 v{DD+4*c}, v{DD+4*c}, v{DD+4*c+1}")
        A(f"v_cvt_pk_bf16_f32 v{DD+4*c+1}, v{DD+4*c+2}, v{DD+4*c+3}")
        if c == 4:
            A("s_mov_b32 exec_hi, 0")
        A(f"buffer_store_dwordx2 {v(DD+4*c,2)}, v6, s[16:19], 0 offen offset:{32*c}")
    if DIAG: A("s_waitcnt vmcnt(0)")
    stamp(A, 6); stamp(A, 9, True); stamp(A, 7)
    stamp_flush(A, 10, 8, 2, 28)
    A("L_o_end:")
    A("s_endpgm")
    kernel_desc(A, name, 112, 100 if DIAG else 48)
    return f"; @launch kernel={name} grid=(256,1,1) block=(512,1,1) lds={RB + 20480}"

A('.amdgcn_target "amdgcn-amd-amdhsa--gfx950"')
L = [kv_kernel(A), attn_kernel(A), out_kernel(A)]
out = "\n".join(hdr) + "\n" + "\n".join(L) + "\n" + A.text()
path = sys.argv[1] if len(sys.argv) > 1 and sys.argv[1] != 'diag' else 'standalone__grouped_kv_mqa__prompt.s'
open(path, 'w').write(out)
print("wrote", path, len(out))
```

```python
import sys, struct, math
sys.path.insert(0, 'work')
from gen_common import *

OPT = dict(a.split('=') for a in sys.argv[1:] if '=' in a)
def opt(k, d): return type(d)(OPT.get(k, d))
S_, D_, H_, DH = 2048, 576, 32, 18
ROWB = D_ * 2
TILE_B = 2368
KV_B = 64 * TILE_B
HALF_B = 32 * TILE_B
FLAG_OFF, FLAG2_OFF, OIMG_OFF = 0x30000, 0x34000, 0x40000
OHALF_B = 36864
OIMG_B = 64 * OHALF_B
CSCALE = (DH ** -0.5) * math.log2(math.e)
def f32bits(x): return struct.unpack('<I', struct.pack('<f', x))[0]
def nib(tab): return sum(t << (4 * i) for i, t in enumerate(tab))
DIAG = 'diag' in sys.argv
ECHO = OPT.get('echo')
SC = " sc1"
NAME = "standalone__grouped_kv_mqa__prompt_kernel"
SPIN = 0x20000

A = Asm()
VST = 120
STAMPS = []
ECHOREG = {'entry': 69, 'loop0': 93, 'loop1': 79, 'barA': 78}
def stamp(name, real=False):
    if ECHO and name in ECHOREG:
        A("s_memrealtime s[80:81]")
        A("s_waitcnt lgkmcnt(0)")
        A(f"s_mov_b32 s{ECHOREG[name]}, s80")
    if DIAG:
        if name in STAMPS: i = STAMPS.index(name)
        else: i = len(STAMPS); STAMPS.append(name)
        assert i < 27
        A(f"s_mem{'real' if real else ''}time s[80:81]")
        A("s_waitcnt lgkmcnt(0)")
        A(f"v_writelane_b32 v{VST}, s80, {i}")

SX, SWQ, SWKV, SKV, SOI, SWO, SOUT, SDBG = 20, 24, 28, 32, 36, 40, 44, 48
sW, sTB, sHG, sQT, sKIND, sHL, sP = 52, 53, 54, 55, 56, 57, 58
t0, t1, t2, t3, t4, t5 = 59, 60, 61, 62, 63, 64
sKVO, sCNT, sOW, sOR = 65, 66, 67, 68
sXM, sXS, sNL, sNH, sFAST, sPAR = 70, 71, 72, 73, 74, 75
sM = 76
sF2, sWOM, sWOS, sHALF, sOLM, sOLR, sOUT, sKH, sW1 = 84, 85, 86, 87, 88, 89, 90, 91, 92
sSC = 94
sGW, sGX = [96, 97, 98], [99, 100, 101]
WKVB, XB, QXB = 29184, 87552, 153088
GPOS = [0, 58368, 29184]
PXB = 104448
FASTB = QXB + 10240
PFLG = FASTB + 32
CMB = 46336
def slot(sg): return (sg + 8) % 9
NPRE = 7
vXO, vWQ, vWK, vL16 = 3, 7, 9, 15
vN, PF = 118, 112
AK, AV, AR, IDX, vWO = 124, 125, 126, 127, 128
vQW, vQWr, vQR, vQRr, vFA, vCO, vCP = 129, 130, 131, 132, 133, 134, 135
WA = [136, 137, 138, 139]
vRD, vOA, vOM, vOR, vPA, vFO, vFP, vPW = 140, 141, 142, 143, 144, 145, 146, 147
VF1, VF0, KF, KR = 148, 152, 156, 160
VF1b, VF0b, KFb, KRb = 164, 168, 172, 176
vF2, vT = 178, 179
QM = [32, 40]; QR = 36; QX2 = 46
SS = [48, 64, 80, 96]
OO = [180, 196]
vPO, vF2D, vPR = 212, 216, 218
NVGPR = 256
T0, T1, T2, T3 = 4, 5, 6, 8
KSPLIT = opt('ksplit', 0)
MERGEB = opt('mergeb', 0)
TAIL2 = opt('tail2', 1)

def W(n): A(f"s_waitcnt lgkmcnt({n})")
def cpf():
    A("s_getpc_b64 s[78:79]")
    A("L_pc:")
    A(f"s_sub_u32 s78, s78, L_pc-{NAME}")
    A("s_subb_u32 s79, s79, 0")
    A("v_lshlrev_b32 v4, 7, v1")
    A("v_mov_b32 v5, s79")
    A("v_add_co_u32 v4, vcc, s78, v4")
    A("s_nop 1")
    A("v_addc_co_u32 v5, vcc, 0, v5, vcc")
    for k in range(3):
        A(f"v_cmp_gt_u32 vcc, (L_codeend-{NAME}-{8192*k}+127)/128, v1")
        A("s_and_b64 exec, exec, vcc")
        A(f"global_load_dword v{16+k}, v[4:5], off")
        A("s_mov_b64 exec, -1")
        if k < 2:
            A("v_add_co_u32 v4, vcc, 0x2000, v4")
            A("s_nop 1")
            A("v_addc_co_u32 v5, vcc, 0, v5, vcc")
def dma_x(sg, vreg, extra=0, sreg=None):
    A(f"s_add_u32 m0, s{sXM}, {slot(sg) * 8192 - (sg % 3) * 128 + extra}")
    A(f"s_add_u32 s{t0}, s{sXS if sreg is None else sreg}, s{sGX[sg // 3]}")
    A(f"buffer_load_dwordx4 v{vreg}, {s(SX,4)}, s{t0} offen offset:{(sg % 3)*128} lds")
def wq_group(q): A(f"s_add_u32 s{t5}, s{t3}, s{sGW[q]}")
def dma_wq(i):
    A(f"s_add_u32 m0, s{t2}, {GPOS[i // 32] + (i % 32) * 912}")
    A(f"s_add_u32 s{t0}, s{t5}, {(i % 32) * 6912}")
    A(f"buffer_load_dwordx4 v{vWQ}, {s(SWQ,4)}, s{t0} offen lds")
def wq_mask(on): A(f"s_mov_b32 exec_hi, {(1 << 25) - 1:#x}" if on else "s_mov_b32 exec_hi, -1")

def setup():
    A(f"s_lshr_b32 s{sKH}, s{sW}, 2")
    A(f"s_and_b32 s{sPAR}, s{sHL}, 1")
    A(f"s_mul_i32 s{sHALF}, s{sP}, {HALF_B}")
    A("v_and_b32 v4, 31, v1")
    A("v_lshrrev_b32 v5, 1, v4")
    A("v_and_b32 v5, 7, v5")
    A("v_lshrrev_b32 v6, 5, v1")
    if KSPLIT:
        A(f"s_lshl_b32 s{t0}, s{sP}, 1")
        A(f"v_add_u32 v6, s{t0}, v6")
        A("v_xor_b32 v8, v6, v5")
        A("v_lshlrev_b32 v8, 4, v8")
        A("v_lshl_add_u32 v8, v4, 7, v8")
        A(f"s_lshl_b32 s{t0}, s{sP}, 12")
        A(f"s_add_u32 s{t0}, s{t0}, {XB + 65536}")
        A(f"v_add_u32 v10, s{t0}, v8")
        A("v_xor_b32 v11, 64, v10")
        A(f"s_lshl_b32 s{t0}, s{sP}, 13")
        A(f"s_sub_u32 s{t0}, 0x1000, s{t0}")
        A(f"v_add_u32 v12, s{t0}, v10")
        A(f"v_add_u32 v13, s{t0}, v11")
        A("v_lshrrev_b32 v6, 5, v1")
    else:
        A(f"s_lshl_b32 s{t0}, s{sP}, 5")
        A(f"v_add_u32 v4, s{t0}, v4")
        for u in range(4):
            A(f"v_add_u32 v8, {2*u}, v6")
            A("v_xor_b32 v8, v8, v5")
            A("v_lshlrev_b32 v8, 4, v8")
            A(f"v_lshl_add_u32 v{10+u}, v4, 7, v8")
            A(f"v_add_u32 v{10+u}, {XB + 65536}, v{10+u}")
    A("v_mul_u32_u24 v4, 1216, v6")
    A("v_bfe_u32 v5, v1, 3, 1")
    A("v_mul_u32_u24 v5, 304, v5")
    A("v_add_u32 v4, v4, v5")
    A("v_bfe_u32 v5, v1, 2, 1")
    A("v_mul_u32_u24 v5, 144, v5")
    A("v_add_u32 v4, v4, v5")
    A("v_and_b32 v5, 3, v1")
    A("v_bfe_u32 v8, v1, 4, 1")
    A("v_lshl_add_u32 v5, v8, 2, v5")
    A("v_lshlrev_b32 v5, 2, v5")
    A(f"s_mov_b32 s{t0}, {nib([0,2,1,3,4,0,0,0]):#x}")
    A(f"s_mov_b32 s{t1}, {nib([0,2,1,3,2,4,4,0]):#x}")
    A(f"s_cmp_eq_u32 s{sPAR}, 1")
    A(f"s_cselect_b32 s{t0}, s{t1}, s{t0}")
    A(f"s_mul_i32 s{t1}, s{sHL}, 36")
    A(f"s_and_b32 s{t1}, s{t1}, 0xf8")
    if KSPLIT:
        A(f"s_mul_i32 s{t4}, s{sP}, 2432")
        A(f"s_add_u32 s{t1}, s{t1}, s{t4}")
    A(f"v_lshrrev_b32 v5, v5, s{t0}")
    A("v_and_b32 v5, 15, v5")
    A("v_lshl_add_u32 v14, v5, 3, v4")
    A(f"v_add_u32 v14, s{t1}, v14")
    A(f"v_add_u32 v8, 0x8000, v14")
    A(f"s_mul_i32 s{sKVO}, s{sP}, 74")
    A(f"s_add_u32 s{sKVO}, s{sKVO}, s{sHL}")
    A(f"s_lshl_b32 s{sKVO}, s{sKVO}, 10")
    A(f"s_mov_b32 s{sSC}, {f32bits(CSCALE):#x}")
    A(f"s_mov_b32 s{sSC+1}, {f32bits(CSCALE):#x}")
    A("v_lshrrev_b32 v4, 1, v1")
    A("v_lshlrev_b32 v4, 7, v4")
    A("v_and_b32 v5, 1, v1")
    A(f"v_lshl_add_u32 v{vPA}, v5, 4, v4")
    A(f"v_add_u32 v{vPA}, {FLAG_OFF}, v{vPA}")
    A("v_and_b32 v4, 31, v1")
    A(f"v_lshlrev_b32 v{AR}, 2, v4")
    A("v_lshrrev_b32 v5, 2, v4")
    A("v_lshlrev_b32 v5, 2, v5")
    A(f"s_mov_b32 s{t0}, {nib([0,3,1,2,4,0,0,0]):#x}")
    A(f"v_lshrrev_b32 v5, v5, s{t0}")
    A("v_and_b32 v5, 15, v5")
    A("v_and_b32 v6, 3, v4")
    A("v_lshl_add_u32 v5, v5, 2, v6")
    A("v_lshrrev_b32 v6, 5, v1")
    A("v_mul_u32_u24 v2, 304, v6")
    A(f"v_lshl_add_u32 v{AV}, v5, 4, v2")
    A("v_mov_b32 v2, 0x80000")
    A("v_cmp_gt_u32 vcc, 19, v4")
    A(f"v_mov_b32 v{IDX}, 0xdddd")
    A(f"v_mov_b32 v{AK}, v{vL16}")
    A(f"v_cndmask_b32 v{AV}, v2, v{AV}, vcc")
    A(f"v_mov_b32 v{KR+1}, 0x3f803f80")
    A(f"v_mov_b32 v{KRb+1}, 0x3f803f80")
    A("v_mov_b32 v4, 0")
    A("v_mov_b32 v5, 0")
    for i in range(0, 4, 2): A(f"v_pk_mov_b32 {v(VF1b+i,2)}, v[4:5], v[4:5]")
    for i in range(0, 32, 2): A(f"v_pk_mov_b32 {v(OO[0]+i,2)}, v[4:5], v[4:5]")
    A(f"s_mul_i32 s{t1}, s{sW}, 1280")
    A(f"s_add_u32 s{t1}, s{t1}, {QXB}")
    A(f"v_add_u32 v{vQW}, s{t1}, v{vL16}")
    A(f"v_lshl_add_u32 v{vQWr}, v1, 3, s{t1}")
    A(f"s_and_b32 s{t1}, s{sW}, 6")
    A(f"s_mul_i32 s{t1}, s{t1}, 1280")
    A(f"s_add_u32 s{t1}, s{t1}, {QXB}")
    A(f"v_add_u32 v{vQR}, s{t1}, v{vL16}")
    A(f"v_lshl_add_u32 v{vQRr}, v1, 3, s{t1}")
    A(f"v_lshl_add_u32 v{vQRr}, v6, 10, v{vQRr}")
    A(f"v_mov_b32 v{vFA}, {FASTB}")
    A(f"s_lshl_b32 s{t0}, s{sW}, 2")
    A(f"s_add_u32 s{t0}, s{t0}, {PFLG}")
    A(f"v_mov_b32 v{vFO}, s{t0}")
    A(f"v_xor_b32 v{vFP}, 4, v{vFO}")
    A(f"ds_write2_b32 v{vFO}, v4, v4 offset0:0 offset1:8")
    A(f"s_mul_i32 s{t0}, s{sW}, 2560")
    A(f"s_add_u32 s{t0}, s{t0}, {PXB}")
    A(f"v_add_u32 v{vPW}, s{t0}, v{vL16}")
    A(f"s_xor_b32 s{t0}, s{sW}, 1")
    A(f"s_mul_i32 s{t0}, s{t0}, 2560")
    A(f"s_add_u32 s{t0}, s{t0}, {PXB}")
    A(f"v_add_u32 v{vPR}, s{t0}, v{vL16}")
    A(f"s_lshl_b32 s{t0}, s{sTB}, 1")
    A(f"s_add_u32 s{t0}, s{t0}, s{sP}")
    A(f"s_mul_i32 s{t0}, s{t0}, {OHALF_B}")
    A(f"s_lshl_b32 s{t1}, s{sHG}, 2")
    A(f"s_add_u32 s{t1}, s{t1}, s{sHL}")
    A(f"s_lshl_b32 s{t1}, s{t1}, 10")
    A(f"s_add_u32 s{sOW}, s{t0}, s{t1}")
    A(f"s_and_b32 s{t1}, s{sHG}, 1")
    A(f"s_lshl_b32 s{t1}, s{t1}, 1")
    A(f"s_xor_b32 s{t1}, s{t1}, s{sHL}")
    A(f"s_lshl_b32 s{t1}, s{t1}, 2")
    A(f"s_lshl_b32 s{t4}, s{sHG}, 9")
    A(f"s_add_u32 s{t1}, s{t1}, s{t4}")
    A(f"s_add_u32 s{t1}, s{t1}, s{t0}")
    A(f"s_add_u32 s{sOR}, s{t1}, 32768")
    A(f"s_and_b32 s{t4}, s{sW}, 3")
    A(f"s_mul_i32 s{sWOM}, s{sW}, 960")
    A(f"s_mul_i32 s{sWOS}, s{sW}, 6912")
    for i in range(4): A(f"v_mov_b32 v{vPO+i}, -1")
    A(f"v_and_b32 v{vF2}, 7, v1")
    A(f"v_lshlrev_b32 v{vF2}, 3, v{vF2}")
    A(f"s_lshl_b32 s{sF2}, s{sTB}, 7")
    A(f"s_add_u32 s{sF2}, s{sF2}, {FLAG2_OFF}")
    mul, sh = magic_div(10, 64)
    A(f"v_mul_u32_u24 v4, {mul}, v1")
    A(f"v_lshrrev_b32 v4, {sh}, v4")
    A("v_mul_u32_u24 v5, 10, v4")
    A("v_sub_u32 v5, v1, v5")
    A("v_min_u32 v5, 8, v5")
    A(f"v_mul_u32_u24 v{vWO}, {ROWB}, v4")
    A(f"v_lshl_add_u32 v{vWO}, v5, 4, v{vWO}")
    A(f"v_add_u32 v{vWO}, s{sOUT}, v{vWO}")
    A(f"s_mul_i32 s{t0}, s{sHL}, 2560")
    A(f"s_add_u32 s{t0}, s{t0}, {CMB}")
    A(f"s_add_u32 s{t1}, s{sHALF}, s{t0}")
    A(f"v_add_u32 v{vCO}, s{t1}, v{vL16}")
    A(f"s_sub_u32 s{t1}, {HALF_B}, s{sHALF}")
    A(f"s_add_u32 s{t1}, s{t1}, s{t0}")
    A(f"v_add_u32 v{vCP}, s{t1}, v{vL16}")
    A("v_and_b32 v6, 15, v1")
    A("v_lshrrev_b32 v5, 4, v1")
    A(f"s_lshl_b32 s{t0}, s{sP}, 4")
    A(f"v_add_u32 v2, s{t0}, v6")
    A("v_lshlrev_b32 v2, 4, v2")
    A(f"v_lshl_add_u32 v{vOR}, v5, 9, v2")
    A(f"v_lshrrev_b32 v{vT}, 5, v1")
    A("v_bfe_u32 v4, v1, 4, 1")
    A(f"v_lshl_add_u32 v{vOM}, v{vT}, 10, v2")
    A(f"v_lshl_add_u32 v{vOM}, v4, 9, v{vOM}")
    A(f"s_lshl_b32 s{t0}, s{sTB}, 1")
    A(f"s_add_u32 s{t0}, s{t0}, s{sPAR}")
    A(f"s_mul_i32 s{t0}, s{t0}, {OHALF_B}")
    A(f"s_lshl_b32 s{t1}, s{sKH}, 14")
    A(f"s_add_u32 s{sOLM}, s{t0}, s{t1}")
    A(f"s_lshl_b32 s{t1}, s{sKH}, 11")
    A(f"s_add_u32 s{sOLR}, s{t0}, s{t1}")
    A(f"s_add_u32 s{sOLR}, s{sOLR}, 32768")
    A(f"s_lshl_b32 s{t0}, s{sTB}, 6")
    A(f"s_lshl_b32 s{t1}, s{t4}, 4")
    A(f"s_add_u32 s{t0}, s{t0}, s{t1}")
    A(f"v_add_u32 v6, s{t0}, v6")
    A(f"v_mul_u32_u24 v6, {ROWB}, v6")
    A(f"v_lshl_add_u32 v{vOA}, v5, 3, v6")
    A(f"s_mul_i32 s{t0}, s{sPAR}, {HALF_B}")
    A(f"s_mul_i32 s{t1}, s{sP}, 5120")
    A(f"s_add_u32 s{t0}, s{t0}, s{t1}")
    A(f"s_add_u32 s{t0}, s{t0}, {24*TILE_B}")
    A(f"v_add_u32 v{vRD}, s{t0}, v{vL16}")
    A("v_bfe_u32 v2, v1, 2, 2")
    A(f"v_mul_u32_u24 v6, 18, v{vT}")
    A("v_add_u32 v6, v6, v2")
    A(f"v_mul_u32_u24 v{WA[0]}, 12, v4")
    A(f"v_lshl_add_u32 v{WA[1]}, v4, 2, 4")
    A(f"v_add_u32 v{WA[0]}, v6, v{WA[0]}")
    A(f"v_add_u32 v{WA[1]}, v6, v{WA[1]}")
    A("v_mul_u32_u24 v6, 72, v5")
    A(f"v_and_b32 v{vT}, 1, v2")
    A(f"v_add3_u32 v6, v6, v{vT}, 16")
    A("v_lshrrev_b32 v2, 1, v2")
    A("v_lshl_add_u32 v2, v4, 1, v2")
    A(f"v_xor_b32 v{vT}, 2, v2")
    A(f"v_mad_u32_u24 v{WA[2]}, v2, 18, v6")
    A(f"v_mad_u32_u24 v{WA[3]}, v{vT}, 18, v6")
    A("v_and_b32 v2, 3, v1")
    A("v_lshlrev_b32 v2, 3, v2")
    A(f"s_mul_i32 s{t0}, s{sKH}, {HALF_B}")
    A(f"v_add_u32 v2, s{t0}, v2")
    A(f"s_movk_i32 s{t0}, 160")
    for i in range(4): A(f"v_mad_u32_u24 v{WA[i]}, v{WA[i]}, s{t0}, v2")

A('.amdgcn_target "amdgcn-amd-amdhsa--gfx950"')
kernel_begin(A, NAME)
A("s_cmp_ge_u32 s2, 256")
A("s_cbranch_scc1 L_end")
if DIAG: A(f"v_mov_b32 v{VST}, 0")
stamp('entry'); stamp('rt0', True)
A("s_load_dwordx16 s[4:19], s[0:1], 0")
A("v_and_b32 v1, 63, v0")
A("v_lshrrev_b32 v2, 6, v0")
A(f"s_and_b32 s{sTB}, s2, 7")
A(f"v_readfirstlane_b32 s{sW}, v2")
A(f"s_lshr_b32 s{t1}, s2, 6")
A(f"s_lshl_b32 s{t0}, s{t1}, 3")
A(f"s_cmp_lg_u32 s{sW}, {opt('cpfw', 7)}")
A("s_cbranch_scc1 L_nocpf")
cpf()
A("L_nocpf:")
A(f"s_add_u32 s{sTB}, s{sTB}, s{t0}")
A(f"s_lshr_b32 s{sHG}, s2, 3")
A(f"s_and_b32 s{sHG}, s{sHG}, 7")
A(f"s_and_b32 s{sQT}, s{sHG}, 3")
A(f"s_lshr_b32 s{sKIND}, s{sHG}, 2")
A(f"s_add_u32 s{t1}, s{t1}, s{sHG}")
A(f"s_mul_i32 s{t2}, s{t1}, 11")
A(f"s_lshr_b32 s{t2}, s{t2}, 5")
A(f"s_mul_i32 s{t2}, s{t2}, 3")
A(f"s_sub_u32 s{t1}, s{t1}, s{t2}")
assert all((n * 11 >> 5) == n // 3 for n in range(11))
for q in range(3):
    A(f"s_mul_i32 s{sGW[q]}, s{t1}, {192*ROWB}")
    A(f"s_mul_i32 s{sGX[q]}, s{t1}, 384")
    if q < 2:
        A(f"s_add_u32 s{t1}, s{t1}, 1")
        A(f"s_cmp_eq_u32 s{t1}, 3")
        A(f"s_cselect_b32 s{t1}, 0, s{t1}")
A("v_lshrrev_b32 v4, 3, v1")
A("v_lshrrev_b32 v5, 4, v1")
A("v_and_b32 v6, 7, v1")
A("v_xor_b32 v5, v5, v6")
A("v_lshlrev_b32 v5, 4, v5")
A(f"s_lshl_b32 s{t0}, s{sTB}, 6")
A(f"v_add_u32 v4, s{t0}, v4")
A(f"v_mul_u32_u24 v{vXO}, {ROWB}, v4")
A(f"v_add_u32 v{vXO}, v{vXO}, v5")
A(f"v_lshlrev_b32 v{vL16}, 4, v1")
A(f"s_lshr_b32 s{sHL}, s{sW}, 1")
A(f"s_and_b32 s{sP}, s{sW}, 1")
A(f"s_sub_u32 s{sW1}, s{sW}, 1")
A(f"s_cmp_eq_u32 s{sW}, 0")
def late_common():
    mul, sh = magic_div(19, 64)
    A(f"v_mul_u32_u24 v4, {mul}, v1")
    A(f"v_lshrrev_b32 v4, {sh}, v4")
    A("v_mul_u32_u24 v5, 19, v4")
    A("v_sub_u32 v5, v1, v5")
    A("v_min_u32 v5, 17, v5")
    A("v_cmp_le_u32 vcc, 9, v5")
    A("v_lshlrev_b32 v4, 1, v4")
    A("v_subrev_u32 v6, 9, v5")
    A("v_cndmask_b32 v5, v5, v6, vcc")
    A("v_addc_co_u32 v4, vcc, 0, v4, vcc")
    A(f"v_mul_u32_u24 v{vWQ}, {ROWB}, v4")
    A(f"v_lshl_add_u32 v{vWQ}, v5, 4, v{vWQ}")
    A(f"s_mul_i32 s{sOUT}, s{sHG}, 144")
    A(f"v_add_u32 v{vWQ}, s{sOUT}, v{vWQ}")
def late_srds():
    srd(A, SWQ, 6, D_ * ROWB)
    srd(A, SKV, 18, 0x40000)
    A(f"s_add_u32 s{SOI}, s18, {OIMG_OFF}")
    A(f"s_addc_u32 s{SOI+1}, s19, 0")
    A(f"s_mov_b32 s{SOI+2}, {OIMG_B}")
    A(f"s_mov_b32 s{SOI+3}, 0x00020000")
    srd(A, SWO, 12, D_ * ROWB)
    srd(A, SOUT, 14, S_ * ROWB)
W0FIRST = opt('w0first', 1)
def emit_bulk():
    A("L_bulk:")
    A(f"s_lshl_b32 s{t0}, s{sQT}, 1")
    A(f"s_add_u32 s{t0}, s{t0}, s{sW}")
    A(f"s_add_u32 s{t0}, s{t0}, 1")
    A(f"s_and_b32 s{t0}, s{t0}, 7")
    A(f"s_lshl_b32 s{sXM}, s{t0}, 10")
    A(f"s_add_u32 s{sXM}, s{sXM}, {XB}")
    A(f"s_mul_i32 s{sXS}, s{t0}, 9216")
    A(f"s_and_b32 s{t0}, s{t0}, 1")
    A(f"s_lshl_b32 s{t0}, s{t0}, 6")
    A(f"v_xor_b32 v{vXO}, s{t0}, v{vXO}")
    late_common()
    A(f"v_mov_b32 v{vN}, 0")
    A(f"v_mov_b32 v{vN+1}, 0")
    A(f"s_mul_i32 s{t2}, s{sW1}, {4*912}")
    A(f"s_mul_i32 s{t3}, s{sW1}, {4*6912}")
    A("s_waitcnt lgkmcnt(0)")
    srd(A, SX, 4, S_ * ROWB)
    srd(A, SDBG, 16, 256)
    late_srds()
    A("L_setup:")
    setup()
    stamp('setup')
    A(f"s_cmp_eq_u32 s{sW}, 0")
    A("s_cbranch_scc1 L_flag")
    A("L_issue:")
    for q in range(2):
        if opt('gprio', 1): A(f"s_setprio {2 if q == 0 else 0}")
        wq_group(q)
        A(f"s_cmp_eq_u32 s{sW}, 7")
        A(f"s_cbranch_scc1 L_b7_{q}")
        for sg in range(3*q, 3*q + 3): dma_x(sg, vXO)
        wq_mask(1)
        A(f"s_branch L_bc_{q}")
        A(f"L_b7_{q}:")
        wq_mask(1)
        for j in range(4, 8): dma_wq(32*q + j)
        A(f"L_bc_{q}:")
        for j in range(4): dma_wq(32*q + j)
        wq_mask(0)
    A(f"s_cmp_eq_u32 s{sW}, 7")
    A("s_cbranch_scc1 L_nox2")
    for sg in range(6, 9): dma_x(sg, vXO)
    A("L_nox2:")
    stamp('issued')
    A("L_wait:")
    A(f"s_cmp_eq_u32 s{sW}, 7")
    A("s_cbranch_scc1 L_x2w8")
    A(f"s_waitcnt vmcnt({3 if MERGEB else 10})")
    A("s_branch L_join")
    A("L_x2w8:")
    A(f"s_waitcnt vmcnt({0 if MERGEB else 8})")
    A("s_branch L_join")
def emit_w0():
    A("L_w0:")
    A("s_setprio 3")
    A("s_memrealtime s[78:79]")
    mul, sh = magic_div(3, 64)
    A(f"v_mul_u32_u24 v4, {mul}, v1")
    A(f"v_lshrrev_b32 v4, {sh}, v4")
    A("v_mul_u32_u24 v5, 3, v4")
    A("v_sub_u32 v5, v1, v5")
    A(f"v_mul_u32_u24 v{vWK}, 36, v4")
    A(f"v_lshl_add_u32 v{vWK}, v5, 4, v{vWK}")
    A(f"v_xor_b32 v8, 64, v{vXO}")
    A(f"s_lshl_b32 s{sXM}, s{sQT}, 11")
    A(f"s_add_u32 s{sXM}, s{sXM}, {XB}")
    A(f"s_mul_i32 s{sXS}, s{sQT}, {2*9216}")
    A(f"s_add_u32 s{t1}, s{sXS}, 9216")
    A("v_mov_b32 v6, 0")
    A("s_waitcnt lgkmcnt(0)")
    stamp('karg')
    A(f"s_cmp_eq_u32 s{sKIND}, 1")
    A(f"s_cselect_b32 s{SWKV}, s10, s8")
    A(f"s_cselect_b32 s{SWKV+1}, s11, s9")
    A(f"s_mov_b32 s{SWKV+2}, {D_*36}")
    A(f"s_mov_b32 s{SWKV+3}, 0x00020000")
    srd(A, SX, 4, S_ * ROWB)
    srd(A, SDBG, 16, 256)
    A("s_cmp_lg_u32 s2, 0")
    A("s_cbranch_scc1 L_nononce")
    A("s_or_b32 s78, s78, 1")
    A("v_mov_b32 v4, s78")
    A("v_mov_b32 v5, s79")
    A("s_mov_b64 exec, 1")
    A(f"buffer_store_dwordx2 v[4:5], v6, {s(SDBG,4)}, 0 offen{SC}")
    A("s_mov_b64 exec, -1")
    A("L_nononce:")
    for wi in range(28):
        A(f"s_mov_b32 m0, {WKVB + 1008 * wi}")
        A(f"s_mov_b32 s{t0}, {756 * wi}")
        A(f"buffer_load_dwordx4 v{vWK}, {s(SWKV,4)}, s{t0} offen lds")
        if wi == 13:
            for sg in range(3): dma_x(sg, vXO); dma_x(sg, 8, 1024, t1)
    for sg in range(3, 9):
        dma_x(sg, vXO); dma_x(sg, 8, 1024, t1)
    A(f"buffer_load_dwordx2 v[{vN}:{vN+1}], v6, {s(SDBG,4)}, 0 offen{SC}")
    stamp('call')
    late_srds()
    late_common()
    A("v_and_b32 v4, 15, v1")
    A(f"s_lshl_b32 s{t0}, s{sQT}, 4")
    A(f"v_add_u32 v4, s{t0}, v4")
    A("v_lshrrev_b32 v5, 1, v4")
    A("v_and_b32 v5, 7, v5")
    A("v_lshrrev_b32 v6, 4, v1")
    A("v_xor_b32 v8, v6, v5")
    A("v_lshlrev_b32 v8, 4, v8")
    A("v_lshl_add_u32 v10, v4, 7, v8")
    A(f"v_add_u32 v10, {XB}, v10")
    A("v_xor_b32 v11, 64, v10")
    A("v_bfe_u32 v4, v1, 2, 2")
    A("v_lshl_add_u32 v4, v6, 3, v4")
    A("v_mul_u32_u24 v4, 48, v4")
    A("v_and_b32 v5, 3, v1")
    A("v_lshl_add_u32 v12, v5, 3, v4")
    A(f"v_add_u32 v12, {WKVB}, v12")
    for q in range(3):
        A(f"s_mul_i32 s{t0}, s{sGX[q]}, 24")
        A(f"v_add_u32 v{121+q}, s{t0}, v12")
    A("v_add_u32 v13, 0x10000, v10")
    A("v_add_u32 v14, 0x10000, v11")
    A(f"s_lshl_b32 s{t0}, s{sTB}, 1")
    A(f"s_lshr_b32 s{t1}, s{sQT}, 1")
    A(f"s_add_u32 s{t0}, s{t0}, s{t1}")
    A(f"s_mul_i32 s{t0}, s{t0}, {TILE_B}")
    A(f"s_and_b32 s{t1}, s{sQT}, 1")
    A("v_and_b32 v4, 15, v1")
    A("v_lshrrev_b32 v5, 5, v1")
    A("v_bfe_u32 v6, v1, 4, 1")
    KD = [20, 24]; KFB = 32
    def kv_reads(t):
        b = KFB + 12 * (t % 3)
        sg = t >> 1
        if t % 2 == 0 and (sg == 0 or sg >= 3): A(f"s_waitcnt vmcnt({13 if sg == 0 else 17 - 2*sg})")
        if sg == 0: A(f"ds_read_b128 {v(b,4)}, v{13 + (t & 1)}")
        else: A(f"ds_read_b128 {v(b,4)}, v{10 + (t & 1)} offset:{(sg - 1) * 8192}")
        for ct in range(2):
            for p in range(2):
                A(f"ds_read_b64_tr_b16 {v(b+4+4*ct+2*p,2)}, v{121 + t // 6} offset:{(t % 6)*1536 + p*192 + ct*32}")
    A(f"s_cmp_eq_u32 s{sKIND}, 1")
    A("s_cbranch_scc1 L_vproj")
    for which in ("k", "v"):
        if which == "v": A("L_vproj:")
        if which == "k":
            A(f"s_lshl_b32 s{t2}, s{t1}, 8")
            A(f"s_add_u32 s{t2}, s{t2}, s{t0}")
            A(f"s_lshl_b32 s{t4}, s{t1}, 6")
            A(f"s_add_u32 s{t4}, s{t4}, s{t0}")
            A("v_lshlrev_b32 v5, 9, v5")
            A("v_lshl_add_u32 v5, v4, 4, v5")
            A("v_lshl_add_u32 v16, v6, 3, v5")
            A("v_lshlrev_b32 v17, 2, v4")
        else:
            A(f"s_mul_i32 s{t2}, s{t1}, 608")
            A(f"s_add_u32 s{t2}, s{t2}, s{t0}")
            A("v_mul_u32_u24 v5, 304, v5")
            A("v_lshl_add_u32 v5, v4, 4, v5")
            A("v_lshl_add_u32 v16, v6, 3, v5")
            A("v_cmp_eq_u32 vcc, 2, v4")
            A(f"v_cmp_gt_u32 s[{sM}:{sM+1}], 3, v4")
            A("v_mov_b32 v2, 0x3f803f80")
        kv_reads(0); kv_reads(1)
        for t in range(18):
            if t + 2 < 18:
                kv_reads(t + 2)
                W(10)
            else:
                W(5 * (17 - t))
            b = KFB + 12 * (t % 3)
            for ct in range(2):
                cc = "0" if t == 0 else v(KD[ct], 4)
                if which == "k": A(f"v_mfma_f32_16x16x32_bf16 {v(KD[ct],4)}, {v(b+4+4*ct,4)}, {v(b,4)}, {cc}")
                else: A(f"v_mfma_f32_16x16x32_bf16 {v(KD[ct],4)}, {v(b,4)}, {v(b+4+4*ct,4)}, {cc}")
        A("s_nop 6")
        A(f"v_cvt_pk_bf16_f32 v28, v{KD[0]}, v{KD[0]+1}")
        A(f"v_cvt_pk_bf16_f32 v29, v{KD[0]+2}, v{KD[0]+3}")
        A(f"v_cvt_pk_bf16_f32 v30, v{KD[1]}, v{KD[1]+1}")
        if which == "k":
            A(f"buffer_store_dwordx2 v[28:29], v16, {s(SKV,4)}, s{t2} offen{SC}")
            A("s_mov_b64 exec, 0xffff")
            A(f"buffer_store_dword v30, v17, {s(SKV,4)}, s{t4} offen offset:2240{SC}")
        else:
            A(f"v_cvt_pk_bf16_f32 v31, v{KD[1]+2}, v{KD[1]+3}")
            A(f"buffer_store_dwordx2 v[28:29], v16, {s(SKV,4)}, s{t2} offen offset:1024{SC}")
            A("v_cndmask_b32 v30, v30, v2, vcc")
            A("v_cndmask_b32 v31, v31, v2, vcc")
            A(f"s_mov_b64 exec, s[{sM}:{sM+1}]")
            A(f"buffer_store_dwordx2 v[30:31], v16, {s(SKV,4)}, s{t2} offen offset:{1024+256}{SC}")
        A("s_mov_b64 exec, -1")
        stamp('kvst')
        A("s_branch L_setup")
if W0FIRST:
    A("s_cbranch_scc0 L_bulk")
    emit_w0(); emit_bulk()
else:
    A("s_cbranch_scc1 L_w0")
    emit_bulk(); emit_w0()
A("L_flag:")
A(f"s_getreg_b32 s{t0}, hwreg(HW_REG_XCC_ID, 0, 4)")
A(f"s_mov_b32 s{sCNT}, 0")
A("v_mov_b32 v6, 0")
A("L_nonce:")
A("s_waitcnt vmcnt(0)")
A(f"v_readfirstlane_b32 s{sNL}, v{vN}")
A(f"v_readfirstlane_b32 s{sNH}, v{vN+1}")
A(f"s_add_u32 s{sCNT}, s{sCNT}, 1")
A(f"s_cmp_gt_u32 s{sCNT}, {SPIN}")
A("s_cbranch_scc1 L_gotnonce")
A(f"s_cmp_lg_u32 s{sNL}, 0")
A("s_cbranch_scc1 L_gotnonce")
A(f"buffer_load_dwordx2 v[{vN}:{vN+1}], v6, {s(SDBG,4)}, 0 offen{SC}")
A("s_branch L_nonce")
A("L_gotnonce:")
A(f"s_and_b32 s{sNH}, s{sNH}, 0x0fffffff")
A(f"s_lshl_b32 s{t0}, s{t0}, 28")
A(f"s_or_b32 s{sFAST}, s{sNH}, s{t0}")
A(f"s_lshl_b32 s{t0}, s{sTB}, 8")
A(f"s_lshl_b32 s{t1}, s{sKIND}, 7")
A(f"s_add_u32 s{t0}, s{t0}, s{t1}")
A(f"s_lshl_b32 s{t1}, s{sQT}, 3")
A(f"s_add_u32 s{t0}, s{t0}, s{t1}")
A(f"s_add_u32 s{t0}, s{t0}, {FLAG_OFF}")
A(f"v_mov_b32 v4, s{sNL}")
A(f"v_mov_b32 v5, s{sFAST}")
A("s_mov_b64 exec, 1")
A(f"buffer_store_dwordx2 v[4:5], v6, {s(SKV,4)}, s{t0} offen{SC}")
A("s_mov_b64 exec, -1")
stamp('flag')
A("s_setprio 0")
A("L_join:")
A(f"s_mul_i32 s{t2}, s{sW}, {4*912}")
A(f"s_mul_i32 s{t3}, s{sW}, {4*6912}")
wq_group(2)
A("s_barrier")
stamp('barA')
wq_mask(1)
for j in range(4): dma_wq(64 + j)
wq_mask(0)
def poll_loads():
    A(f"buffer_load_dwordx4 {v(PF,4)}, v{vPA}, {s(SKV,4)}, 0 offen{SC}")
    A(f"s_movk_i32 s{t1}, 0x1000")
    A(f"buffer_load_dwordx4 {v(PF2,4)}, v{vPA}, {s(SKV,4)}, s{t1} offen{SC}")
PF, PF2 = 104, 108
def dma_kv():
    A(f"s_mov_b32 m0, s{sKVO}")
    A(f"s_add_u32 s{t4}, s{sKVO}, 4096")
    A(f"buffer_load_dwordx4 v{vL16}, {s(SKV,4)}, s{sKVO} offen{SC} lds")
    A(f"s_mov_b32 s{sKVO}, s{t4}")
DD, DE, FB = 16, 80, 32
NST = 6 if KSPLIT else 12
NRD = 4 if KSPLIT else 3
NBUF, FSZ = (4, 12) if KSPLIT else (4, 8)
def q_reads(n):
    q, i = divmod(n, NST)
    b = FB + FSZ * (n % NBUF)
    t = 12 * q + (2 * i if KSPLIT else i)
    sg = t >> 2
    if t == 4:
        for u in range(4): A(f"v_subrev_u32 v{10+u}, 0x10000, v{10+u}")
    xo = 0 if sg == 0 else (sg - 1) * 8192
    off = GPOS[q] + (t % 12) * 2432
    wa = 14
    if off >= 32768: wa, off = 8, off - 32768
    A(f"ds_read_b64_tr_b16 {v(b,2)}, v{wa} offset:{off}")
    A(f"ds_read_b64_tr_b16 {v(b+2,2)}, v{wa} offset:{off+608}")
    if KSPLIT:
        A(f"ds_read_b128 {v(b+4,4)}, v{10 + (i & 1)} offset:{xo}")
        A(f"ds_read_b128 {v(b+8,4)}, v{12 + (i & 1)} offset:{xo}")
    else:
        A(f"ds_read_b128 {v(b+4,4)}, v{10 + (t & 3)} offset:{xo}")
POLLAT = opt('pollat', NST // 2)
AHEAD = opt('ahead', 2 if KSPLIT else 3)
for q in range(3):
    if q == 1 and not MERGEB:
        stamp('g0done')
        A(f"s_cmp_lt_u32 s{sW1}, 6")
        A("s_cbranch_scc1 L_w7")
        A("s_waitcnt vmcnt(4)")
        A("s_branch L_w4")
        A("L_w7:")
        A("s_waitcnt vmcnt(7)")
        A("L_w4:")
        A("s_barrier")
    if q == 2:
        stamp('g1done')
        A(f"s_cmp_lg_u32 s{sW}, 0")
        A("s_cbranch_scc1 L_polled")
        A(f"s_mov_b32 s{sCNT}, 0")
        A(f"s_mov_b32 s{t0}, 0x0fffffff")
        if POLLAT >= NST: poll_loads()
        A("L_poll:")
        A("s_waitcnt vmcnt(0)")
        for i in range(0, 8, 2): A(f"v_xor_b32 v{PF+i}, s{sNL}, v{PF+i}")
        A(f"v_or3_b32 v4, v{PF}, v{PF+2}, v{PF+4}")
        for i in range(1, 8, 2): A(f"v_xor_b32 v{PF+i}, s{sFAST}, v{PF+i}")
        A(f"v_or_b32 v5, v{PF+1}, v{PF+3}")
        A(f"v_or_b32 v6, v{PF+5}, v{PF+7}")
        A(f"v_or_b32 v{PF}, v5, v6")
        A(f"v_and_b32 v{PF}, s{t0}, v{PF}")
        A(f"v_or3_b32 v4, v4, v{PF+6}, v{PF}")
        A(f"s_add_u32 s{sCNT}, s{sCNT}, 1")
        A(f"v_cmp_ne_u32 vcc, 0, v4")
        A(f"s_cmp_gt_u32 s{sCNT}, {SPIN}")
        A("s_cbranch_scc1 L_pollok")
        A("s_cbranch_vccz L_pollok")
        A(f"s_sleep {opt('psleep', 2)}")
        poll_loads()
        A("s_branch L_poll")
        A("L_pollok:")
        A(f"v_cmp_eq_u32 vcc, 0, v5")
        A(f"v_cmp_eq_u32 s[{sM}:{sM+1}], 0, v6")
        A(f"s_cmp_ge_u32 s{sTB}, 16")
        A(f"s_cselect_b64 s[{sM}:{sM+1}], s[{sM}:{sM+1}], vcc")
        A(f"s_and_b32 s{t0}, s{sTB}, 15")
        A(f"s_lshl_b32 s{t0}, s{t0}, 2")
        A(f"s_lshr_b64 s[{sM}:{sM+1}], s[{sM}:{sM+1}], s{t0}")
        A(f"s_and_b32 s{t0}, s{sM}, 15")
        A(f"v_mov_b32 v4, s{t0}")
        A(f"v_mov_b32 v5, s{sNL}")
        A(f"v_mov_b32 v6, s{sNH}")
        A(f"ds_write_b96 v{vFA}, v[4:6]")
        if DIAG: A(f"s_mov_b32 s69, s{sCNT}")
        A("L_polled:")
        A("s_waitcnt vmcnt(0) lgkmcnt(0)")
        stamp('g2landed')
        A("s_barrier")
        stamp('barC')
    n0 = NST * q
    nend = n0 + NST + (NST if MERGEB and q == 0 else 0)
    if not (MERGEB and q == 1):
        for n in range(n0, n0 + AHEAD): q_reads(n)
    if q == 2:
        A(f"buffer_load_dwordx4 {v(KF,4)}, v{AK}, {s(SKV,4)}, 0 offen{SC}")
        A(f"buffer_load_dword v{KR}, v{AR}, {s(SKV,4)}, 0 offen offset:2240{SC}")
        for r in range(2): dma_kv()
    for n in range(n0, n0 + NST):
        if n + AHEAD < nend:
            q_reads(n + AHEAD)
            W(NRD * AHEAD)
        else:
            W(NRD * (nend - 1 - n))
        b = FB + FSZ * (n % NBUF)
        if KSPLIT: A(f"v_mfma_f32_32x32x16_bf16 {v(DE,16)}, {v(b,4)}, {v(b+8,4)}, {'0' if n == 0 else v(DE,16)}")
        A(f"v_mfma_f32_32x32x16_bf16 {v(DD,16)}, {v(b,4)}, {v(b+4,4)}, {'0' if n == 0 else v(DD,16)}")
        if q == 2 and n - n0 < NPRE - 2: dma_kv()
        if q == 1 and n - n0 == POLLAT:
            A(f"s_cmp_lg_u32 s{sW}, 0")
            A("s_cbranch_scc1 L_nopoll")
            poll_loads()
            A("L_nopoll:")
stamp('qproj')
def fK(t): return KFb if t & 1 else KF
def fR(t): return KRb if t & 1 else KR
def fV(t, m): return ((VF0b, VF1b) if t & 1 else (VF0, VF1))[m]
def rdK(t): A(f"ds_read_b128 {v(fK(t),4)}, v{AK} offset:{t*TILE_B}")
def rdR(t): A(f"ds_read_b32 v{fR(t)}, v{AR} offset:{t*TILE_B+2240}")
def rdV(t, m): A(f"ds_read_b128 {v(fV(t,m),4)}, v{AV} offset:{t*TILE_B+1024+608*m}")
def M16(sd): A(f"v_mfma_f32_32x32x16_bf16 {v(sd,16)}, {v(KF,4)}, {v(QM[0],4)}, 0")
def M8(sd): A(f"v_mfma_f32_32x32x8_bf16 {v(sd,16)}, {v(KR,2)}, {v(QR,2)}, {v(sd,16)}")
def M2B(sd, t): A(f"v_mfma_f32_32x32x4_2b_bf16 {v(sd,32)}, {v(fR(t),2)}, {v(QX2,2)}, 0")
def M16A(q, sd, t): A(f"v_mfma_f32_32x32x16_bf16 {v(sd,16)}, {v(fK(t),4)}, {v(QM[q],4)}, {v(sd,16)}")
def PV(q, m, sd, t=0): A(f"v_smfmac_f32_32x32x32_bf16 {v(OO[q],16)}, {v(fV(t,m),4)}, {v(sd+8*m,8)}, v{IDX}")
def EX(sd, a, b):
    for i in range(a, b): A(f"v_exp_f32 v{sd+i}, v{sd+i}")
def rowmax(sd, dst, tmp):
    A(f"v_max3_f32 v{dst}, v{sd}, v{sd+1}, v{sd+2}")
    for i in range(3, 15, 2): A(f"v_max3_f32 v{dst}, v{dst}, v{sd+i}, v{sd+i+1}")
    A(f"v_max_f32 v{dst}, v{dst}, v{sd+15}")
    A(f"v_mov_b32 v{tmp}, v{dst}")
    A("s_nop 1")
    A(f"v_permlane32_swap_b32 v{dst}, v{tmp}")
    A("s_nop 0")
    A(f"v_max_f32 v{dst}, v{dst}, v{tmp}")
def pair_wait(tag, flagoff, addr, dst):
    A(f"L_{tag}:")
    A(f"ds_read_b32 v2, v{vFP} offset:{flagoff}")
    for i in range(3): A(f"ds_read_b128 {v(dst+4*i,4)}, v{addr} offset:{1024*i}")
    A(f"s_add_u32 s{sCNT}, s{sCNT}, 1")
    W(3)
    A(f"v_readfirstlane_b32 s{t2}, v2")
    A(f"s_cmp_gt_u32 s{sCNT}, {SPIN * 16}")
    A(f"s_cbranch_scc1 L_{tag}ok")
    A(f"s_cmp_eq_u32 s{t2}, 1")
    A(f"s_cbranch_scc1 L_{tag}ok")
    W(0)
    A("s_sleep 1")
    A(f"s_branch L_{tag}")
    A(f"L_{tag}ok:")
A("v_mov_b32 v36, 0")
A("v_mov_b32 v37, 0")
A("v_mov_b32 v2, 1")
A(f"s_mov_b32 s{sCNT}, 0")
A(f"s_cmp_eq_u32 s{sPAR}, 1")
A("s_nop 5" if KSPLIT else "s_nop 6")
A("s_cbranch_scc1 L_qodd")
for par in range(2):
    if par == 1: A("L_qodd:")
    b = 2 * par
    r = 8 if par == 0 else 14
    if KSPLIT:
        A(f"ds_write_b128 v{vPW}, {v(DE+b,4)}")
        A(f"ds_write_b128 v{vPW}, {v(DE+b+4,4)} offset:1024")
        A("s_mov_b32 exec_hi, 0")
        A(f"ds_write_b128 v{vPW}, {v(DE+(r & ~3),4)} offset:2048")
        A("s_mov_b32 exec_hi, -1")
        W(0)
        A(f"ds_write_b32 v{vFO}, v2 offset:32")
        pair_wait(f"px{par}", 32, vPR, 48)
        W(1)
        for i in range(4): A(f"v_pk_add_f32 {v(DD+b+2*i,2)}, {v(DD+b+2*i,2)}, {v(48+2*i,2)}")
        W(0)
        A(f"v_pk_add_f32 {v(DD+r,2)}, {v(DD+r,2)}, {v(56+(r & 3),2)}")
    for i in range(4): A(f"v_pk_mul_f32 {v(DD+b+2*i,2)}, {v(DD+b+2*i,2)}, s[{sSC}:{sSC+1}]")
    A(f"v_pk_mul_f32 {v(DD+r,2)}, {v(DD+r,2)}, s[{sSC}:{sSC+1}]")
    for i in range(4): A(f"v_cvt_pk_bf16_f32 v{32+i}, v{DD+b+2*i}, v{DD+b+2*i+1}")
    A("s_mov_b32 exec_hi, 0")
    A(f"v_cvt_pk_bf16_f32 v36, v{DD+r}, v{DD+r+1}")
    if par == 0: A("s_branch L_qdone")
A("L_qdone:")
A("s_mov_b32 exec_hi, -1")
A(f"s_waitcnt vmcnt({NPRE})")
M16(SS[1]); M8(SS[1])
A(f"ds_write_b128 v{vQW}, v[32:35]")
for r in (AK, AV, AR): A(f"v_add_u32 v{r}, s{sHALF}, v{r}")
for i in range(8): A(f"v_mov_b32 v{SS[3]+8+i}, 0")
rowmax(SS[1], T0, T1)
A("s_mov_b32 exec_hi, 0")
A(f"v_cvt_pk_bf16_f32 v37, -v{T0}, 0")
A(f"ds_write_b64 v{vQWr}, v[36:37] offset:1024")
A("s_mov_b32 exec_hi, -1")
A(f"s_mov_b32 s{sCNT}, 0")
A(f"s_waitcnt vmcnt(0) lgkmcnt(0)")
A("s_barrier")
stamp('barD')
rdR(0)
A(f"ds_read_b64 {v(QX2,2)}, v{vQRr} offset:1024")
rdK(0)
A(f"ds_read_b128 {v(QM[0],4)}, v{vQR}")
A(f"ds_read_b128 {v(QM[1],4)}, v{vQR} offset:1280")
A(f"ds_read_b96 v[4:6], v{vFA}")
rdR(1); rdV(0, 0); rdV(0, 1); rdK(1); rdV(1, 0)
W(9)
M2B(SS[0], 0)
W(3)
A(f"v_readfirstlane_b32 s{sFAST}, v4")
A(f"v_readfirstlane_b32 s{sNL}, v5")
A(f"v_readfirstlane_b32 s{sNH}, v6")
A("s_nop 13")
M16A(0, SS[0], 0); M16A(1, SS[1], 0)
A("s_nop 8")
stamp('loop0')
def dma_wo(j):
    A(f"s_add_u32 m0, s{sWOM}, {(j % 6) * 7680 + (j // 6) * HALF_B}")
    A(f"s_add_u32 s{t4}, s{sWOS}, {j * 8 * 6912}")
    A(f"buffer_load_dwordx4 v{vWO}, {s(SWO,4)}, s{t4} offen lds")
def ostores(lo, hi, sc):
    A(f"buffer_store_dwordx4 {v(lo,4)}, v{vL16}, {s(SOI,4)}, s{sOW} offen{sc}")
    A("s_mov_b32 exec_hi, 0")
    A(f"buffer_store_dword v{hi}, v{vL16}, {s(SOI,4)}, s{sOR} offen{sc}")
    A("s_mov_b32 exec_hi, -1")
FAIR = [int(c, 16) for c in OPT.get('fair', '26')]
FH = opt('fh', 0)
if FH: FAIR = [int(c, 16) for c in OPT.get('fair', '26')]
PCNT = [0]
def oldprio(p):
    PCNT[0] += 1
    A(f"s_cbranch_vccz L_pr{PCNT[0]}")
    A(f"s_setprio {p}")
    A(f"L_pr{PCNT[0]}:")
def fair_at(h):
    low = (lambda x: x % 16 in FAIR) if FH else (lambda x: (x % 16) // 2 in FAIR)
    if FAIR and low(h) != low(h - 1): oldprio(0 if low(h) else 2)
def body(kind):
    for t in range(8):
        if kind == 'mid' and t == 2:
            A(f"s_cmp_lg_u32 s{sCNT}, 0")
            A("s_cbranch_scc1 L_nobar")
            A("s_waitcnt vmcnt(0)")
            A("s_barrier")
            A(f"s_cmp_lg_u32 s{sW}, 0")
            A("s_cbranch_scc1 L_nobar")
            A(f"v_mov_b32 v4, s{sNL}")
            A(f"v_mov_b32 v5, s{sNH}")
            A(f"s_lshl_b32 s{t0}, s{sHG}, 3")
            A(f"v_mov_b32 v6, s{t0}")
            A("s_mov_b64 exec, 1")
            A(f"buffer_store_dwordx2 v[4:5], v6, {s(SKV,4)}, s{sF2} offen{SC}")
            A("s_mov_b64 exec, -1")
            A("L_nobar:")
        kv = kind == 'kv' and t < 6
        wo = kind == 'wo' and t < 6
        def kvslot(f):
            if kv: A("s_add_u32 m0, m0, 4096")
            f()
            if kv: A(f"buffer_load_dwordx4 v{vL16}, {s(SKV,4)}, m0 offen{SC} lds")
        a0, b0 = SS[2*(t&1)], SS[2*(t&1)+1]
        a1, b1 = SS[2*(1-(t&1))], SS[2*(1-(t&1))+1]
        PV(1, 1, b1, t - 1); fair_at(2*t); EX(a0, 0, 4)
        kvslot(lambda: M2B(a1, t + 1))
        rdR(t + 2)
        if wo: dma_wo(2*t)
        if kind == 'kv' and t == 6: ostores(vPO, vPO, SC)
        EX(a0, 4, 12)
        PV(0, 0, a0, t); EX(a0, 12, 16)
        W(0); rdV(t + 1, 1)
        PV(0, 1, a0, t); fair_at(2*t + 1); EX(b0, 0, 4)
        kvslot(lambda: M16A(0, a1, t + 1))
        if wo: dma_wo(2*t + 1)
        EX(b0, 4, 8)
        M16A(1, b1, t + 1); EX(b0, 8, 12)
        PV(1, 0, b0, t); EX(b0, 12, 16)
        rdK(t + 2); rdV(t + 2, 0)
def bump():
    for r in (AK, AV, AR): A(f"v_add_u32 v{r}, {8*TILE_B}, v{r}")
if FAIR:
    A(f"s_cmp_lt_u32 s{sW}, 4")
    A("s_cselect_b64 vcc, -1, 0")
    A("s_setprio 1")
    oldprio(0 if (15 in FAIR if FH else 7 in FAIR) else 2)
A(f"s_sub_u32 m0, s{sKVO}, 4096")
body('kv')
bump()
A(".p2align 6")
A("L_loop:")
body('mid')
bump()
A(f"s_add_u32 s{sCNT}, s{sCNT}, 1")
A(f"s_cmp_lt_u32 s{sCNT}, 2")
A("s_cbranch_scc1 L_loop")
A("s_waitcnt vmcnt(0)")
A("s_barrier")
A(f"buffer_load_dwordx2 {v(vF2D,2)}, v{vF2}, {s(SKV,4)}, s{sF2} offen{SC}")
body('wo')
PV(1, 1, SS[3], 7)
stamp('loop1')
if FAIR: A("s_setprio 0")
O0 = OO[0]
A(f"s_mov_b32 s{t0}, {f32bits(2.0**-32):#x}")
A(f"s_mov_b32 s{t1}, {f32bits(2.0**64):#x}")
A(f"s_mov_b32 s{t4}, 0x7f800000")
A(f"s_mov_b32 s{sCNT}, 0")
A("s_nop 0")
A(f"s_cmp_eq_u32 s{sP}, 1")
A("s_cbranch_scc1 L_send0")
OB = 24; DO = 60
TORD = [0, 2, 4, 6, 1, 3, 5, 7, 8]
PACE = opt('pace', 3)
SLOTS = (list(range(80, 120, 4)) + list(range(220, 256, 4)) + list(range(148, 176, 4)) + list(range(192, 212, 4)))[:opt('ns', 30) + 1]
seq = [(t, c) for t in TORD for c in range(5)]
def o_read(n):
    t, c = seq[n]
    b = SLOTS[n % len(SLOTS)]
    a0, a1, off = (WA[0], WA[1], t * 36 * 160) if t < 8 else (WA[2], WA[3], 0)
    A(f"ds_read_b64_tr_b16 {v(b,2)}, v{a0} offset:{off + 32*c}")
    A(f"ds_read_b64_tr_b16 {v(b+2,2)}, v{a1} offset:{off + 32*c}")
def oload(t):
    if t < 8:
        A(f"s_add_u32 s{t1}, s{sOLM}, {2048*t}")
        A(f"buffer_load_dwordx4 {v(OB+4*t,4)}, v{vOM}, {s(SOI,4)}, s{t1} offen{SC}")
    else:
        A(f"buffer_load_dwordx4 {v(OB+32,4)}, v{vOR}, {s(SOI,4)}, s{sOLR} offen{SC}")
def send(q):
    A(f"ds_write_b128 v{vCO}, {v(OO[q],4)}")
    A(f"ds_write_b128 v{vCO}, {v(OO[q]+4,4)} offset:1024")
    A("s_mov_b32 exec_hi, 0")
    A(f"ds_write_b128 v{vCO}, {v(OO[q]+8,4)} offset:2048")
    A("s_mov_b32 exec_hi, -1")
A("s_nop 4")
send(1)
A("s_branch L_sent")
A("L_send0:")
send(0)
W(0)
for i in range(0, 12, 2): A(f"v_pk_mov_b32 {v(OO[0]+i,2)}, {v(OO[1]+i,2)}, {v(OO[1]+i,2)} op_sel:[0,1]")
for i in range(0, 4, 2): A(f"v_pk_mov_b32 {v(QM[0]+i,2)}, {v(QM[1]+i,2)}, {v(QM[1]+i,2)} op_sel:[0,1]")
A("L_sent:")
A("s_waitcnt vmcnt(0) lgkmcnt(0)")
A("L_f2:")
A(f"v_xor_b32 v{vF2D}, s{sNL}, v{vF2D}")
A(f"v_xor_b32 v{vF2D+1}, s{sNH}, v{vF2D+1}")
A(f"v_or_b32 v2, v{vF2D}, v{vF2D+1}")
A(f"s_add_u32 s{sCNT}, s{sCNT}, 1")
A("v_cmp_ne_u32 vcc, 0, v2")
A(f"s_cmp_gt_u32 s{sCNT}, {SPIN}")
A("s_cbranch_scc1 L_f2ok")
A("s_cbranch_vccz L_f2ok")
A("s_sleep 2")
A(f"buffer_load_dwordx2 {v(vF2D,2)}, v{vF2}, {s(SKV,4)}, s{sF2} offen{SC}")
A("s_waitcnt vmcnt(0)")
A("s_branch L_f2")
A("L_f2ok:")
A(f"s_mov_b32 s{sCNT}, 0")
A("s_barrier")
stamp('comb')
for i in range(3): A(f"ds_read_b128 {v(48+4*i,4)}, v{vCP} offset:{1024*i}")
EARLY = 19
for n in range(6): o_read(n)
W(13)
for i in range(0, 8, 2): A(f"v_pk_add_f32 {v(O0+i,2)}, {v(O0+i,2)}, {v(48+i,2)}")
W(12)
A("s_mov_b32 exec_hi, 0")
for i in range(8, 12, 2): A(f"v_pk_add_f32 {v(O0+i,2)}, {v(O0+i,2)}, {v(48+i,2)}")
A("s_mov_b32 exec_hi, -1")
A(f"v_mov_b32 v{T0}, v{O0+10}")
A(f"v_mov_b32 v{T1}, v{O0+10}")
A(f"v_maximum3_f32 v{T2}, |v{O0}|, |v{O0+1}|, |v{O0+2}|")
A(f"v_maximum3_f32 v{T3}, |v{O0+3}|, |v{O0+4}|, |v{O0+5}|")
A(f"v_permlane32_swap_b32 v{T0}, v{T1}")
A(f"v_maximum3_f32 v{T2}, v{T2}, |v{O0+6}|, |v{O0+7}|")
A(f"v_maximum3_f32 v{T3}, v{T3}, |v{O0+8}|, |v{O0+9}|")
A(f"v_cmp_nle_f32 vcc, s{t0}, v{T0}")
A(f"v_cmp_nge_f32 s[{sM}:{sM+1}], s{t1}, v{T0}")
A(f"v_maximum3_f32 v{T2}, v{T2}, v{T3}, v{T3}")
A(f"s_or_b64 vcc, vcc, s[{sM}:{sM+1}]")
A(f"v_cmp_ngt_f32 s[{sM}:{sM+1}], s{t4}, v{T2}")
A(f"s_or_b64 vcc, vcc, s[{sM}:{sM+1}]")
A("s_cbranch_vccnz L_slow")
A("L_fin:")
A(f"v_rcp_f32 v{T0}, v{T0}")
A(f"s_mov_b32 s{t0}, 0xfffffffe")
A(f"v_mov_b32 v{T1}, v{T0}")
for i in range(0, 10, 2): A(f"v_pk_mul_f32 {v(O0+i,2)}, {v(O0+i,2)}, {v(T0,2)}")
for i in range(5): A(f"v_cvt_pk_bf16_f32 v{16+i}, v{O0+2*i}, v{O0+2*i+1}")
for i in range(5): A(f"v_min_u32 v{16+i}, s{t0}, v{16+i}")
if opt('fast', 1):
    A(f"s_cmp_eq_u32 s{sFAST}, 15")
    A("s_cbranch_scc1 L_ofast")
    ostores(16, 20, SC)
    A("s_branch L_odone")
    A("L_ofast:")
    ostores(16, 20, "")
    A("L_odone:")
else:
    ostores(16, 20, SC)
stamp('ostore')
DELAY = opt('odelay', 6)
for n in range(6, 6 + DELAY): o_read(n)
if opt('bare', 0): A("s_barrier")
for t in TORD[:PACE]: oload(t)
stamp('barE')
PRE = len(SLOTS) - 1
for n in range(6 + DELAY, PRE): o_read(n)
issued = PRE
for n, (t, c) in enumerate(seq):
    k = n // 5
    if c == 0:
        A(f"L_ochk{k}:")
        A(f"s_waitcnt vmcnt({min(PACE - 1, 8 - k)})")
        A(f"v_max3_u32 v2, v{OB+4*t}, v{OB+4*t+1}, v{OB+4*t+2}")
        A(f"v_max_u32 v2, v2, v{OB+4*t+3}")
        A("v_cmp_eq_u32 vcc, -1, v2")
        A(f"s_cbranch_vccnz L_oretry{k}")
        A(f"L_ook{k}:")
        if k == 0: stamp('oready')
        if k + PACE < 9: oload(TORD[k + PACE])
    left = issued - 1 - n
    if n == 0 and PRE > 7: W(0)
    elif n >= PRE or PRE <= 7: W(min(2 * left, 15))
    cc = "0" if k == 0 else v(DO+4*c, 4)
    A(f"v_mfma_f32_16x16x32_bf16 {v(DO+4*c,4)}, {v(SLOTS[n % len(SLOTS)],4)}, {v(OB+4*t,4)}, {cc}")
    if issued < len(seq): o_read(issued); issued += 1
stamp('omfma')
A(f"s_cmp_eq_u32 s{sKH}, 0")
A("s_cbranch_scc0 L_ofin1")
for kh in range(2):
    keep, give = ((0, 1, 4), (2, 3)) if kh == 0 else ((2, 3), (0, 1, 4))
    if kh == 1: A("L_ofin1:")
    A("s_nop 5")
    for c in give: A(f"ds_write_b128 v{vRD}, {v(DO+4*c,4)} offset:{1024*c}")
    W(0)
    A("s_barrier")
    for c in keep: A(f"ds_read_b128 {v(80+4*c,4)}, v{vRD} offset:{1024*c}")
    for n, c in enumerate(keep):
        W(len(keep)-1-n)
        for i in (0, 2): A(f"v_pk_add_f32 {v(DO+4*c+i,2)}, {v(DO+4*c+i,2)}, {v(80+4*c+i,2)}")
        A(f"v_cvt_pk_bf16_f32 v{DO+4*c}, v{DO+4*c}, v{DO+4*c+1}")
        A(f"v_cvt_pk_bf16_f32 v{DO+4*c+1}, v{DO+4*c+2}, v{DO+4*c+3}")
        if c == 4: A("s_mov_b32 exec_hi, 0")
        A(f"buffer_store_dwordx2 {v(DO+4*c,2)}, v{vOA}, {s(SOUT,4)}, s{sOUT} offen offset:{32*c}")
    if kh == 0: A("s_branch L_flush" if DIAG or ECHO else "s_endpgm")
if ECHO:
    a, b = ECHO.split(':')
    A("L_flush:")
    A("s_waitcnt vmcnt(0)")
    A("s_memrealtime s[80:81]")
    A("s_waitcnt lgkmcnt(0)")
    if b == 'end': A(f"s_sub_u32 s82, s80, s{ECHOREG[a]}")
    elif a == b: A("s_mov_b32 s82, 0")
    else: A(f"s_sub_u32 s82, s{ECHOREG[b]}, s{ECHOREG[a]}")
    A("s_min_u32 s82, s82, 20000")
    A("s_mov_b32 s83, s80")
    A("L_echo:")
    A("s_memrealtime s[80:81]")
    A("s_waitcnt lgkmcnt(0)")
    A("s_sub_u32 s81, s80, s83")
    A("s_cmp_lt_u32 s81, s82")
    A("s_cbranch_scc1 L_echo")
if DIAG:
    A("L_flush:")
    A("s_mov_b64 exec, -1")
    stamp('stored')
    A("s_waitcnt vmcnt(0)")
    A("s_memtime s[80:81]")
    A("s_memrealtime s[82:83]")
    A("s_waitcnt lgkmcnt(0)")
    A(f"v_writelane_b32 v{VST}, s80, 30")
    A(f"v_writelane_b32 v{VST}, s82, 31")
    A(f"v_writelane_b32 v{VST}, s{sCNT}, 29")
    A(f"v_writelane_b32 v{VST}, s69, 28")
    A(f"v_writelane_b32 v{VST}, s{sFAST}, 27")
    A(f"s_add_u32 s96, s18, 0x400000")
    A(f"s_addc_u32 s97, s19, 0")
    A("s_mov_b32 s98, 0x80000")
    A("s_mov_b32 s99, 0x00020000")
    A(f"s_lshl_b32 s{t0}, s2, 3")
    A(f"s_add_u32 s{t0}, s{t0}, s{sW}")
    A(f"s_lshl_b32 s{t0}, s{t0}, 7")
    A("s_mov_b32 exec_hi, 0")
    A("v_lshlrev_b32 v2, 2, v1")
    A(f"buffer_store_dword v{VST}, v2, s[96:99], s{t0} offen")
A("L_end:")
A("s_endpgm")
for k in range(9):
    A(f"L_oretry{k}:")
    A(f"s_add_u32 s{sCNT}, s{sCNT}, 1")
    A(f"s_cmp_gt_u32 s{sCNT}, {SPIN}")
    A(f"s_cbranch_scc1 L_ook{k}")
    A("s_waitcnt vmcnt(0)")
    for u in TORD[k:k + PACE]: oload(u)
    A(f"s_branch L_ochk{k}")
A("L_slow:")
W(0)
MM = 9
A(f"s_add_u32 s{t0}, s{sHALF}, {24*TILE_B}")
for r in (AK, AV, AR): A(f"v_subrev_u32 v{r}, s{t0}, v{r}")
A(f"v_mov_b32 v{QR}, v{QX2}")
A(f"v_mov_b32 v{QR+1}, 0")
A(f"s_cmp_eq_u32 s{sP}, 1")
A(f"s_cselect_b64 vcc, -1, 0")
A(f"v_permlane32_swap_b32 v{QR}, v{QX2}")
A("s_nop 1")
A(f"v_cndmask_b32 v{QR}, v{QR}, v{QX2}, vcc")
A("s_mov_b32 exec_lo, 0")
A(f"v_mov_b32 v{QR}, 0")
A("s_mov_b32 exec_lo, -1")
A(f"v_mov_b32 v{MM}, 0xff800000")
for i in range(16): A(f"v_mov_b32 v{O0+i}, 0")
A(f"s_mov_b32 s{t1}, 0")
A("L_sloop:")
A(f"buffer_load_dwordx4 {v(KF,4)}, v{AK}, {s(SKV,4)}, s{t1} offen{SC}")
A(f"buffer_load_dword v{KR}, v{AR}, {s(SKV,4)}, s{t1} offen offset:2240{SC}")
A(f"buffer_load_dwordx4 {v(VF0,4)}, v{AV}, {s(SKV,4)}, s{t1} offen offset:1024{SC}")
A(f"buffer_load_dwordx4 {v(VF1,4)}, v{AV}, {s(SKV,4)}, s{t1} offen offset:1632{SC}")
A("s_waitcnt vmcnt(0)")
M16(SS[0]); M8(SS[0])
A("s_nop 11")
rowmax(SS[0], T0, T1)
A(f"v_max_f32 v{T0}, v{T0}, v{MM}")
A(f"v_sub_f32 v{T1}, v{MM}, v{T0}")
A(f"v_exp_f32 v{T1}, v{T1}")
A(f"v_mov_b32 v{MM}, v{T0}")
for i in range(16): A(f"v_mul_f32 v{O0+i}, v{O0+i}, v{T1}")
for i in range(16): A(f"v_sub_f32 v{SS[0]+i}, v{SS[0]+i}, v{T0}")
EX(SS[0], 0, 16)
A("s_nop 1")
PV(0, 0, SS[0]); PV(0, 1, SS[0])
A(f"s_add_u32 s{t1}, s{t1}, {TILE_B}")
A(f"s_cmp_lt_u32 s{t1}, {KV_B}")
A("s_cbranch_scc1 L_sloop")
A("s_nop 11")
A(f"v_mov_b32 v{T0}, v{O0+10}")
A(f"v_mov_b32 v{T1}, v{O0+10}")
A("s_nop 1")
A(f"v_permlane32_swap_b32 v{T0}, v{T1}")
A("s_nop 0")
A("s_branch L_fin")
A("L_codeend:")
kernel_desc(A, NAME, NVGPR, 102)

HEADER = open('standalone__grouped_kv_mqa__prompt.s.ref').read().split('\n')
hdr = [l for l in HEADER if l.startswith(';') and '@launch' not in l]
out = "\n".join(hdr) + "\n; @launch grid=(256,1,1) block=(512,1,1) lds=163840\n" + A.text()
path = [a for a in sys.argv[1:] if a.endswith('.s')]
path = path[0] if path else 'standalone__grouped_kv_mqa__prompt.s'
open(path, 'w').write(out)
if DIAG: open(path + '.stamps', 'w').write(' '.join(STAMPS))
print("wrote", path, len(out))
```

```python
import sys, struct, math
sys.path.insert(0, 'work')
from gen_common import *

OPT = dict(a.split('=') for a in sys.argv[1:] if '=' in a)
def opt(k, d): return type(d)(OPT.get(k, d))
S_, D_, H_, DH = 2048, 576, 32, 18
ROWB = D_ * 2
TILE_B = 2368
KV_B = 64 * TILE_B
HALF_B = 32 * TILE_B
FLAG_OFF, FLAG2_OFF, OIMG_OFF = 0x30000, 0x34000, 0x40000
OHALF_B = 36864
OIMG_B = 64 * OHALF_B
CSCALE = (DH ** -0.5) * math.log2(math.e)
def f32bits(x): return struct.unpack('<I', struct.pack('<f', x))[0]
def nib(tab): return sum(t << (4 * i) for i, t in enumerate(tab))
DIAG = 'diag' in sys.argv
ECHO = OPT.get('echo')
SC = " sc1"
NAME = "standalone__grouped_kv_mqa__prompt_kernel"
SPIN = 0x20000

A = Asm()
VST = 120
STAMPS = []
ECHOREG = {}
if ECHO:
    ea, eb = ECHO.split(':')
    ECHOREG = {ea: 69, eb: 93} if ea != eb else {ea: 69}
def stamp(name, real=False):
    if ECHO and name in ECHOREG:
        A("s_memrealtime s[80:81]")
        A("s_waitcnt lgkmcnt(0)")
        A(f"s_mov_b32 s{ECHOREG[name]}, s80")
        if ECHOREG[name] == 69: A("s_mov_b32 s93, s80")
    if DIAG:
        if name in STAMPS: i = STAMPS.index(name)
        else: i = len(STAMPS); STAMPS.append(name)
        assert i < 27
        A(f"s_mem{'real' if real else ''}time s[80:81]")
        A("s_waitcnt lgkmcnt(0)")
        A(f"v_writelane_b32 v{VST}, s80, {i}")

SX, SWQ, SWKV, SKV, SOI, SWO, SOUT, SDBG = 20, 24, 28, 32, 36, 40, 44, 48
sW, sTB, sHG, sQT, sKIND, sHL, sP = 52, 53, 54, 55, 56, 57, 58
t0, t1, t2, t3, t4, t5 = 59, 60, 61, 62, 63, 64
sKVO, sCNT, sOW, sOR = 65, 66, 67, 68
sXM, sXS, sNL, sNH, sFAST, sPAR = 70, 71, 72, 73, 74, 75
sM = 76
sF2, sWOM, sWOS, sHALF, sOLM, sOLR, sOUT, sKH, sW1 = 84, 85, 86, 87, 88, 89, 90, 91, 92
sSC = 94
sGW, sGX = [96, 97, 98], [99, 100, 101]
WKVB, XB, QXB = 29184, 87552, 153088
GPOS = [0, 58368, 29184]
PXB = 104448
FASTB = QXB + 10240
PFLG = FASTB + 32
CMB = 46336
def slot(sg): return (sg + 8) % 9
NPRE = 7
vXO, vWQ, vWK, vL16 = 3, 7, 9, 15
vN, PF = 118, 112
AK, AV, AR, IDX, vWO = 124, 125, 126, 127, 128
vQW, vQWr, vQR, vQRr, vFA, vCO, vCP = 129, 130, 131, 132, 133, 134, 135
WA = [136, 137, 138, 139]
vRD, vOA, vOM, vOR, vPA, vFO, vFP, vPW = 140, 141, 142, 143, 144, 145, 146, 147
VF1, VF0, KF, KR = 148, 152, 156, 160
VF1b, VF0b, KFb, KRb = 164, 168, 172, 176
vF2, vT = 178, 179
QM = [32, 40]; QR = 36; QX2 = 46
SS = [48, 64, 80, 96]
OO = [180, 196]
vPO, vF2D, vPR, vOB = 212, 216, 218, 219
NVGPR = 256
T0, T1, T2, T3 = 4, 5, 6, 8
KSPLIT = opt('ksplit', 0)
MERGEB = opt('mergeb', 0)
X2L = opt('x2l', 0)
FLAGAT = opt('flagat', -1)

def W(n): A(f"s_waitcnt lgkmcnt({n})")
def cpf():
    A("s_getpc_b64 s[78:79]")
    A("L_pc:")
    A(f"s_sub_u32 s78, s78, L_pc-{NAME}")
    A("s_subb_u32 s79, s79, 0")
    A("v_lshlrev_b32 v4, 7, v1")
    A("v_mov_b32 v5, s79")
    A("v_add_co_u32 v4, vcc, s78, v4")
    A("s_nop 1")
    A("v_addc_co_u32 v5, vcc, 0, v5, vcc")
    for k in range(3):
        A(f"v_cmp_gt_u32 vcc, (L_codeend-{NAME}-{8192*k}+127)/128, v1")
        A("s_and_b64 exec, exec, vcc")
        A(f"global_load_dword v{16+k}, v[4:5], off")
        A("s_mov_b64 exec, -1")
        if k < 2:
            A("v_add_co_u32 v4, vcc, 0x2000, v4")
            A("s_nop 1")
            A("v_addc_co_u32 v5, vcc, 0, v5, vcc")
def dma_x(sg, vreg, extra=0, sreg=None):
    A(f"s_add_u32 m0, s{sXM}, {slot(sg) * 8192 - (sg % 3) * 128 + extra}")
    A(f"s_add_u32 s{t0}, s{sXS if sreg is None else sreg}, s{sGX[sg // 3]}")
    A(f"buffer_load_dwordx4 v{vreg}, {s(SX,4)}, s{t0} offen offset:{(sg % 3)*128} lds")
def wq_group(q): A(f"s_add_u32 s{t5}, s{t3}, s{sGW[q]}")
def dma_wq(i):
    A(f"s_add_u32 m0, s{t2}, {GPOS[i // 32] + (i % 32) * 912}")
    A(f"s_add_u32 s{t0}, s{t5}, {(i % 32) * 6912}")
    A(f"buffer_load_dwordx4 v{vWQ}, {s(SWQ,4)}, s{t0} offen lds")
def wq_mask(on): A(f"s_mov_b32 exec_hi, {(1 << 25) - 1:#x}" if on else "s_mov_b32 exec_hi, -1")

def setup():
    A(f"s_lshr_b32 s{sKH}, s{sW}, 2")
    A(f"s_and_b32 s{sPAR}, s{sHL}, 1")
    A(f"s_mul_i32 s{sHALF}, s{sP}, {HALF_B}")
    A("v_and_b32 v4, 31, v1")
    A("v_lshrrev_b32 v5, 1, v4")
    A("v_and_b32 v5, 7, v5")
    A("v_lshrrev_b32 v6, 5, v1")
    if KSPLIT:
        A(f"s_lshl_b32 s{t0}, s{sP}, 1")
        A(f"v_add_u32 v6, s{t0}, v6")
        A("v_xor_b32 v8, v6, v5")
        A("v_lshlrev_b32 v8, 4, v8")
        A("v_lshl_add_u32 v8, v4, 7, v8")
        A(f"s_lshl_b32 s{t0}, s{sP}, 12")
        A(f"s_add_u32 s{t0}, s{t0}, {XB + 65536}")
        A(f"v_add_u32 v10, s{t0}, v8")
        A("v_xor_b32 v11, 64, v10")
        A(f"s_lshl_b32 s{t0}, s{sP}, 13")
        A(f"s_sub_u32 s{t0}, 0x1000, s{t0}")
        A(f"v_add_u32 v12, s{t0}, v10")
        A(f"v_add_u32 v13, s{t0}, v11")
        A("v_lshrrev_b32 v6, 5, v1")
    else:
        A(f"s_lshl_b32 s{t0}, s{sP}, 5")
        A(f"v_add_u32 v4, s{t0}, v4")
        for u in range(4):
            A(f"v_add_u32 v8, {2*u}, v6")
            A("v_xor_b32 v8, v8, v5")
            A("v_lshlrev_b32 v8, 4, v8")
            A(f"v_lshl_add_u32 v{10+u}, v4, 7, v8")
            A(f"v_add_u32 v{10+u}, {XB + 65536}, v{10+u}")
    A("v_mul_u32_u24 v4, 1216, v6")
    A("v_bfe_u32 v5, v1, 3, 1")
    A("v_mul_u32_u24 v5, 304, v5")
    A("v_add_u32 v4, v4, v5")
    A("v_bfe_u32 v5, v1, 2, 1")
    A("v_mul_u32_u24 v5, 144, v5")
    A("v_add_u32 v4, v4, v5")
    A("v_and_b32 v5, 3, v1")
    A("v_bfe_u32 v8, v1, 4, 1")
    A("v_lshl_add_u32 v5, v8, 2, v5")
    A("v_lshlrev_b32 v5, 2, v5")
    A(f"s_mov_b32 s{t0}, {nib([0,2,1,3,4,0,0,0]):#x}")
    A(f"s_mov_b32 s{t1}, {nib([0,2,1,3,2,4,4,0]):#x}")
    A(f"s_cmp_eq_u32 s{sPAR}, 1")
    A(f"s_cselect_b32 s{t0}, s{t1}, s{t0}")
    A(f"s_mul_i32 s{t1}, s{sHL}, 36")
    A(f"s_and_b32 s{t1}, s{t1}, 0xf8")
    if KSPLIT:
        A(f"s_mul_i32 s{t4}, s{sP}, 2432")
        A(f"s_add_u32 s{t1}, s{t1}, s{t4}")
    A(f"v_lshrrev_b32 v5, v5, s{t0}")
    A("v_and_b32 v5, 15, v5")
    A("v_lshl_add_u32 v14, v5, 3, v4")
    A(f"v_add_u32 v14, s{t1}, v14")
    A(f"v_add_u32 v8, 0x8000, v14")
    A(f"s_mul_i32 s{sKVO}, s{sP}, 74")
    A(f"s_add_u32 s{sKVO}, s{sKVO}, s{sHL}")
    A(f"s_lshl_b32 s{sKVO}, s{sKVO}, 10")
    A(f"s_mov_b32 s{sSC}, {f32bits(CSCALE):#x}")
    A(f"s_mov_b32 s{sSC+1}, {f32bits(CSCALE):#x}")
    A("v_lshrrev_b32 v4, 1, v1")
    A("v_lshlrev_b32 v4, 7, v4")
    A("v_and_b32 v5, 1, v1")
    A(f"v_lshl_add_u32 v{vPA}, v5, 4, v4")
    A(f"v_add_u32 v{vPA}, {FLAG_OFF}, v{vPA}")
    A("v_and_b32 v4, 31, v1")
    A(f"v_lshlrev_b32 v{AR}, 2, v4")
    A("v_lshrrev_b32 v5, 2, v4")
    A("v_lshlrev_b32 v5, 2, v5")
    A(f"s_mov_b32 s{t0}, {nib([0,3,1,2,4,0,0,0]):#x}")
    A(f"v_lshrrev_b32 v5, v5, s{t0}")
    A("v_and_b32 v5, 15, v5")
    A("v_and_b32 v6, 3, v4")
    A("v_lshl_add_u32 v5, v5, 2, v6")
    A("v_lshrrev_b32 v6, 5, v1")
    A("v_mul_u32_u24 v2, 304, v6")
    A(f"v_lshl_add_u32 v{AV}, v5, 4, v2")
    A("v_mov_b32 v2, 0x80000")
    A("v_cmp_gt_u32 vcc, 19, v4")
    A(f"v_mov_b32 v{IDX}, 0xdddd")
    A(f"v_mov_b32 v{AK}, v{vL16}")
    A(f"v_cndmask_b32 v{AV}, v2, v{AV}, vcc")
    A(f"v_mov_b32 v{KR+1}, 0x3f803f80")
    A(f"v_mov_b32 v{KRb+1}, 0x3f803f80")
    A("v_mov_b32 v4, 0")
    A("v_mov_b32 v5, 0")
    for i in range(0, 4, 2): A(f"v_pk_mov_b32 {v(VF1b+i,2)}, v[4:5], v[4:5]")
    for i in range(0, 32, 2): A(f"v_pk_mov_b32 {v(OO[0]+i,2)}, v[4:5], v[4:5]")
    A(f"s_mul_i32 s{t1}, s{sW}, 1280")
    A(f"s_add_u32 s{t1}, s{t1}, {QXB}")
    A(f"v_add_u32 v{vQW}, s{t1}, v{vL16}")
    A(f"v_lshl_add_u32 v{vQWr}, v1, 3, s{t1}")
    A(f"s_and_b32 s{t1}, s{sW}, 6")
    A(f"s_mul_i32 s{t1}, s{t1}, 1280")
    A(f"s_add_u32 s{t1}, s{t1}, {QXB}")
    A(f"v_add_u32 v{vQR}, s{t1}, v{vL16}")
    A(f"v_lshl_add_u32 v{vQRr}, v1, 3, s{t1}")
    A(f"v_lshl_add_u32 v{vQRr}, v6, 10, v{vQRr}")
    A(f"v_mov_b32 v{vFA}, {FASTB}")
    A(f"s_lshl_b32 s{t0}, s{sW}, 2")
    A(f"s_add_u32 s{t0}, s{t0}, {PFLG}")
    A(f"v_mov_b32 v{vFO}, s{t0}")
    A(f"v_xor_b32 v{vFP}, 4, v{vFO}")
    A(f"ds_write2_b32 v{vFO}, v4, v4 offset0:0 offset1:8")
    A(f"s_mul_i32 s{t0}, s{sW}, 2560")
    A(f"s_add_u32 s{t0}, s{t0}, {PXB}")
    A(f"v_add_u32 v{vPW}, s{t0}, v{vL16}")
    A(f"s_xor_b32 s{t0}, s{sW}, 1")
    A(f"s_mul_i32 s{t0}, s{t0}, 2560")
    A(f"s_add_u32 s{t0}, s{t0}, {PXB}")
    A(f"v_add_u32 v{vPR}, s{t0}, v{vL16}")
    A(f"s_lshl_b32 s{t0}, s{sTB}, 1")
    A(f"s_add_u32 s{t0}, s{t0}, s{sP}")
    A(f"s_mul_i32 s{t0}, s{t0}, {OHALF_B}")
    A(f"s_lshl_b32 s{t1}, s{sHG}, 2")
    A(f"s_add_u32 s{t1}, s{t1}, s{sHL}")
    A(f"s_lshl_b32 s{t1}, s{t1}, 10")
    A(f"s_add_u32 s{sOW}, s{t0}, s{t1}")
    A(f"s_and_b32 s{t1}, s{sHG}, 1")
    A(f"s_lshl_b32 s{t1}, s{t1}, 1")
    A(f"s_xor_b32 s{t1}, s{t1}, s{sHL}")
    A(f"s_lshl_b32 s{t1}, s{t1}, 2")
    A(f"s_lshl_b32 s{t4}, s{sHG}, 9")
    A(f"s_add_u32 s{t1}, s{t1}, s{t4}")
    A(f"s_add_u32 s{t1}, s{t1}, s{t0}")
    A(f"s_add_u32 s{sOR}, s{t1}, 32768")
    A(f"s_and_b32 s{t4}, s{sW}, 3")
    A(f"s_mul_i32 s{sWOM}, s{sW}, 960")
    A(f"s_mul_i32 s{sWOS}, s{sW}, 6912")
    for i in range(4): A(f"v_mov_b32 v{vPO+i}, -1")
    A(f"v_and_b32 v{vF2}, 7, v1")
    A(f"v_lshlrev_b32 v{vF2}, 3, v{vF2}")
    A(f"s_lshl_b32 s{sF2}, s{sTB}, 7")
    A(f"s_add_u32 s{sF2}, s{sF2}, {FLAG2_OFF}")
    mul, sh = magic_div(10, 64)
    A(f"v_mul_u32_u24 v4, {mul}, v1")
    A(f"v_lshrrev_b32 v4, {sh}, v4")
    A("v_mul_u32_u24 v5, 10, v4")
    A("v_sub_u32 v5, v1, v5")
    A("v_min_u32 v5, 8, v5")
    A(f"v_mul_u32_u24 v{vWO}, {ROWB}, v4")
    A(f"v_lshl_add_u32 v{vWO}, v5, 4, v{vWO}")
    A(f"v_add_u32 v{vWO}, s{sOUT}, v{vWO}")
    A(f"s_mul_i32 s{t0}, s{sHL}, 2560")
    A(f"s_add_u32 s{t0}, s{t0}, {CMB}")
    A(f"s_add_u32 s{t1}, s{sHALF}, s{t0}")
    A(f"v_add_u32 v{vCO}, s{t1}, v{vL16}")
    A(f"s_sub_u32 s{t1}, {HALF_B}, s{sHALF}")
    A(f"s_add_u32 s{t1}, s{t1}, s{t0}")
    A(f"v_add_u32 v{vCP}, s{t1}, v{vL16}")
    A("v_and_b32 v6, 15, v1")
    A("v_lshrrev_b32 v5, 4, v1")
    A(f"s_lshl_b32 s{t0}, s{sP}, 4")
    A(f"v_add_u32 v2, s{t0}, v6")
    A("v_lshlrev_b32 v2, 4, v2")
    A(f"v_lshl_add_u32 v{vOR}, v5, 9, v2")
    A(f"v_lshrrev_b32 v{vT}, 5, v1")
    A("v_bfe_u32 v4, v1, 4, 1")
    A(f"v_lshl_add_u32 v{vOM}, v{vT}, 10, v2")
    A(f"v_lshl_add_u32 v{vOM}, v4, 9, v{vOM}")
    A(f"s_lshl_b32 s{t0}, s{sTB}, 1")
    A(f"s_add_u32 s{t0}, s{t0}, s{sPAR}")
    A(f"s_mul_i32 s{t0}, s{t0}, {OHALF_B}")
    A(f"s_lshl_b32 s{t1}, s{sKH}, 14")
    A(f"s_add_u32 s{sOLM}, s{t0}, s{t1}")
    A(f"s_lshl_b32 s{t1}, s{sKH}, 11")
    A(f"s_add_u32 s{sOLR}, s{t0}, s{t1}")
    A(f"s_add_u32 s{sOLR}, s{sOLR}, 32768")
    A(f"s_lshl_b32 s{t0}, s{sTB}, 6")
    A(f"s_lshl_b32 s{t1}, s{t4}, 4")
    A(f"s_add_u32 s{t0}, s{t0}, s{t1}")
    A(f"v_add_u32 v6, s{t0}, v6")
    A(f"v_mul_u32_u24 v6, {ROWB}, v6")
    A(f"v_lshl_add_u32 v{vOA}, v5, 3, v6")
    A(f"v_lshl_add_u32 v{vOB}, v4, 5, v6")
    A(f"v_lshl_add_u32 v{vOB}, v{vT}, 4, v{vOB}")
    A(f"s_mul_i32 s{t0}, s{sPAR}, {HALF_B}")
    A(f"s_mul_i32 s{t1}, s{sP}, 5120")
    A(f"s_add_u32 s{t0}, s{t0}, s{t1}")
    A(f"s_add_u32 s{t0}, s{t0}, {24*TILE_B}")
    A(f"v_add_u32 v{vRD}, s{t0}, v{vL16}")
    A("v_bfe_u32 v2, v1, 2, 2")
    A(f"v_mul_u32_u24 v6, 18, v{vT}")
    A("v_add_u32 v6, v6, v2")
    A(f"v_mul_u32_u24 v{WA[0]}, 12, v4")
    A(f"v_lshl_add_u32 v{WA[1]}, v4, 2, 4")
    A(f"v_add_u32 v{WA[0]}, v6, v{WA[0]}")
    A(f"v_add_u32 v{WA[1]}, v6, v{WA[1]}")
    A("v_mul_u32_u24 v6, 72, v5")
    A(f"v_and_b32 v{vT}, 1, v2")
    A(f"v_add3_u32 v6, v6, v{vT}, 16")
    A("v_lshrrev_b32 v2, 1, v2")
    A("v_lshl_add_u32 v2, v4, 1, v2")
    A(f"v_xor_b32 v{vT}, 2, v2")
    A(f"v_mad_u32_u24 v{WA[2]}, v2, 18, v6")
    A(f"v_mad_u32_u24 v{WA[3]}, v{vT}, 18, v6")
    A("v_and_b32 v2, 3, v1")
    A("v_lshlrev_b32 v2, 3, v2")
    A(f"s_mul_i32 s{t0}, s{sKH}, {HALF_B}")
    A(f"v_add_u32 v2, s{t0}, v2")
    A(f"s_movk_i32 s{t0}, 160")
    for i in range(4): A(f"v_mad_u32_u24 v{WA[i]}, v{WA[i]}, s{t0}, v2")

A('.amdgcn_target "amdgcn-amd-amdhsa--gfx950"')
kernel_begin(A, NAME)
A("s_cmp_ge_u32 s2, 256")
A("s_cbranch_scc1 L_end")
if DIAG: A(f"v_mov_b32 v{VST}, 0")
stamp('entry'); stamp('rt0', True)
A("s_load_dwordx16 s[4:19], s[0:1], 0")
A("v_and_b32 v1, 63, v0")
A("v_lshrrev_b32 v2, 6, v0")
A(f"s_and_b32 s{sTB}, s2, 7")
A(f"v_readfirstlane_b32 s{sW}, v2")
A(f"s_lshr_b32 s{t1}, s2, 6")
A(f"s_lshl_b32 s{t0}, s{t1}, 3")
A(f"s_cmp_lg_u32 s{sW}, {opt('cpfw', 7)}")
A("s_cbranch_scc1 L_nocpf")
cpf()
A("L_nocpf:")
A(f"s_add_u32 s{sTB}, s{sTB}, s{t0}")
A(f"s_lshr_b32 s{sHG}, s2, 3")
A(f"s_and_b32 s{sHG}, s{sHG}, 7")
A(f"s_and_b32 s{sQT}, s{sHG}, 3")
A(f"s_lshr_b32 s{sKIND}, s{sHG}, 2")
A(f"s_add_u32 s{t1}, s{t1}, s{sHG}")
A(f"s_mul_i32 s{t2}, s{t1}, 11")
A(f"s_lshr_b32 s{t2}, s{t2}, 5")
A(f"s_mul_i32 s{t2}, s{t2}, 3")
A(f"s_sub_u32 s{t1}, s{t1}, s{t2}")
assert all((n * 11 >> 5) == n // 3 for n in range(11))
for q in range(3):
    A(f"s_mul_i32 s{sGW[q]}, s{t1}, {192*ROWB}")
    A(f"s_mul_i32 s{sGX[q]}, s{t1}, 384")
    if q < 2:
        A(f"s_add_u32 s{t1}, s{t1}, 1")
        A(f"s_cmp_eq_u32 s{t1}, 3")
        A(f"s_cselect_b32 s{t1}, 0, s{t1}")
A("v_lshrrev_b32 v4, 3, v1")
A("v_lshrrev_b32 v5, 4, v1")
A("v_and_b32 v6, 7, v1")
A("v_xor_b32 v5, v5, v6")
A("v_lshlrev_b32 v5, 4, v5")
A(f"s_lshl_b32 s{t0}, s{sTB}, 6")
A(f"v_add_u32 v4, s{t0}, v4")
A(f"v_mul_u32_u24 v{vXO}, {ROWB}, v4")
A(f"v_add_u32 v{vXO}, v{vXO}, v5")
A(f"v_lshlrev_b32 v{vL16}, 4, v1")
A(f"s_lshr_b32 s{sHL}, s{sW}, 1")
A(f"s_and_b32 s{sP}, s{sW}, 1")
A(f"s_sub_u32 s{sW1}, s{sW}, 1")
A(f"s_cmp_eq_u32 s{sW}, 0")
def late_common():
    mul, sh = magic_div(19, 64)
    A(f"v_mul_u32_u24 v4, {mul}, v1")
    A(f"v_lshrrev_b32 v4, {sh}, v4")
    A("v_mul_u32_u24 v5, 19, v4")
    A("v_sub_u32 v5, v1, v5")
    A("v_min_u32 v5, 17, v5")
    A("v_cmp_le_u32 vcc, 9, v5")
    A("v_lshlrev_b32 v4, 1, v4")
    A("v_subrev_u32 v6, 9, v5")
    A("v_cndmask_b32 v5, v5, v6, vcc")
    A("v_addc_co_u32 v4, vcc, 0, v4, vcc")
    A(f"v_mul_u32_u24 v{vWQ}, {ROWB}, v4")
    A(f"v_lshl_add_u32 v{vWQ}, v5, 4, v{vWQ}")
    A(f"s_mul_i32 s{sOUT}, s{sHG}, 144")
    A(f"v_add_u32 v{vWQ}, s{sOUT}, v{vWQ}")
def late_srds():
    srd(A, SWQ, 6, D_ * ROWB)
    srd(A, SKV, 18, 0x40000)
    A(f"s_add_u32 s{SOI}, s18, {OIMG_OFF}")
    A(f"s_addc_u32 s{SOI+1}, s19, 0")
    A(f"s_mov_b32 s{SOI+2}, {OIMG_B}")
    A(f"s_mov_b32 s{SOI+3}, 0x00020000")
    srd(A, SWO, 12, D_ * ROWB)
    srd(A, SOUT, 14, S_ * ROWB)
W0FIRST = opt('w0first', 1)
def emit_bulk():
    A("L_bulk:")
    A(f"s_lshl_b32 s{t0}, s{sQT}, 1")
    A(f"s_add_u32 s{t0}, s{t0}, s{sW}")
    A(f"s_add_u32 s{t0}, s{t0}, 1")
    A(f"s_and_b32 s{t0}, s{t0}, 7")
    A(f"s_lshl_b32 s{sXM}, s{t0}, 10")
    A(f"s_add_u32 s{sXM}, s{sXM}, {XB}")
    A(f"s_mul_i32 s{sXS}, s{t0}, 9216")
    A(f"s_and_b32 s{t0}, s{t0}, 1")
    A(f"s_lshl_b32 s{t0}, s{t0}, 6")
    A(f"v_xor_b32 v{vXO}, s{t0}, v{vXO}")
    late_common()
    A(f"v_mov_b32 v{vN}, 0")
    A(f"v_mov_b32 v{vN+1}, 0")
    A(f"s_mul_i32 s{t2}, s{sW1}, {4*912}")
    A(f"s_mul_i32 s{t3}, s{sW1}, {4*6912}")
    A("s_waitcnt lgkmcnt(0)")
    srd(A, SX, 4, S_ * ROWB)
    srd(A, SDBG, 16, 256)
    late_srds()
    A("L_setup:")
    setup()
    stamp('setup')
    A(f"s_cmp_eq_u32 s{sW}, 0")
    A("s_cbranch_scc1 L_flag")
    A("L_issue:")
    for q in range(2):
        if opt('gprio', 1): A(f"s_setprio {2 if q == 0 else 0}")
        wq_group(q)
        A(f"s_cmp_eq_u32 s{sW}, 7")
        A(f"s_cbranch_scc1 L_b7_{q}")
        for sg in range(3*q, 3*q + 3): dma_x(sg, vXO)
        wq_mask(1)
        A(f"s_branch L_bc_{q}")
        A(f"L_b7_{q}:")
        wq_mask(1)
        for j in range(4, 8): dma_wq(32*q + j)
        A(f"L_bc_{q}:")
        for j in range(4): dma_wq(32*q + j)
        wq_mask(0)
    if not X2L:
        A(f"s_cmp_eq_u32 s{sW}, 7")
        A("s_cbranch_scc1 L_nox2")
        for sg in range(6, 9): dma_x(sg, vXO)
        A("L_nox2:")
    stamp('issued')
    A("L_wait:")
    A(f"s_cmp_eq_u32 s{sW}, 7")
    A("s_cbranch_scc1 L_x2w8")
    A(f"s_waitcnt vmcnt({7 if X2L else 10})")
    A("s_branch L_join")
    A("L_x2w8:")
    A(f"s_waitcnt vmcnt(8)")
    A("s_branch L_join")
def emit_w0():
    A("L_w0:")
    A("s_setprio 3")
    A("s_memrealtime s[78:79]")
    mul, sh = magic_div(3, 64)
    A(f"v_mul_u32_u24 v4, {mul}, v1")
    A(f"v_lshrrev_b32 v4, {sh}, v4")
    A("v_mul_u32_u24 v5, 3, v4")
    A("v_sub_u32 v5, v1, v5")
    A(f"v_mul_u32_u24 v{vWK}, 36, v4")
    A(f"v_lshl_add_u32 v{vWK}, v5, 4, v{vWK}")
    A(f"v_xor_b32 v8, 64, v{vXO}")
    A(f"s_lshl_b32 s{sXM}, s{sQT}, 11")
    A(f"s_add_u32 s{sXM}, s{sXM}, {XB}")
    A(f"s_mul_i32 s{sXS}, s{sQT}, {2*9216}")
    A(f"s_add_u32 s{t1}, s{sXS}, 9216")
    A("v_mov_b32 v6, 0")
    A("s_waitcnt lgkmcnt(0)")
    stamp('karg')
    A(f"s_cmp_eq_u32 s{sKIND}, 1")
    A(f"s_cselect_b32 s{SWKV}, s10, s8")
    A(f"s_cselect_b32 s{SWKV+1}, s11, s9")
    A(f"s_mov_b32 s{SWKV+2}, {D_*36}")
    A(f"s_mov_b32 s{SWKV+3}, 0x00020000")
    srd(A, SX, 4, S_ * ROWB)
    srd(A, SDBG, 16, 256)
    A("s_cmp_lg_u32 s2, 0")
    A("s_cbranch_scc1 L_nononce")
    A("s_or_b32 s78, s78, 1")
    A("v_mov_b32 v4, s78")
    A("v_mov_b32 v5, s79")
    A("s_mov_b64 exec, 1")
    A(f"buffer_store_dwordx2 v[4:5], v6, {s(SDBG,4)}, 0 offen{SC}")
    A("s_mov_b64 exec, -1")
    A("L_nononce:")
    for wi in range(28):
        A(f"s_mov_b32 m0, {WKVB + 1008 * wi}")
        A(f"s_mov_b32 s{t0}, {756 * wi}")
        A(f"buffer_load_dwordx4 v{vWK}, {s(SWKV,4)}, s{t0} offen lds")
        if wi == 13:
            for sg in range(3): dma_x(sg, vXO); dma_x(sg, 8, 1024, t1)
    for sg in range(3, 9):
        dma_x(sg, vXO); dma_x(sg, 8, 1024, t1)
    A(f"buffer_load_dwordx2 v[{vN}:{vN+1}], v6, {s(SDBG,4)}, 0 offen{SC}")
    stamp('call')
    late_srds()
    late_common()
    A("v_and_b32 v4, 15, v1")
    A(f"s_lshl_b32 s{t0}, s{sQT}, 4")
    A(f"v_add_u32 v4, s{t0}, v4")
    A("v_lshrrev_b32 v5, 1, v4")
    A("v_and_b32 v5, 7, v5")
    A("v_lshrrev_b32 v6, 4, v1")
    A("v_xor_b32 v8, v6, v5")
    A("v_lshlrev_b32 v8, 4, v8")
    A("v_lshl_add_u32 v10, v4, 7, v8")
    A(f"v_add_u32 v10, {XB}, v10")
    A("v_xor_b32 v11, 64, v10")
    A("v_bfe_u32 v4, v1, 2, 2")
    A("v_lshl_add_u32 v4, v6, 3, v4")
    A("v_mul_u32_u24 v4, 48, v4")
    A("v_and_b32 v5, 3, v1")
    A("v_lshl_add_u32 v12, v5, 3, v4")
    A(f"v_add_u32 v12, {WKVB}, v12")
    for q in range(3):
        A(f"s_mul_i32 s{t0}, s{sGX[q]}, 24")
        A(f"v_add_u32 v{121+q}, s{t0}, v12")
    A("v_add_u32 v13, 0x10000, v10")
    A("v_add_u32 v14, 0x10000, v11")
    A(f"s_lshl_b32 s{t0}, s{sTB}, 1")
    A(f"s_lshr_b32 s{t1}, s{sQT}, 1")
    A(f"s_add_u32 s{t0}, s{t0}, s{t1}")
    A(f"s_mul_i32 s{t0}, s{t0}, {TILE_B}")
    A(f"s_and_b32 s{t1}, s{sQT}, 1")
    A("v_and_b32 v4, 15, v1")
    A("v_lshrrev_b32 v5, 5, v1")
    A("v_bfe_u32 v6, v1, 4, 1")
    KD = [20, 24]; KFB = 32
    def kv_reads(t):
        b = KFB + 12 * (t % 3)
        sg = t >> 1
        if t % 2 == 0 and (sg == 0 or sg >= 3): A(f"s_waitcnt vmcnt({13 if sg == 0 else 17 - 2*sg})")
        if sg == 0: A(f"ds_read_b128 {v(b,4)}, v{13 + (t & 1)}")
        else: A(f"ds_read_b128 {v(b,4)}, v{10 + (t & 1)} offset:{(sg - 1) * 8192}")
        for ct in range(2):
            for p in range(2):
                A(f"ds_read_b64_tr_b16 {v(b+4+4*ct+2*p,2)}, v{121 + t // 6} offset:{(t % 6)*1536 + p*192 + ct*32}")
    A(f"s_cmp_eq_u32 s{sKIND}, 1")
    A("s_cbranch_scc1 L_vproj")
    for which in ("k", "v"):
        if which == "v": A("L_vproj:")
        if which == "k":
            A(f"s_lshl_b32 s{t2}, s{t1}, 8")
            A(f"s_add_u32 s{t2}, s{t2}, s{t0}")
            A(f"s_lshl_b32 s{t4}, s{t1}, 6")
            A(f"s_add_u32 s{t4}, s{t4}, s{t0}")
            A("v_lshlrev_b32 v5, 9, v5")
            A("v_lshl_add_u32 v5, v4, 4, v5")
            A("v_lshl_add_u32 v16, v6, 3, v5")
            A("v_lshlrev_b32 v17, 2, v4")
        else:
            A(f"s_mul_i32 s{t2}, s{t1}, 608")
            A(f"s_add_u32 s{t2}, s{t2}, s{t0}")
            A("v_mul_u32_u24 v5, 304, v5")
            A("v_lshl_add_u32 v5, v4, 4, v5")
            A("v_lshl_add_u32 v16, v6, 3, v5")
            A("v_cmp_eq_u32 vcc, 2, v4")
            A(f"v_cmp_gt_u32 s[{sM}:{sM+1}], 3, v4")
            A("v_mov_b32 v2, 0x3f803f80")
        kv_reads(0); kv_reads(1)
        for t in range(18):
            if t + 2 < 18:
                kv_reads(t + 2)
                W(10)
            else:
                W(5 * (17 - t))
            b = KFB + 12 * (t % 3)
            for ct in range(2):
                cc = "0" if t == 0 else v(KD[ct], 4)
                if which == "k": A(f"v_mfma_f32_16x16x32_bf16 {v(KD[ct],4)}, {v(b+4+4*ct,4)}, {v(b,4)}, {cc}")
                else: A(f"v_mfma_f32_16x16x32_bf16 {v(KD[ct],4)}, {v(b,4)}, {v(b+4+4*ct,4)}, {cc}")
        A("s_nop 6")
        A(f"v_cvt_pk_bf16_f32 v28, v{KD[0]}, v{KD[0]+1}")
        A(f"v_cvt_pk_bf16_f32 v29, v{KD[0]+2}, v{KD[0]+3}")
        A(f"v_cvt_pk_bf16_f32 v30, v{KD[1]}, v{KD[1]+1}")
        if which == "k":
            A(f"buffer_store_dwordx2 v[28:29], v16, {s(SKV,4)}, s{t2} offen{SC}")
            A("s_mov_b64 exec, 0xffff")
            A(f"buffer_store_dword v30, v17, {s(SKV,4)}, s{t4} offen offset:2240{SC}")
        else:
            A(f"v_cvt_pk_bf16_f32 v31, v{KD[1]+2}, v{KD[1]+3}")
            A(f"buffer_store_dwordx2 v[28:29], v16, {s(SKV,4)}, s{t2} offen offset:1024{SC}")
            A("v_cndmask_b32 v30, v30, v2, vcc")
            A("v_cndmask_b32 v31, v31, v2, vcc")
            A(f"s_mov_b64 exec, s[{sM}:{sM+1}]")
            A(f"buffer_store_dwordx2 v[30:31], v16, {s(SKV,4)}, s{t2} offen offset:{1024+256}{SC}")
        A("s_mov_b64 exec, -1")
        stamp('kvst')
        A("s_branch L_setup")
if W0FIRST:
    A("s_cbranch_scc0 L_bulk")
    emit_w0(); emit_bulk()
else:
    A("s_cbranch_scc1 L_w0")
    emit_bulk(); emit_w0()
def flag_code(first):
    A(f"s_getreg_b32 s{t0}, hwreg(HW_REG_XCC_ID, 0, 4)")
    A(f"s_mov_b32 s{sCNT}, 0")
    A("v_mov_b32 v6, 0")
    A(f"s_waitcnt vmcnt({first})")
    A("L_nonce:")
    A(f"v_readfirstlane_b32 s{sNL}, v{vN}")
    A(f"v_readfirstlane_b32 s{sNH}, v{vN+1}")
    A(f"s_add_u32 s{sCNT}, s{sCNT}, 1")
    A(f"s_cmp_gt_u32 s{sCNT}, {SPIN}")
    A("s_cbranch_scc1 L_gotnonce")
    A(f"s_cmp_lg_u32 s{sNL}, 0")
    A("s_cbranch_scc1 L_gotnonce")
    A(f"buffer_load_dwordx2 v[{vN}:{vN+1}], v6, {s(SDBG,4)}, 0 offen{SC}")
    A("s_waitcnt vmcnt(0)")
    A("s_branch L_nonce")
    A("L_gotnonce:")
    A(f"s_and_b32 s{sNH}, s{sNH}, 0x0fffffff")
    A(f"s_lshl_b32 s{t0}, s{t0}, 28")
    A(f"s_or_b32 s{sFAST}, s{sNH}, s{t0}")
    A(f"s_lshl_b32 s{t0}, s{sTB}, 8")
    A(f"s_lshl_b32 s{t1}, s{sKIND}, 7")
    A(f"s_add_u32 s{t0}, s{t0}, s{t1}")
    A(f"s_lshl_b32 s{t1}, s{sQT}, 3")
    A(f"s_add_u32 s{t0}, s{t0}, s{t1}")
    A(f"s_add_u32 s{t0}, s{t0}, {FLAG_OFF}")
    A(f"v_mov_b32 v4, s{sNL}")
    A(f"v_mov_b32 v5, s{sFAST}")
    A("s_mov_b64 exec, 1")
    A(f"buffer_store_dwordx2 v[4:5], v6, {s(SKV,4)}, s{t0} offen{SC}")
    A("s_mov_b64 exec, -1")
    stamp('flag')
A("L_flag:")
if FLAGAT < 0: flag_code(0)
A("s_setprio 0")
A("L_join:")
A(f"s_mul_i32 s{t2}, s{sW}, {4*912}")
A(f"s_mul_i32 s{t3}, s{sW}, {4*6912}")
wq_group(2)
A("s_barrier")
stamp('barA')
wq_mask(1)
for j in range(4): dma_wq(64 + j)
wq_mask(0)
if X2L:
    A(f"s_cmp_lt_u32 s{sW1}, 6")
    A("s_cbranch_scc0 L_nox2")
    for sg in range(6, 9): dma_x(sg, vXO)
    A("L_nox2:")
def poll_loads():
    A(f"buffer_load_dwordx4 {v(PF,4)}, v{vPA}, {s(SKV,4)}, 0 offen{SC}")
    A(f"s_movk_i32 s{t1}, 0x1000")
    A(f"buffer_load_dwordx4 {v(PF2,4)}, v{vPA}, {s(SKV,4)}, s{t1} offen{SC}")
PF, PF2, vT2 = 104, 108, 112
def dma_kv():
    A(f"s_mov_b32 m0, s{sKVO}")
    A(f"s_add_u32 s{t4}, s{sKVO}, 4096")
    A(f"buffer_load_dwordx4 v{vL16}, {s(SKV,4)}, s{sKVO} offen{SC} lds")
    A(f"s_mov_b32 s{sKVO}, s{t4}")
DD, DE, FB = 16, 80, 32
NST = 6 if KSPLIT else 12
NRD = 4 if KSPLIT else 3
NBUF, FSZ = (4, 12) if KSPLIT else (4, 8)
def q_reads(n):
    q, i = divmod(n, NST)
    b = FB + FSZ * (n % NBUF)
    t = 12 * q + (2 * i if KSPLIT else i)
    sg = t >> 2
    if t == 4:
        for u in range(4): A(f"v_subrev_u32 v{10+u}, 0x10000, v{10+u}")
    xo = 0 if sg == 0 else (sg - 1) * 8192
    off = GPOS[q] + (t % 12) * 2432
    wa = 14
    if off >= 32768: wa, off = 8, off - 32768
    A(f"ds_read_b64_tr_b16 {v(b,2)}, v{wa} offset:{off}")
    A(f"ds_read_b64_tr_b16 {v(b+2,2)}, v{wa} offset:{off+608}")
    if KSPLIT:
        A(f"ds_read_b128 {v(b+4,4)}, v{10 + (i & 1)} offset:{xo}")
        A(f"ds_read_b128 {v(b+8,4)}, v{12 + (i & 1)} offset:{xo}")
    else:
        A(f"ds_read_b128 {v(b+4,4)}, v{10 + (t & 3)} offset:{xo}")
POLLAT = opt('pollat', 6)
AHEAD = 3
ESYNC = opt('esync', 1)
def syncB():
    stamp('g0done')
    A(f"s_cmp_lt_u32 s{sW1}, 6")
    A("s_cbranch_scc1 L_w7")
    A("s_waitcnt vmcnt(4)")
    A("s_branch L_w4")
    A("L_w7:")
    A("s_waitcnt vmcnt(7)")
    A("L_w4:")
    A("s_barrier")
def syncC():
    stamp('g1done')
    A(f"s_cmp_lg_u32 s{sW}, 0")
    A("s_cbranch_scc1 L_polled")
    A(f"s_mov_b32 s{sCNT}, 0")
    A(f"s_mov_b32 s{t0}, 0x0fffffff")
    if POLLAT >= 12: poll_loads()
    A("L_poll:")
    A("s_waitcnt vmcnt(0)")
    A(f"v_xor_b32 v4, s{sNL}, v{PF}")
    A(f"v_xor_b32 v5, s{sNL}, v{PF+2}")
    A(f"v_xor_b32 v6, s{sNL}, v{PF+4}")
    A(f"v_or3_b32 v4, v4, v5, v6")
    A(f"v_xor_b32 v2, s{sNL}, v{PF+6}")
    A(f"v_xor_b32 v5, s{sFAST}, v{PF+1}")
    A(f"v_xor_b32 v6, s{sFAST}, v{PF+3}")
    A(f"v_or_b32 v{vT2}, v5, v6")
    A(f"v_xor_b32 v5, s{sFAST}, v{PF+5}")
    A(f"v_xor_b32 v6, s{sFAST}, v{PF+7}")
    A(f"v_or_b32 v{vT2+1}, v5, v6")
    A(f"v_or_b32 v5, v{vT2}, v{vT2+1}")
    A(f"v_and_b32 v5, s{t0}, v5")
    A(f"v_or3_b32 v4, v4, v2, v5")
    A(f"s_add_u32 s{sCNT}, s{sCNT}, 1")
    A(f"v_cmp_ne_u32 vcc, 0, v4")
    A(f"s_cmp_gt_u32 s{sCNT}, {SPIN}")
    A("s_cbranch_scc1 L_pollok")
    A("s_cbranch_vccz L_pollok")
    if opt('pmask', 1): A("s_mov_b64 exec, vcc")
    A(f"s_sleep {opt('psleep', 2)}")
    poll_loads()
    A("s_branch L_poll")
    A("L_pollok:")
    A("s_mov_b64 exec, -1")
    A(f"v_cmp_eq_u32 vcc, 0, v{vT2}")
    A(f"v_cmp_eq_u32 s[{sM}:{sM+1}], 0, v{vT2+1}")
    A(f"s_cmp_ge_u32 s{sTB}, 16")
    A(f"s_cselect_b64 s[{sM}:{sM+1}], s[{sM}:{sM+1}], vcc")
    A(f"s_and_b32 s{t0}, s{sTB}, 15")
    A(f"s_lshl_b32 s{t0}, s{t0}, 2")
    A(f"s_lshr_b64 s[{sM}:{sM+1}], s[{sM}:{sM+1}], s{t0}")
    A(f"s_and_b32 s{t0}, s{sM}, 15")
    A(f"v_mov_b32 v4, s{t0}")
    A(f"v_mov_b32 v5, s{sNL}")
    A(f"v_mov_b32 v6, s{sNH}")
    A(f"ds_write_b96 v{vFA}, v[4:6]")
    if DIAG: A(f"s_mov_b32 s69, s{sCNT}")
    A("L_polled:")
    A("s_waitcnt vmcnt(0) lgkmcnt(0)")
    stamp('g2landed')
    A("s_barrier")
    stamp('barC')
    A(f"buffer_load_dwordx4 {v(KF,4)}, v{AK}, {s(SKV,4)}, 0 offen{SC}")
    A(f"buffer_load_dword v{KR}, v{AR}, {s(SKV,4)}, 0 offen offset:2240{SC}")
assert not KSPLIT and not MERGEB
nkv = 0
for n in range(AHEAD): q_reads(n)
last = AHEAD - 1
for n in range(36):
    if ESYNC:
        nx = n + AHEAD
        if nx == 12: syncB()
        if nx == 24: syncC()
        if nx < 36:
            q_reads(nx); last = nx
            if nx == 24:
                dma_kv(); dma_kv(); nkv += 2
    else:
        if n in (12, 24):
            (syncB if n == 12 else syncC)()
            for m in range(n, n + AHEAD): q_reads(m)
            last = n + AHEAD - 1
            if n == 24:
                dma_kv(); dma_kv(); nkv += 2
        if (n % 12) + AHEAD < 12:
            q_reads(n + AHEAD); last = n + AHEAD
    W(NRD * (last - n))
    b = FB + FSZ * (n % NBUF)
    A(f"v_mfma_f32_32x32x16_bf16 {v(DD,16)}, {v(b,4)}, {v(b+4,4)}, {'0' if n == 0 else v(DD,16)}")
    if 0 < nkv < NPRE:
        dma_kv(); nkv += 1
    if n == FLAGAT:
        A(f"s_cmp_lg_u32 s{sW}, 0")
        A("s_cbranch_scc1 L_noflag")
        flag_code(4)
        A("L_noflag:")
    if n == 12 + POLLAT:
        A(f"s_cmp_lg_u32 s{sW}, 0")
        A("s_cbranch_scc1 L_nopoll")
        poll_loads()
        A("L_nopoll:")
assert nkv == NPRE
stamp('qproj')
def fK(t): return KFb if t & 1 else KF
def fR(t): return KRb if t & 1 else KR
def fV(t, m): return ((VF0b, VF1b) if t & 1 else (VF0, VF1))[m]
def rdK(t): A(f"ds_read_b128 {v(fK(t),4)}, v{AK} offset:{t*TILE_B}")
def rdR(t): A(f"ds_read_b32 v{fR(t)}, v{AR} offset:{t*TILE_B+2240}")
def rdV(t, m): A(f"ds_read_b128 {v(fV(t,m),4)}, v{AV} offset:{t*TILE_B+1024+608*m}")
def M16(sd): A(f"v_mfma_f32_32x32x16_bf16 {v(sd,16)}, {v(KF,4)}, {v(QM[0],4)}, 0")
def M8(sd): A(f"v_mfma_f32_32x32x8_bf16 {v(sd,16)}, {v(KR,2)}, {v(QR,2)}, {v(sd,16)}")
def M2B(sd, t): A(f"v_mfma_f32_32x32x4_2b_bf16 {v(sd,32)}, {v(fR(t),2)}, {v(QX2,2)}, 0")
def M16A(q, sd, t): A(f"v_mfma_f32_32x32x16_bf16 {v(sd,16)}, {v(fK(t),4)}, {v(QM[q],4)}, {v(sd,16)}")
def PV(q, m, sd, t=0): A(f"v_smfmac_f32_32x32x32_bf16 {v(OO[q],16)}, {v(fV(t,m),4)}, {v(sd+8*m,8)}, v{IDX}")
def EX(sd, a, b):
    for i in range(a, b): A(f"v_exp_f32 v{sd+i}, v{sd+i}")
def rowmax(sd, dst, tmp):
    A(f"v_max3_f32 v{dst}, v{sd}, v{sd+1}, v{sd+2}")
    for i in range(3, 15, 2): A(f"v_max3_f32 v{dst}, v{dst}, v{sd+i}, v{sd+i+1}")
    A(f"v_max_f32 v{dst}, v{dst}, v{sd+15}")
    A(f"v_mov_b32 v{tmp}, v{dst}")
    A("s_nop 1")
    A(f"v_permlane32_swap_b32 v{dst}, v{tmp}")
    A("s_nop 0")
    A(f"v_max_f32 v{dst}, v{dst}, v{tmp}")
def pair_wait(tag, flagoff, addr, dst):
    A(f"L_{tag}:")
    A(f"ds_read_b32 v2, v{vFP} offset:{flagoff}")
    for i in range(3): A(f"ds_read_b128 {v(dst+4*i,4)}, v{addr} offset:{1024*i}")
    A(f"s_add_u32 s{sCNT}, s{sCNT}, 1")
    W(3)
    A(f"v_readfirstlane_b32 s{t2}, v2")
    A(f"s_cmp_gt_u32 s{sCNT}, {SPIN * 16}")
    A(f"s_cbranch_scc1 L_{tag}ok")
    A(f"s_cmp_eq_u32 s{t2}, 1")
    A(f"s_cbranch_scc1 L_{tag}ok")
    W(0)
    A("s_sleep 1")
    A(f"s_branch L_{tag}")
    A(f"L_{tag}ok:")
A("v_mov_b32 v36, 0")
A("v_mov_b32 v37, 0")
A("v_mov_b32 v2, 1")
A(f"s_mov_b32 s{sCNT}, 0")
A(f"s_cmp_eq_u32 s{sPAR}, 1")
A("s_nop 5" if KSPLIT else "s_nop 6")
A("s_cbranch_scc1 L_qodd")
for par in range(2):
    if par == 1: A("L_qodd:")
    b = 2 * par
    r = 8 if par == 0 else 14
    if KSPLIT:
        A(f"ds_write_b128 v{vPW}, {v(DE+b,4)}")
        A(f"ds_write_b128 v{vPW}, {v(DE+b+4,4)} offset:1024")
        A("s_mov_b32 exec_hi, 0")
        A(f"ds_write_b128 v{vPW}, {v(DE+(r & ~3),4)} offset:2048")
        A("s_mov_b32 exec_hi, -1")
        W(0)
        A(f"ds_write_b32 v{vFO}, v2 offset:32")
        pair_wait(f"px{par}", 32, vPR, 48)
        W(1)
        for i in range(4): A(f"v_pk_add_f32 {v(DD+b+2*i,2)}, {v(DD+b+2*i,2)}, {v(48+2*i,2)}")
        W(0)
        A(f"v_pk_add_f32 {v(DD+r,2)}, {v(DD+r,2)}, {v(56+(r & 3),2)}")
    for i in range(4): A(f"v_pk_mul_f32 {v(DD+b+2*i,2)}, {v(DD+b+2*i,2)}, s[{sSC}:{sSC+1}]")
    A(f"v_pk_mul_f32 {v(DD+r,2)}, {v(DD+r,2)}, s[{sSC}:{sSC+1}]")
    for i in range(4): A(f"v_cvt_pk_bf16_f32 v{32+i}, v{DD+b+2*i}, v{DD+b+2*i+1}")
    A("s_mov_b32 exec_hi, 0")
    A(f"v_cvt_pk_bf16_f32 v36, v{DD+r}, v{DD+r+1}")
    if par == 0: A("s_branch L_qdone")
A("L_qdone:")
A("s_mov_b32 exec_hi, -1")
A(f"s_waitcnt vmcnt({NPRE})")
M16(SS[1]); M8(SS[1])
A(f"ds_write_b128 v{vQW}, v[32:35]")
for r in (AK, AV, AR): A(f"v_add_u32 v{r}, s{sHALF}, v{r}")
for i in range(8): A(f"v_mov_b32 v{SS[3]+8+i}, 0")
rowmax(SS[1], T0, T1)
A("s_mov_b32 exec_hi, 0")
A(f"v_cvt_pk_bf16_f32 v37, -v{T0}, 0")
A(f"ds_write_b64 v{vQWr}, v[36:37] offset:1024")
A("s_mov_b32 exec_hi, -1")
A(f"s_mov_b32 s{sCNT}, 0")
A(f"s_waitcnt vmcnt(0) lgkmcnt(0)")
A("s_barrier")
stamp('barD')
rdR(0)
A(f"ds_read_b64 {v(QX2,2)}, v{vQRr} offset:1024")
rdK(0)
A(f"ds_read_b128 {v(QM[0],4)}, v{vQR}")
A(f"ds_read_b128 {v(QM[1],4)}, v{vQR} offset:1280")
A(f"ds_read_b96 v[4:6], v{vFA}")
rdR(1); rdV(0, 0); rdV(0, 1); rdK(1); rdV(1, 0)
W(9)
M2B(SS[0], 0)
W(3)
A(f"v_readfirstlane_b32 s{sFAST}, v4")
A(f"v_readfirstlane_b32 s{sNL}, v5")
A(f"v_readfirstlane_b32 s{sNH}, v6")
A("s_nop 13")
M16A(0, SS[0], 0); M16A(1, SS[1], 0)
A("s_nop 8")
stamp('loop0')
def dma_wo(j):
    A(f"s_add_u32 m0, s{sWOM}, {(j % 6) * 7680 + (j // 6) * HALF_B}")
    A(f"s_add_u32 s{t4}, s{sWOS}, {j * 8 * 6912}")
    A(f"buffer_load_dwordx4 v{vWO}, {s(SWO,4)}, s{t4} offen lds")
def ostores(lo, hi, sc):
    A(f"buffer_store_dwordx4 {v(lo,4)}, v{vL16}, {s(SOI,4)}, s{sOW} offen{sc}")
    A("s_mov_b32 exec_hi, 0")
    A(f"buffer_store_dword v{hi}, v{vL16}, {s(SOI,4)}, s{sOR} offen{sc}")
    A("s_mov_b32 exec_hi, -1")
FAIR = [int(c, 16) for c in OPT.get('fair', '15')]
FH = opt('fh', 0)
if FH: FAIR = [int(c, 16) for c in OPT.get('fair', '15')]
PCNT = [0]
def oldprio(p):
    PCNT[0] += 1
    A(f"s_cbranch_vccz L_pr{PCNT[0]}")
    A(f"s_setprio {p}")
    A(f"L_pr{PCNT[0]}:")
def fair_at(h):
    low = (lambda x: x % 16 in FAIR) if FH else (lambda x: (x % 16) // 2 in FAIR)
    if FAIR and low(h) != low(h - 1): oldprio(0 if low(h) else 2)
def body(kind):
    for t in range(8):
        if kind == 'mid' and t == 2:
            A(f"s_cmp_lg_u32 s{sCNT}, 0")
            A("s_cbranch_scc1 L_nobar")
            A("s_waitcnt vmcnt(0)")
            A("s_barrier")
            A(f"s_cmp_lg_u32 s{sW}, 0")
            A("s_cbranch_scc1 L_nobar")
            A(f"v_mov_b32 v4, s{sNL}")
            A(f"v_mov_b32 v5, s{sNH}")
            A(f"s_lshl_b32 s{t0}, s{sHG}, 3")
            A(f"v_mov_b32 v6, s{t0}")
            A("s_mov_b64 exec, 1")
            A(f"buffer_store_dwordx2 v[4:5], v6, {s(SKV,4)}, s{sF2} offen{SC}")
            A("s_mov_b64 exec, -1")
            A("L_nobar:")
        kv = kind == 'kv' and t < 6
        wo = kind == 'wo' and t < 6
        def kvslot(f):
            if kv: A("s_add_u32 m0, m0, 4096")
            f()
            if kv: A(f"buffer_load_dwordx4 v{vL16}, {s(SKV,4)}, m0 offen{SC} lds")
        a0, b0 = SS[2*(t&1)], SS[2*(t&1)+1]
        a1, b1 = SS[2*(1-(t&1))], SS[2*(1-(t&1))+1]
        PV(1, 1, b1, t - 1); fair_at(2*t); EX(a0, 0, 4)
        kvslot(lambda: M2B(a1, t + 1))
        rdR(t + 2)
        if wo: dma_wo(2*t)
        if kind == 'kv' and t == 6: ostores(vPO, vPO, SC)
        EX(a0, 4, 12)
        PV(0, 0, a0, t); EX(a0, 12, 16)
        W(0); rdV(t + 1, 1)
        PV(0, 1, a0, t); fair_at(2*t + 1); EX(b0, 0, 4)
        kvslot(lambda: M16A(0, a1, t + 1))
        if wo: dma_wo(2*t + 1)
        EX(b0, 4, 8)
        M16A(1, b1, t + 1); EX(b0, 8, 12)
        PV(1, 0, b0, t); EX(b0, 12, 16)
        rdK(t + 2); rdV(t + 2, 0)
def bump():
    for r in (AK, AV, AR): A(f"v_add_u32 v{r}, {8*TILE_B}, v{r}")
if FAIR:
    A(f"s_cmp_lt_u32 s{sW}, 4")
    A("s_cselect_b64 vcc, -1, 0")
    A("s_setprio 1")
    oldprio(0 if (15 in FAIR if FH else 7 in FAIR) else 2)
A(f"s_sub_u32 m0, s{sKVO}, 4096")
body('kv')
bump()
A(".p2align 6")
A("L_loop:")
body('mid')
bump()
A(f"s_add_u32 s{sCNT}, s{sCNT}, 1")
A(f"s_cmp_lt_u32 s{sCNT}, 2")
A("s_cbranch_scc1 L_loop")
A("s_waitcnt vmcnt(0)")
A("s_barrier")
A(f"buffer_load_dwordx2 {v(vF2D,2)}, v{vF2}, {s(SKV,4)}, s{sF2} offen{SC}")
body('wo')
PV(1, 1, SS[3], 7)
stamp('loop1')
if FAIR: A("s_setprio 0")
O0 = OO[0]
A(f"s_mov_b32 s{t0}, {f32bits(2.0**-32):#x}")
A(f"s_mov_b32 s{t1}, {f32bits(2.0**64):#x}")
A(f"s_mov_b32 s{t4}, 0x7f800000")
A(f"s_mov_b32 s{sCNT}, 0")
A("s_nop 0")
A(f"s_cmp_eq_u32 s{sP}, 1")
A("s_cbranch_scc1 L_send0")
OB = 24; DO = 60
TORD = [0, 2, 4, 6, 1, 3, 5, 7, 8]
PACE = opt('pace', 3)
PRE0 = opt('pre0', 2)
SLOTS = (list(range(80, 120, 4)) + list(range(220, 256, 4)) + list(range(148, 176, 4)) + list(range(180, 212, 4)))[:opt('ns', 30) + 1]
seq = [(t, c) for t in TORD for c in range(5)]
def o_read(n):
    t, c = seq[n]
    b = SLOTS[n % len(SLOTS)]
    a0, a1, off = (WA[0], WA[1], t * 36 * 160) if t < 8 else (WA[2], WA[3], 0)
    A(f"ds_read_b64_tr_b16 {v(b,2)}, v{a0} offset:{off + 32*c}")
    A(f"ds_read_b64_tr_b16 {v(b+2,2)}, v{a1} offset:{off + 32*c}")
def oload(t):
    if t < 8:
        A(f"s_add_u32 s{t1}, s{sOLM}, {2048*t}")
        A(f"buffer_load_dwordx4 {v(OB+4*t,4)}, v{vOM}, {s(SOI,4)}, s{t1} offen{SC}")
    else:
        A(f"buffer_load_dwordx4 {v(OB+32,4)}, v{vOR}, {s(SOI,4)}, s{sOLR} offen{SC}")
def send(q):
    A(f"ds_write_b128 v{vCO}, {v(OO[q],4)}")
    A(f"ds_write_b128 v{vCO}, {v(OO[q]+4,4)} offset:1024")
    A("s_mov_b32 exec_hi, 0")
    A(f"ds_write_b128 v{vCO}, {v(OO[q]+8,4)} offset:2048")
    A("s_mov_b32 exec_hi, -1")
def normalise(o):
    A(f"v_rcp_f32 v{T0}, v{T0}")
    A("s_nop 0")
    A(f"v_mov_b32 v{T1}, v{T0}")
    for i in range(0, 10, 2): A(f"v_pk_mul_f32 {v(o+i,2)}, {v(o+i,2)}, {v(T0,2)}")
    for i in range(5): A(f"v_cvt_pk_bf16_f32 v{16+i}, v{o+2*i}, v{o+2*i+1}")
for kh in range(2):
    o = OO[kh]
    if kh == 0: A("s_nop 4")
    else: A("L_send0:")
    send(1 - kh)
    A("s_waitcnt vmcnt(0)")
    A(f"L_f2{kh}:")
    A(f"v_xor_b32 v{vF2D}, s{sNL}, v{vF2D}")
    A(f"v_xor_b32 v{vF2D+1}, s{sNH}, v{vF2D+1}")
    A(f"v_or_b32 v2, v{vF2D}, v{vF2D+1}")
    A("v_cmp_ne_u32 vcc, 0, v2")
    A(f"s_cbranch_vccnz L_f2retry{kh}")
    A(f"L_f2ok{kh}:")
    A(f"s_mov_b32 s{sCNT}, 0")
    W(0)
    A("s_barrier")
    stamp('comb')
    for i in range(3): A(f"ds_read_b128 {v(48+4*i,4)}, v{vCP} offset:{1024*i}")
    for n in range(PRE0): o_read(n)
    W(2 * PRE0 + 1)
    for i in range(0, 8, 2): A(f"v_pk_add_f32 {v(o+i,2)}, {v(o+i,2)}, {v(48+i,2)}")
    W(2 * PRE0)
    A("s_mov_b32 exec_hi, 0")
    for i in range(8, 12, 2): A(f"v_pk_add_f32 {v(o+i,2)}, {v(o+i,2)}, {v(48+i,2)}")
    A("s_mov_b32 exec_hi, -1")
    A(f"v_mov_b32 v{T0}, v{o+10}")
    A(f"v_mov_b32 v{T1}, v{o+10}")
    A(f"v_maximum3_f32 v{T2}, |v{o}|, |v{o+1}|, |v{o+2}|")
    A(f"v_maximum3_f32 v{T3}, |v{o+3}|, |v{o+4}|, |v{o+5}|")
    A(f"v_permlane32_swap_b32 v{T0}, v{T1}")
    A(f"v_maximum3_f32 v{T2}, v{T2}, |v{o+6}|, |v{o+7}|")
    A(f"v_maximum3_f32 v{T3}, v{T3}, |v{o+8}|, |v{o+9}|")
    A(f"v_cmp_nle_f32 vcc, s{t0}, v{T0}")
    A(f"v_cmp_nge_f32 s[{sM}:{sM+1}], s{t1}, v{T0}")
    A(f"v_maximum3_f32 v{T2}, v{T2}, v{T3}, v{T3}")
    A(f"s_or_b64 vcc, vcc, s[{sM}:{sM+1}]")
    A(f"v_cmp_ngt_f32 s[{sM}:{sM+1}], s{t4}, v{T2}")
    A(f"s_or_b64 vcc, vcc, s[{sM}:{sM+1}]")
    A(f"s_cbranch_vccnz L_slow{kh}")
    normalise(o)
    if kh == 0: A("s_branch L_fin")
A("L_fin:")
if opt('fast', 1):
    A(f"s_cmp_eq_u32 s{sFAST}, 15")
    A("s_cbranch_scc1 L_ofast")
    ostores(16, 20, SC)
    A("s_branch L_odone")
    A("L_ofast:")
    ostores(16, 20, "")
    A("L_odone:")
else:
    ostores(16, 20, SC)
stamp('ostore')
DELAY = opt('odelay', 6)
for n in range(PRE0, PRE0 + DELAY): o_read(n)
if opt('bare', 0): A("s_barrier")
for t in TORD[:PACE]: oload(t)
stamp('barE')
PRE = len(SLOTS) - 1
for n in range(PRE0 + DELAY, PRE): o_read(n)
issued = PRE
for n, (t, c) in enumerate(seq):
    k = n // 5
    if c == 0:
        A(f"L_ochk{k}:")
        A(f"s_waitcnt vmcnt({min(PACE - 1, 8 - k)})")
        A(f"v_max3_u32 v2, v{OB+4*t}, v{OB+4*t+1}, v{OB+4*t+2}")
        A(f"v_max_u32 v2, v2, v{OB+4*t+3}")
        A("v_cmp_eq_u32 vcc, -1, v2")
        A(f"s_cbranch_vccnz L_oretry{k}")
        A(f"L_ook{k}:")
        if k == 0: stamp('oready')
        if k + PACE < 9: oload(TORD[k + PACE])
    left = issued - 1 - n
    if n == 0 and PRE > 7: W(0)
    elif n >= PRE or PRE <= 7: W(min(2 * left, 15))
    cc = "0" if k == 0 else v(DO+4*c, 4)
    A(f"v_mfma_f32_16x16x32_bf16 {v(DO+4*c,4)}, {v(SLOTS[n % len(SLOTS)],4)}, {v(OB+4*t,4)}, {cc}")
    if issued < len(seq): o_read(issued); issued += 1
stamp('omfma')
A(f"s_cmp_eq_u32 s{sKH}, 0")
A("s_cbranch_scc0 L_ofin1")
for kh in range(2):
    keep, give = ((0, 1, 4), (2, 3)) if kh == 0 else ((2, 3), (0, 1, 4))
    if kh == 1: A("L_ofin1:")
    A("s_nop 5")
    for c in give: A(f"ds_write_b128 v{vRD}, {v(DO+4*c,4)} offset:{1024*c}")
    W(0)
    A("s_barrier")
    for c in keep: A(f"ds_read_b128 {v(80+4*c,4)}, v{vRD} offset:{1024*c}")
    if opt('wide', 1):
        c0 = keep[0]
        for n, c in enumerate(keep):
            W(len(keep)-1-n)
            for i in (0, 2): A(f"v_pk_add_f32 {v(DO+4*c+i,2)}, {v(DO+4*c+i,2)}, {v(80+4*c+i,2)}")
            A(f"v_cvt_pk_bf16_f32 v{16+2*n}, v{DO+4*c}, v{DO+4*c+1}")
            A(f"v_cvt_pk_bf16_f32 v{17+2*n}, v{DO+4*c+2}, v{DO+4*c+3}")
            if n == 1 and len(keep) == 2: A("s_nop 1")
            if n == len(keep) - 1:
                A("v_permlane16_swap_b32 v16, v18")
                A("v_permlane16_swap_b32 v17, v19")
                A(f"buffer_store_dwordx4 v[16:19], v{vOB}, {s(SOUT,4)}, s{sOUT} offen offset:{32*c0}")
                if c == 4:
                    A("s_mov_b32 exec_hi, 0")
                    A(f"buffer_store_dwordx2 v[20:21], v{vOA}, {s(SOUT,4)}, s{sOUT} offen offset:128")
    else:
        for n, c in enumerate(keep):
            W(len(keep)-1-n)
            for i in (0, 2): A(f"v_pk_add_f32 {v(DO+4*c+i,2)}, {v(DO+4*c+i,2)}, {v(80+4*c+i,2)}")
            A(f"v_cvt_pk_bf16_f32 v{DO+4*c}, v{DO+4*c}, v{DO+4*c+1}")
            A(f"v_cvt_pk_bf16_f32 v{DO+4*c+1}, v{DO+4*c+2}, v{DO+4*c+3}")
            if c == 4: A("s_mov_b32 exec_hi, 0")
            A(f"buffer_store_dwordx2 {v(DO+4*c,2)}, v{vOA}, {s(SOUT,4)}, s{sOUT} offen offset:{32*c}")
    if kh == 0: A("s_branch L_flush" if DIAG or ECHO else "s_endpgm")
if ECHO:
    a, b = ECHO.split(':')
    A("L_flush:")
    A("s_waitcnt vmcnt(0)")
    A("s_memrealtime s[80:81]")
    A("s_waitcnt lgkmcnt(0)")
    if b == 'end': A(f"s_sub_u32 s82, s80, s{ECHOREG[a]}")
    elif a == b: A("s_mov_b32 s82, 0")
    else: A(f"s_sub_u32 s82, s{ECHOREG[b]}, s{ECHOREG[a]}")
    A("s_min_u32 s82, s82, 20000")
    A("s_mov_b32 s83, s80")
    A("L_echo:")
    A("s_memrealtime s[80:81]")
    A("s_waitcnt lgkmcnt(0)")
    A("s_sub_u32 s81, s80, s83")
    A("s_cmp_lt_u32 s81, s82")
    A("s_cbranch_scc1 L_echo")
if DIAG:
    A("L_flush:")
    A("s_mov_b64 exec, -1")
    stamp('stored')
    A("s_waitcnt vmcnt(0)")
    A("s_memtime s[80:81]")
    A("s_memrealtime s[82:83]")
    A("s_waitcnt lgkmcnt(0)")
    A(f"v_writelane_b32 v{VST}, s80, 30")
    A(f"v_writelane_b32 v{VST}, s82, 31")
    A(f"v_writelane_b32 v{VST}, s{sCNT}, 29")
    A(f"v_writelane_b32 v{VST}, s69, 28")
    A(f"v_writelane_b32 v{VST}, s{sFAST}, 27")
    A(f"s_add_u32 s96, s18, 0x400000")
    A(f"s_addc_u32 s97, s19, 0")
    A("s_mov_b32 s98, 0x80000")
    A("s_mov_b32 s99, 0x00020000")
    A(f"s_lshl_b32 s{t0}, s2, 3")
    A(f"s_add_u32 s{t0}, s{t0}, s{sW}")
    A(f"s_lshl_b32 s{t0}, s{t0}, 7")
    A("s_mov_b32 exec_hi, 0")
    A("v_lshlrev_b32 v2, 2, v1")
    A(f"buffer_store_dword v{VST}, v2, s[96:99], s{t0} offen")
A("L_end:")
A("s_endpgm")
for k in range(9):
    A(f"L_oretry{k}:")
    A(f"s_add_u32 s{sCNT}, s{sCNT}, 1")
    A(f"s_cmp_gt_u32 s{sCNT}, {SPIN}")
    A(f"s_cbranch_scc1 L_ook{k}")
    A("s_waitcnt vmcnt(0)")
    for u in TORD[k:k + PACE]: oload(u)
    A(f"s_branch L_ochk{k}")
for kh in range(2):
    A(f"L_f2retry{kh}:")
    A(f"s_add_u32 s{sCNT}, s{sCNT}, 1")
    A(f"s_cmp_gt_u32 s{sCNT}, {SPIN}")
    A(f"s_cbranch_scc1 L_f2ok{kh}")
    A("s_sleep 2")
    A(f"buffer_load_dwordx2 {v(vF2D,2)}, v{vF2}, {s(SKV,4)}, s{sF2} offen{SC}")
    A("s_waitcnt vmcnt(0)")
    A(f"s_branch L_f2{kh}")
A("L_slow1:")
for i in range(4): A(f"v_mov_b32 v{QM[0]+i}, v{QM[1]+i}")
A("L_slow0:")
W(0)
MM = 9
A(f"s_add_u32 s{t0}, s{sHALF}, {24*TILE_B}")
for r in (AK, AV, AR): A(f"v_subrev_u32 v{r}, s{t0}, v{r}")
A(f"v_mov_b32 v{QR}, v{QX2}")
A(f"v_mov_b32 v{QR+1}, 0")
A(f"s_cmp_eq_u32 s{sP}, 1")
A(f"s_cselect_b64 vcc, -1, 0")
A(f"v_permlane32_swap_b32 v{QR}, v{QX2}")
A("s_nop 1")
A(f"v_cndmask_b32 v{QR}, v{QR}, v{QX2}, vcc")
A("s_mov_b32 exec_lo, 0")
A(f"v_mov_b32 v{QR}, 0")
A("s_mov_b32 exec_lo, -1")
A(f"v_mov_b32 v{MM}, 0xff800000")
for i in range(16): A(f"v_mov_b32 v{O0+i}, 0")
A(f"s_mov_b32 s{t1}, 0")
A("L_sloop:")
A(f"buffer_load_dwordx4 {v(KF,4)}, v{AK}, {s(SKV,4)}, s{t1} offen{SC}")
A(f"buffer_load_dword v{KR}, v{AR}, {s(SKV,4)}, s{t1} offen offset:2240{SC}")
A(f"buffer_load_dwordx4 {v(VF0,4)}, v{AV}, {s(SKV,4)}, s{t1} offen offset:1024{SC}")
A(f"buffer_load_dwordx4 {v(VF1,4)}, v{AV}, {s(SKV,4)}, s{t1} offen offset:1632{SC}")
A("s_waitcnt vmcnt(0)")
M16(SS[0]); M8(SS[0])
A("s_nop 11")
rowmax(SS[0], T0, T1)
A(f"v_max_f32 v{T0}, v{T0}, v{MM}")
A(f"v_sub_f32 v{T1}, v{MM}, v{T0}")
A(f"v_exp_f32 v{T1}, v{T1}")
A(f"v_mov_b32 v{MM}, v{T0}")
for i in range(16): A(f"v_mul_f32 v{O0+i}, v{O0+i}, v{T1}")
for i in range(16): A(f"v_sub_f32 v{SS[0]+i}, v{SS[0]+i}, v{T0}")
EX(SS[0], 0, 16)
A("s_nop 1")
PV(0, 0, SS[0]); PV(0, 1, SS[0])
A(f"s_add_u32 s{t1}, s{t1}, {TILE_B}")
A(f"s_cmp_lt_u32 s{t1}, {KV_B}")
A("s_cbranch_scc1 L_sloop")
A("s_nop 11")
A(f"v_mov_b32 v{T0}, v{O0+10}")
A(f"v_mov_b32 v{T1}, v{O0+10}")
A("s_nop 1")
A(f"v_permlane32_swap_b32 v{T0}, v{T1}")
A(f"s_mov_b32 s{t0}, 0xfffffffe")
normalise(O0)
for i in range(5): A(f"v_min_u32 v{16+i}, s{t0}, v{16+i}")
A("s_branch L_fin")
A("L_codeend:")
kernel_desc(A, NAME, NVGPR, 102)

HEADER = open('standalone__grouped_kv_mqa__prompt.s.ref').read().split('\n')
hdr = [l for l in HEADER if l.startswith(';') and '@launch' not in l]
out = "\n".join(hdr) + "\n; @launch grid=(256,1,1) block=(512,1,1) lds=163840\n" + A.text()
path = [a for a in sys.argv[1:] if a.endswith('.s')]
path = path[0] if path else 'standalone__grouped_kv_mqa__prompt.s'
open(path, 'w').write(out)
if DIAG: open(path + '.stamps', 'w').write(' '.join(STAMPS))
print("wrote", path, len(out))
```

```python
import sys, struct, math
sys.path.insert(0, 'work')
from gen_common import *

OPT = dict(a.split('=') for a in sys.argv[1:] if '=' in a)
def opt(k, d): return type(d)(OPT.get(k, d))
S_, D_, H_, DH = 2048, 576, 32, 18
ROWB = D_ * 2
TILE_B = 2368
KV_B = 64 * TILE_B
HALF_B = 32 * TILE_B
FLAG_OFF, FLAG2_OFF, OIMG_OFF = 0x30000, 0x28000, 0x40000
REPL = None
OHALF_B = 36864
OIMG_B = 64 * OHALF_B
CSCALE = (DH ** -0.5) * math.log2(math.e)
def f32bits(x): return struct.unpack('<I', struct.pack('<f', x))[0]
def nib(tab): return sum(t << (4 * i) for i, t in enumerate(tab))
DIAG = 'diag' in sys.argv
ECHO = OPT.get('echo')
SC = " sc1"
NAME = "standalone__grouped_kv_mqa__prompt_kernel"
SPIN = 0x20000
REPL = opt('repl', 1)

A = Asm()
VST = 120
STAMPS = []
ECHOREG = {}
if ECHO:
    ea, eb = ECHO.split(':')
    ECHOREG = {ea: 69, eb: 93} if ea != eb else {ea: 69}
def stamp(name, real=False):
    if ECHO and name in ECHOREG:
        A("s_memrealtime s[80:81]")
        A("s_waitcnt lgkmcnt(0)")
        A(f"s_mov_b32 s{ECHOREG[name]}, s80")
        if ECHOREG[name] == 69: A("s_mov_b32 s93, s80")
    if DIAG:
        if name in STAMPS: i = STAMPS.index(name)
        else: i = len(STAMPS); STAMPS.append(name)
        assert i < 27
        A(f"s_mem{'real' if real else ''}time s[80:81]")
        A("s_waitcnt lgkmcnt(0)")
        A(f"v_writelane_b32 v{VST}, s80, {i}")

SX, SWQ, SWKV, SKV, SOI, SWO, SOUT, SDBG = 20, 24, 28, 32, 36, 40, 44, 48
sW, sTB, sHG, sQT, sKIND, sHL, sP = 52, 53, 54, 55, 56, 57, 58
t0, t1, t2, t3, t4, t5 = 59, 60, 61, 62, 63, 64
sKVO, sCNT, sOW, sOR = 65, 66, 67, 68
sXM, sXS, sNL, sNH, sFAST, sPAR = 70, 71, 72, 73, 74, 75
sM = 76
sF2, sWOM, sWOS, sHALF, sOLM, sOLR, sOUT, sKH, sW1 = 84, 85, 86, 87, 88, 89, 90, 91, 92
sSC = 94
sGW, sGX = [96, 97, 98], [99, 100, 101]
WKVB, XB, QXB = 29184, 87552, 153088
GPOS = [0, 58368, 29184]
PXB = 104448
FASTB = QXB + 10240
PFLG = FASTB + 32
CMB = 46336
def slot(sg): return (sg + 8) % 9
NPRE = 7
vXO, vWQ, vWK, vL16 = 3, 7, 9, 15
vN, PF = 118, 112
AK, AV, AR, IDX, vWO = 124, 125, 126, 127, 128
vQW, vQWr, vQR, vQRr, vFA, vCO, vCP = 129, 130, 131, 132, 133, 134, 135
WA = [136, 137, 138, 139]
vRD, vOA, vOM, vOR, vPA, vFO, vFP, vPW = 140, 141, 142, 143, 144, 145, 146, 147
VF1, VF0, KF, KR = 148, 152, 156, 160
VF1b, VF0b, KFb, KRb = 164, 168, 172, 176
vF2, vT = 178, 179
QM = [32, 40]; QR = 36; QX2 = 46
SS = [48, 64, 80, 96]
OO = [180, 196]
vPO, vF2D, vPR, vOB = 212, 216, 218, 219
NVGPR = 256
T0, T1, T2, T3 = 4, 5, 6, 8
KSPLIT = opt('ksplit', 0)
MERGEB = opt('mergeb', 0)
X2L = opt('x2l', 0)
FLAGAT = opt('flagat', -1)

def W(n): A(f"s_waitcnt lgkmcnt({n})")
def cpf():
    A.c("pull the kernel's own code into L2: one dword per 128-B line")
    A("s_getpc_b64 s[78:79]")
    A("L_pc:")
    A(f"s_sub_u32 s78, s78, L_pc-{NAME}")
    A("s_subb_u32 s79, s79, 0")
    A("v_lshlrev_b32 v4, 7, v1")
    A("v_mov_b32 v5, s79")
    A("v_add_co_u32 v4, vcc, s78, v4")
    A("s_nop 1")
    A("v_addc_co_u32 v5, vcc, 0, v5, vcc")
    for k in range(3):
        A(f"v_cmp_gt_u32 vcc, (L_codeend-{NAME}-{8192*k}+127)/128, v1")
        A("s_and_b64 exec, exec, vcc")
        A(f"global_load_dword v{16+k}, v[4:5], off")
        A("s_mov_b64 exec, -1")
        if k < 2:
            A("v_add_co_u32 v4, vcc, 0x2000, v4")
            A("s_nop 1")
            A("v_addc_co_u32 v5, vcc, 0, v5, vcc")
def dma_x(sg, vreg, extra=0, sreg=None):
    A(f"s_add_u32 m0, s{sXM}, {slot(sg) * 8192 - (sg % 3) * 128 + extra}")
    A(f"s_add_u32 s{t0}, s{sXS if sreg is None else sreg}, s{sGX[sg // 3]}")
    A(f"buffer_load_dwordx4 v{vreg}, {s(SX,4)}, s{t0} offen offset:{(sg % 3)*128} lds")
def wq_group(q): A(f"s_add_u32 s{t5}, s{t3}, s{sGW[q]}")
def dma_wq(i):
    A(f"s_add_u32 m0, s{t2}, {GPOS[i // 32] + (i % 32) * 912}")
    A(f"s_add_u32 s{t0}, s{t5}, {(i % 32) * 6912}")
    A(f"buffer_load_dwordx4 v{vWQ}, {s(SWQ,4)}, s{t0} offen lds")
def wq_mask(on): A(f"s_mov_b32 exec_hi, {(1 << 25) - 1:#x}" if on else "s_mov_b32 exec_hi, -1")

def setup():
    A(f"s_lshr_b32 s{sKH}, s{sW}, 2")
    A(f"s_and_b32 s{sPAR}, s{sHL}, 1")
    A(f"s_mul_i32 s{sHALF}, s{sP}, {HALF_B}")
    A.c("fragment addresses for the Q projection: v10..13 x, v14 / v8 wq")
    A("v_and_b32 v4, 31, v1")
    A("v_lshrrev_b32 v5, 1, v4")
    A("v_and_b32 v5, 7, v5")
    A("v_lshrrev_b32 v6, 5, v1")
    if KSPLIT:
        A(f"s_lshl_b32 s{t0}, s{sP}, 1")
        A(f"v_add_u32 v6, s{t0}, v6")
        A("v_xor_b32 v8, v6, v5")
        A("v_lshlrev_b32 v8, 4, v8")
        A("v_lshl_add_u32 v8, v4, 7, v8")
        A(f"s_lshl_b32 s{t0}, s{sP}, 12")
        A(f"s_add_u32 s{t0}, s{t0}, {XB + 65536}")
        A(f"v_add_u32 v10, s{t0}, v8")
        A("v_xor_b32 v11, 64, v10")
        A(f"s_lshl_b32 s{t0}, s{sP}, 13")
        A(f"s_sub_u32 s{t0}, 0x1000, s{t0}")
        A(f"v_add_u32 v12, s{t0}, v10")
        A(f"v_add_u32 v13, s{t0}, v11")
        A("v_lshrrev_b32 v6, 5, v1")
    else:
        A(f"s_lshl_b32 s{t0}, s{sP}, 5")
        A(f"v_add_u32 v4, s{t0}, v4")
        for u in range(4):
            A(f"v_add_u32 v8, {2*u}, v6")
            A("v_xor_b32 v8, v8, v5")
            A("v_lshlrev_b32 v8, 4, v8")
            A(f"v_lshl_add_u32 v{10+u}, v4, 7, v8")
            A(f"v_add_u32 v{10+u}, {XB + 65536}, v{10+u}")
    A("v_mul_u32_u24 v4, 1216, v6")
    A("v_bfe_u32 v5, v1, 3, 1")
    A("v_mul_u32_u24 v5, 304, v5")
    A("v_add_u32 v4, v4, v5")
    A("v_bfe_u32 v5, v1, 2, 1")
    A("v_mul_u32_u24 v5, 144, v5")
    A("v_add_u32 v4, v4, v5")
    A("v_and_b32 v5, 3, v1")
    A("v_bfe_u32 v8, v1, 4, 1")
    A("v_lshl_add_u32 v5, v8, 2, v5")
    A("v_lshlrev_b32 v5, 2, v5")
    A(f"s_mov_b32 s{t0}, {nib([0,2,1,3,4,0,0,0]):#x}")
    A(f"s_mov_b32 s{t1}, {nib([0,2,1,3,2,4,4,0]):#x}")
    A(f"s_cmp_eq_u32 s{sPAR}, 1")
    A(f"s_cselect_b32 s{t0}, s{t1}, s{t0}")
    A(f"s_mul_i32 s{t1}, s{sHL}, 36")
    A(f"s_and_b32 s{t1}, s{t1}, 0xf8")
    if KSPLIT:
        A(f"s_mul_i32 s{t4}, s{sP}, 2432")
        A(f"s_add_u32 s{t1}, s{t1}, s{t4}")
    A(f"v_lshrrev_b32 v5, v5, s{t0}")
    A("v_and_b32 v5, 15, v5")
    A("v_lshl_add_u32 v14, v5, 3, v4")
    A(f"v_add_u32 v14, s{t1}, v14")
    A(f"v_add_u32 v8, 0x8000, v14")
    A.c("K/V stream")
    A(f"s_mul_i32 s{sKVO}, s{sP}, 74")
    A(f"s_add_u32 s{sKVO}, s{sKVO}, s{sHL}")
    A(f"s_lshl_b32 s{sKVO}, s{sKVO}, 10")
    A(f"s_mov_b32 s{sSC}, {f32bits(CSCALE):#x}")
    A(f"s_mov_b32 s{sSC+1}, {f32bits(CSCALE):#x}")
    A("v_lshrrev_b32 v4, 1, v1")
    A("v_lshlrev_b32 v4, 7, v4")
    A("v_and_b32 v5, 1, v1")
    A(f"v_lshl_add_u32 v{vPA}, v5, 4, v4")
    A(f"v_add_u32 v{vPA}, {FLAG_OFF}, v{vPA}")
    A.c("main-loop LDS addresses")
    A("v_and_b32 v4, 31, v1")
    A(f"v_lshlrev_b32 v{AR}, 2, v4")
    A("v_lshrrev_b32 v5, 2, v4")
    A("v_lshlrev_b32 v5, 2, v5")
    A(f"s_mov_b32 s{t0}, {nib([0,3,1,2,4,0,0,0]):#x}")
    A(f"v_lshrrev_b32 v5, v5, s{t0}")
    A("v_and_b32 v5, 15, v5")
    A("v_and_b32 v6, 3, v4")
    A("v_lshl_add_u32 v5, v5, 2, v6")
    A("v_lshrrev_b32 v6, 5, v1")
    A("v_mul_u32_u24 v2, 304, v6")
    A(f"v_lshl_add_u32 v{AV}, v5, 4, v2")
    A("v_mov_b32 v2, 0x80000")
    A("v_cmp_gt_u32 vcc, 19, v4")
    A(f"v_mov_b32 v{IDX}, 0xdddd")
    A(f"v_mov_b32 v{AK}, v{vL16}")
    A(f"v_cndmask_b32 v{AV}, v2, v{AV}, vcc")
    A(f"v_mov_b32 v{KR+1}, 0x3f803f80")
    A(f"v_mov_b32 v{KRb+1}, 0x3f803f80")
    A("v_mov_b32 v4, 0")
    A("v_mov_b32 v5, 0")
    for i in range(0, 4, 2): A(f"v_pk_mov_b32 {v(VF1b+i,2)}, v[4:5], v[4:5]")
    for i in range(0, 32, 2): A(f"v_pk_mov_b32 {v(OO[0]+i,2)}, v[4:5], v[4:5]")
    A.c("Q exchange, flags")
    A(f"s_mul_i32 s{t1}, s{sW}, 1280")
    A(f"s_add_u32 s{t1}, s{t1}, {QXB}")
    A(f"v_add_u32 v{vQW}, s{t1}, v{vL16}")
    A(f"v_lshl_add_u32 v{vQWr}, v1, 3, s{t1}")
    A(f"s_and_b32 s{t1}, s{sW}, 6")
    A(f"s_mul_i32 s{t1}, s{t1}, 1280")
    A(f"s_add_u32 s{t1}, s{t1}, {QXB}")
    A(f"v_add_u32 v{vQR}, s{t1}, v{vL16}")
    A(f"v_lshl_add_u32 v{vQRr}, v1, 3, s{t1}")
    A(f"v_lshl_add_u32 v{vQRr}, v6, 10, v{vQRr}")
    A(f"v_mov_b32 v{vFA}, {FASTB}")
    A(f"s_lshl_b32 s{t0}, s{sW}, 2")
    A(f"s_add_u32 s{t0}, s{t0}, {PFLG}")
    A(f"v_mov_b32 v{vFO}, s{t0}")
    A(f"v_xor_b32 v{vFP}, 4, v{vFO}")
    A(f"ds_write2_b32 v{vFO}, v4, v4 offset0:0 offset1:8")
    A(f"s_mul_i32 s{t0}, s{sW}, 2560")
    A(f"s_add_u32 s{t0}, s{t0}, {PXB}")
    A(f"v_add_u32 v{vPW}, s{t0}, v{vL16}")
    A(f"s_xor_b32 s{t0}, s{sW}, 1")
    A(f"s_mul_i32 s{t0}, s{t0}, 2560")
    A(f"s_add_u32 s{t0}, s{t0}, {PXB}")
    A(f"v_add_u32 v{vPR}, s{t0}, v{vL16}")
    A.c("O image, wo stream")
    A(f"s_lshl_b32 s{t0}, s{sTB}, 1")
    A(f"s_add_u32 s{t0}, s{t0}, s{sP}")
    A(f"s_mul_i32 s{t0}, s{t0}, {OHALF_B}")
    A(f"s_lshl_b32 s{t1}, s{sHG}, 2")
    A(f"s_add_u32 s{t1}, s{t1}, s{sHL}")
    A(f"s_lshl_b32 s{t1}, s{t1}, 10")
    A(f"s_add_u32 s{sOW}, s{t0}, s{t1}")
    A(f"s_and_b32 s{t1}, s{sHG}, 1")
    A(f"s_lshl_b32 s{t1}, s{t1}, 1")
    A(f"s_xor_b32 s{t1}, s{t1}, s{sHL}")
    A(f"s_lshl_b32 s{t1}, s{t1}, 2")
    A(f"s_lshl_b32 s{t4}, s{sHG}, 9")
    A(f"s_add_u32 s{t1}, s{t1}, s{t4}")
    A(f"s_add_u32 s{t1}, s{t1}, s{t0}")
    A(f"s_add_u32 s{sOR}, s{t1}, 32768")
    A(f"s_and_b32 s{t4}, s{sW}, 3")
    A(f"s_mul_i32 s{sWOM}, s{sW}, 960")
    A(f"s_mul_i32 s{sWOS}, s{sW}, 6912")
    for i in range(4): A(f"v_mov_b32 v{vPO+i}, -1")
    A(f"v_and_b32 v{vF2}, 7, v1")
    A(f"v_lshlrev_b32 v{vF2}, 3, v{vF2}")
    A(f"s_lshl_b32 s{sF2}, s{sTB}, 7")
    A(f"s_add_u32 s{sF2}, s{sF2}, {FLAG2_OFF}")
    mul, sh = magic_div(10, 64)
    A(f"v_mul_u32_u24 v4, {mul}, v1")
    A(f"v_lshrrev_b32 v4, {sh}, v4")
    A("v_mul_u32_u24 v5, 10, v4")
    A("v_sub_u32 v5, v1, v5")
    A("v_min_u32 v5, 8, v5")
    A(f"v_mul_u32_u24 v{vWO}, {ROWB}, v4")
    A(f"v_lshl_add_u32 v{vWO}, v5, 4, v{vWO}")
    A(f"v_add_u32 v{vWO}, s{sOUT}, v{vWO}")
    A(f"s_mul_i32 s{t0}, s{sHL}, 2560")
    A(f"s_add_u32 s{t0}, s{t0}, {CMB}")
    A(f"s_add_u32 s{t1}, s{sHALF}, s{t0}")
    A(f"v_add_u32 v{vCO}, s{t1}, v{vL16}")
    A(f"s_sub_u32 s{t1}, {HALF_B}, s{sHALF}")
    A(f"s_add_u32 s{t1}, s{t1}, s{t0}")
    A(f"v_add_u32 v{vCP}, s{t1}, v{vL16}")
    A.c("output projection (tt = w&3, kh = w>>2)")
    A("v_and_b32 v6, 15, v1")
    A("v_lshrrev_b32 v5, 4, v1")
    A(f"s_lshl_b32 s{t0}, s{sP}, 4")
    A(f"v_add_u32 v2, s{t0}, v6")
    A("v_lshlrev_b32 v2, 4, v2")
    A(f"v_lshl_add_u32 v{vOR}, v5, 9, v2")
    A(f"v_lshrrev_b32 v{vT}, 5, v1")
    A("v_bfe_u32 v4, v1, 4, 1")
    A(f"v_lshl_add_u32 v{vOM}, v{vT}, 10, v2")
    A(f"v_lshl_add_u32 v{vOM}, v4, 9, v{vOM}")
    A(f"s_lshl_b32 s{t0}, s{sTB}, 1")
    A(f"s_add_u32 s{t0}, s{t0}, s{sPAR}")
    A(f"s_mul_i32 s{t0}, s{t0}, {OHALF_B}")
    A(f"s_lshl_b32 s{t1}, s{sKH}, 14")
    A(f"s_add_u32 s{sOLM}, s{t0}, s{t1}")
    A(f"s_lshl_b32 s{t1}, s{sKH}, 11")
    A(f"s_add_u32 s{sOLR}, s{t0}, s{t1}")
    A(f"s_add_u32 s{sOLR}, s{sOLR}, 32768")
    A(f"s_lshl_b32 s{t0}, s{sTB}, 6")
    A(f"s_lshl_b32 s{t1}, s{t4}, 4")
    A(f"s_add_u32 s{t0}, s{t0}, s{t1}")
    A(f"v_add_u32 v6, s{t0}, v6")
    A(f"v_mul_u32_u24 v6, {ROWB}, v6")
    A(f"v_lshl_add_u32 v{vOA}, v5, 3, v6")
    A(f"v_lshl_add_u32 v{vOB}, v4, 5, v6")
    A(f"v_lshl_add_u32 v{vOB}, v{vT}, 4, v{vOB}")
    A(f"s_mul_i32 s{t0}, s{sPAR}, {HALF_B}")
    A(f"s_mul_i32 s{t1}, s{sP}, 5120")
    A(f"s_add_u32 s{t0}, s{t0}, s{t1}")
    A(f"s_add_u32 s{t0}, s{t0}, {24*TILE_B}")
    A(f"v_add_u32 v{vRD}, s{t0}, v{vL16}")
    A("v_bfe_u32 v2, v1, 2, 2")
    A(f"v_mul_u32_u24 v6, 18, v{vT}")
    A("v_add_u32 v6, v6, v2")
    A(f"v_mul_u32_u24 v{WA[0]}, 12, v4")
    A(f"v_lshl_add_u32 v{WA[1]}, v4, 2, 4")
    A(f"v_add_u32 v{WA[0]}, v6, v{WA[0]}")
    A(f"v_add_u32 v{WA[1]}, v6, v{WA[1]}")
    A("v_mul_u32_u24 v6, 72, v5")
    A(f"v_and_b32 v{vT}, 1, v2")
    A(f"v_add3_u32 v6, v6, v{vT}, 16")
    A("v_lshrrev_b32 v2, 1, v2")
    A("v_lshl_add_u32 v2, v4, 1, v2")
    A(f"v_xor_b32 v{vT}, 2, v2")
    A(f"v_mad_u32_u24 v{WA[2]}, v2, 18, v6")
    A(f"v_mad_u32_u24 v{WA[3]}, v{vT}, 18, v6")
    A("v_and_b32 v2, 3, v1")
    A("v_lshlrev_b32 v2, 3, v2")
    A(f"s_mul_i32 s{t0}, s{sKH}, {HALF_B}")
    A(f"v_add_u32 v2, s{t0}, v2")
    A(f"s_movk_i32 s{t0}, 160")
    for i in range(4): A(f"v_mad_u32_u24 v{WA[i]}, v{WA[i]}, s{t0}, v2")

A('.amdgcn_target "amdgcn-amd-amdhsa--gfx950"')
kernel_begin(A, NAME)
A("s_cmp_ge_u32 s2, 256")
A("s_cbranch_scc1 L_end")
if DIAG: A(f"v_mov_b32 v{VST}, 0")
stamp('entry'); stamp('rt0', True)
A("s_load_dwordx16 s[4:19], s[0:1], 0")
A("v_and_b32 v1, 63, v0")
A("v_lshrrev_b32 v2, 6, v0")
A(f"s_and_b32 s{sTB}, s2, 7")
A(f"v_readfirstlane_b32 s{sW}, v2")
A(f"s_lshr_b32 s{t1}, s2, 6")
A(f"s_lshl_b32 s{t0}, s{t1}, 3")
A(f"s_cmp_lg_u32 s{sW}, {opt('cpfw', 7)}")
A("s_cbranch_scc1 L_nocpf")
cpf()
A("L_nocpf:")
A(f"s_add_u32 s{sTB}, s{sTB}, s{t0}")
A(f"s_lshr_b32 s{sHG}, s2, 3")
A(f"s_and_b32 s{sHG}, s{sHG}, 7")
A(f"s_and_b32 s{sQT}, s{sHG}, 3")
A(f"s_lshr_b32 s{sKIND}, s{sHG}, 2")
A.c("k-group rotation: workgroups that share lines start on different groups")
A(f"s_add_u32 s{t1}, s{t1}, s{sHG}")
A(f"s_mul_i32 s{t2}, s{t1}, 11")
A(f"s_lshr_b32 s{t2}, s{t2}, 5")
A(f"s_mul_i32 s{t2}, s{t2}, 3")
A(f"s_sub_u32 s{t1}, s{t1}, s{t2}")
assert all((n * 11 >> 5) == n // 3 for n in range(11))
for q in range(3):
    A(f"s_mul_i32 s{sGW[q]}, s{t1}, {192*ROWB}")
    A(f"s_mul_i32 s{sGX[q]}, s{t1}, 384")
    if q < 2:
        A(f"s_add_u32 s{t1}, s{t1}, 1")
        A(f"s_cmp_eq_u32 s{t1}, 3")
        A(f"s_cselect_b32 s{t1}, 0, s{t1}")
A("v_lshrrev_b32 v4, 3, v1")
A("v_lshrrev_b32 v5, 4, v1")
A("v_and_b32 v6, 7, v1")
A("v_xor_b32 v5, v5, v6")
A("v_lshlrev_b32 v5, 4, v5")
A(f"s_lshl_b32 s{t0}, s{sTB}, 6")
A(f"v_add_u32 v4, s{t0}, v4")
A(f"v_mul_u32_u24 v{vXO}, {ROWB}, v4")
A(f"v_add_u32 v{vXO}, v{vXO}, v5")
A(f"v_lshlrev_b32 v{vL16}, 4, v1")
A(f"s_lshr_b32 s{sHL}, s{sW}, 1")
A(f"s_and_b32 s{sP}, s{sW}, 1")
A(f"s_sub_u32 s{sW1}, s{sW}, 1")
A(f"s_cmp_eq_u32 s{sW}, 0")
def late_common():
    mul, sh = magic_div(19, 64)
    A(f"v_mul_u32_u24 v4, {mul}, v1")
    A(f"v_lshrrev_b32 v4, {sh}, v4")
    A("v_mul_u32_u24 v5, 19, v4")
    A("v_sub_u32 v5, v1, v5")
    A("v_min_u32 v5, 17, v5")
    A("v_cmp_le_u32 vcc, 9, v5")
    A("v_lshlrev_b32 v4, 1, v4")
    A("v_subrev_u32 v6, 9, v5")
    A("v_cndmask_b32 v5, v5, v6, vcc")
    A("v_addc_co_u32 v4, vcc, 0, v4, vcc")
    A(f"v_mul_u32_u24 v{vWQ}, {ROWB}, v4")
    A(f"v_lshl_add_u32 v{vWQ}, v5, 4, v{vWQ}")
    A(f"s_mul_i32 s{sOUT}, s{sHG}, 144")
    A(f"v_add_u32 v{vWQ}, s{sOUT}, v{vWQ}")
def late_srds():
    srd(A, SWQ, 6, D_ * ROWB)
    srd(A, SKV, 18, 0x40000)
    A(f"s_add_u32 s{SOI}, s18, {OIMG_OFF}")
    A(f"s_addc_u32 s{SOI+1}, s19, 0")
    A(f"s_mov_b32 s{SOI+2}, {OIMG_B}")
    A(f"s_mov_b32 s{SOI+3}, 0x00020000")
    srd(A, SWO, 12, D_ * ROWB)
    srd(A, SOUT, 14, S_ * ROWB)
W0FIRST = opt('w0first', 1)
def emit_bulk():
    A("L_bulk:")
    A(f"s_lshl_b32 s{t0}, s{sQT}, 1")
    A(f"s_add_u32 s{t0}, s{t0}, s{sW}")
    A(f"s_add_u32 s{t0}, s{t0}, 1")
    A(f"s_and_b32 s{t0}, s{t0}, 7")
    A(f"s_lshl_b32 s{sXM}, s{t0}, 10")
    A(f"s_add_u32 s{sXM}, s{sXM}, {XB}")
    A(f"s_mul_i32 s{sXS}, s{t0}, 9216")
    A(f"s_and_b32 s{t0}, s{t0}, 1")
    A(f"s_lshl_b32 s{t0}, s{t0}, 6")
    A(f"v_xor_b32 v{vXO}, s{t0}, v{vXO}")
    late_common()
    A(f"v_mov_b32 v{vN}, 0")
    A(f"v_mov_b32 v{vN+1}, 0")
    A(f"s_mul_i32 s{t2}, s{sW1}, {4*912}")
    A(f"s_mul_i32 s{t3}, s{sW1}, {4*6912}")
    A("s_waitcnt lgkmcnt(0)")
    srd(A, SX, 4, S_ * ROWB)
    srd(A, SDBG, 16, 256)
    late_srds()
    A("L_setup:")
    setup()
    stamp('setup')
    A(f"s_cmp_eq_u32 s{sW}, 0")
    A("s_cbranch_scc1 L_flag")
    A.c("==================== waves 1..7: bulk staging of x and wq ====================")
    A("L_issue:")
    for q in range(2):
        if opt('gprio', 1): A(f"s_setprio {2 if q == 0 else 0}")
        wq_group(q)
        A(f"s_cmp_eq_u32 s{sW}, 7")
        A(f"s_cbranch_scc1 L_b7_{q}")
        for sg in range(3*q, 3*q + 3): dma_x(sg, vXO)
        wq_mask(1)
        A(f"s_branch L_bc_{q}")
        A(f"L_b7_{q}:")
        wq_mask(1)
        for j in range(4, 8): dma_wq(32*q + j)
        A(f"L_bc_{q}:")
        for j in range(4): dma_wq(32*q + j)
        wq_mask(0)
    if not X2L:
        A(f"s_cmp_eq_u32 s{sW}, 7")
        A("s_cbranch_scc1 L_nox2")
        for sg in range(6, 9): dma_x(sg, vXO)
        A("L_nox2:")
    stamp('issued')
    A("L_wait:")
    A(f"s_cmp_eq_u32 s{sW}, 7")
    A("s_cbranch_scc1 L_x2w8")
    A(f"s_waitcnt vmcnt({7 if X2L else 10})")
    A("s_branch L_join")
    A("L_x2w8:")
    A(f"s_waitcnt vmcnt(8)")
    A("s_branch L_join")
def emit_w0():
    A.c("==================== wave 0: K/V projection of 16 tokens ====================")
    A("L_w0:")
    A("s_setprio 3")
    A("s_memrealtime s[78:79]")
    mul, sh = magic_div(3, 64)
    A(f"v_mul_u32_u24 v4, {mul}, v1")
    A(f"v_lshrrev_b32 v4, {sh}, v4")
    A("v_mul_u32_u24 v5, 3, v4")
    A("v_sub_u32 v5, v1, v5")
    A(f"v_mul_u32_u24 v{vWK}, 36, v4")
    A(f"v_lshl_add_u32 v{vWK}, v5, 4, v{vWK}")
    A(f"v_xor_b32 v8, 64, v{vXO}")
    A(f"s_lshl_b32 s{sXM}, s{sQT}, 11")
    A(f"s_add_u32 s{sXM}, s{sXM}, {XB}")
    A(f"s_mul_i32 s{sXS}, s{sQT}, {2*9216}")
    A(f"s_add_u32 s{t1}, s{sXS}, 9216")
    A("v_mov_b32 v6, 0")
    A("s_waitcnt lgkmcnt(0)")
    stamp('karg')
    A(f"s_cmp_eq_u32 s{sKIND}, 1")
    A(f"s_cselect_b32 s{SWKV}, s10, s8")
    A(f"s_cselect_b32 s{SWKV+1}, s11, s9")
    A(f"s_mov_b32 s{SWKV+2}, {D_*36}")
    A(f"s_mov_b32 s{SWKV+3}, 0x00020000")
    srd(A, SX, 4, S_ * ROWB)
    srd(A, SDBG, 16, 256)
    A("s_cmp_lg_u32 s2, 0")
    A("s_cbranch_scc1 L_nononce")
    A("s_or_b32 s78, s78, 1")
    A("v_mov_b32 v4, s78")
    A("v_mov_b32 v5, s79")
    A("s_mov_b64 exec, 1")
    A(f"buffer_store_dwordx2 v[4:5], v6, {s(SDBG,4)}, 0 offen{SC}")
    A("s_mov_b64 exec, -1")
    A("L_nononce:")
    for wi in range(28):
        A(f"s_mov_b32 m0, {WKVB + 1008 * wi}")
        A(f"s_mov_b32 s{t0}, {756 * wi}")
        A(f"buffer_load_dwordx4 v{vWK}, {s(SWKV,4)}, s{t0} offen lds")
        if wi == 13:
            for sg in range(3): dma_x(sg, vXO); dma_x(sg, 8, 1024, t1)
    for sg in range(3, 9):
        dma_x(sg, vXO); dma_x(sg, 8, 1024, t1)
    A(f"buffer_load_dwordx2 v[{vN}:{vN+1}], v6, {s(SDBG,4)}, 0 offen{SC}")
    stamp('call')
    late_srds()
    late_common()
    A("v_and_b32 v4, 15, v1")
    A(f"s_lshl_b32 s{t0}, s{sQT}, 4")
    A(f"v_add_u32 v4, s{t0}, v4")
    A("v_lshrrev_b32 v5, 1, v4")
    A("v_and_b32 v5, 7, v5")
    A("v_lshrrev_b32 v6, 4, v1")
    A("v_xor_b32 v8, v6, v5")
    A("v_lshlrev_b32 v8, 4, v8")
    A("v_lshl_add_u32 v10, v4, 7, v8")
    A(f"v_add_u32 v10, {XB}, v10")
    A("v_xor_b32 v11, 64, v10")
    A("v_bfe_u32 v4, v1, 2, 2")
    A("v_lshl_add_u32 v4, v6, 3, v4")
    A("v_mul_u32_u24 v4, 48, v4")
    A("v_and_b32 v5, 3, v1")
    A("v_lshl_add_u32 v12, v5, 3, v4")
    A(f"v_add_u32 v12, {WKVB}, v12")
    for q in range(3):
        A(f"s_mul_i32 s{t0}, s{sGX[q]}, 24")
        A(f"v_add_u32 v{121+q}, s{t0}, v12")
    A("v_add_u32 v13, 0x10000, v10")
    A("v_add_u32 v14, 0x10000, v11")
    A(f"s_lshl_b32 s{t0}, s{sTB}, 1")
    A(f"s_lshr_b32 s{t1}, s{sQT}, 1")
    A(f"s_add_u32 s{t0}, s{t0}, s{t1}")
    A(f"s_mul_i32 s{t0}, s{t0}, {TILE_B}")
    A(f"s_and_b32 s{t1}, s{sQT}, 1")
    A("v_and_b32 v4, 15, v1")
    A("v_lshrrev_b32 v5, 5, v1")
    A("v_bfe_u32 v6, v1, 4, 1")
    KD = [20, 24]; KFB = 32
    def kv_reads(t):
        b = KFB + 12 * (t % 3)
        sg = t >> 1
        if t % 2 == 0 and (sg == 0 or sg >= 3): A(f"s_waitcnt vmcnt({13 if sg == 0 else 17 - 2*sg})")
        if sg == 0: A(f"ds_read_b128 {v(b,4)}, v{13 + (t & 1)}")
        else: A(f"ds_read_b128 {v(b,4)}, v{10 + (t & 1)} offset:{(sg - 1) * 8192}")
        for ct in range(2):
            for p in range(2):
                A(f"ds_read_b64_tr_b16 {v(b+4+4*ct+2*p,2)}, v{121 + t // 6} offset:{(t % 6)*1536 + p*192 + ct*32}")
    A(f"s_cmp_eq_u32 s{sKIND}, 1")
    A("s_cbranch_scc1 L_vproj")
    for which in ("k", "v"):
        if which == "v": A("L_vproj:")
        if which == "k":
            A(f"s_lshl_b32 s{t2}, s{t1}, 8")
            A(f"s_add_u32 s{t2}, s{t2}, s{t0}")
            A(f"s_lshl_b32 s{t4}, s{t1}, 6")
            A(f"s_add_u32 s{t4}, s{t4}, s{t0}")
            A("v_lshlrev_b32 v5, 9, v5")
            A("v_lshl_add_u32 v5, v4, 4, v5")
            A("v_lshl_add_u32 v16, v6, 3, v5")
            A("v_lshlrev_b32 v17, 2, v4")
        else:
            A(f"s_mul_i32 s{t2}, s{t1}, 608")
            A(f"s_add_u32 s{t2}, s{t2}, s{t0}")
            A("v_mul_u32_u24 v5, 304, v5")
            A("v_lshl_add_u32 v5, v4, 4, v5")
            A("v_lshl_add_u32 v16, v6, 3, v5")
            A("v_cmp_eq_u32 vcc, 2, v4")
            A(f"v_cmp_gt_u32 s[{sM}:{sM+1}], 3, v4")
            A("v_mov_b32 v2, 0x3f803f80")
        kv_reads(0); kv_reads(1)
        for t in range(18):
            if t + 2 < 18:
                kv_reads(t + 2)
                W(10)
            else:
                W(5 * (17 - t))
            b = KFB + 12 * (t % 3)
            for ct in range(2):
                cc = "0" if t == 0 else v(KD[ct], 4)
                if which == "k": A(f"v_mfma_f32_16x16x32_bf16 {v(KD[ct],4)}, {v(b+4+4*ct,4)}, {v(b,4)}, {cc}")
                else: A(f"v_mfma_f32_16x16x32_bf16 {v(KD[ct],4)}, {v(b,4)}, {v(b+4+4*ct,4)}, {cc}")
        A("s_nop 6")
        A(f"v_cvt_pk_bf16_f32 v28, v{KD[0]}, v{KD[0]+1}")
        A(f"v_cvt_pk_bf16_f32 v29, v{KD[0]+2}, v{KD[0]+3}")
        A(f"v_cvt_pk_bf16_f32 v30, v{KD[1]}, v{KD[1]+1}")
        if which == "k":
            A(f"buffer_store_dwordx2 v[28:29], v16, {s(SKV,4)}, s{t2} offen{SC}")
            A("s_mov_b64 exec, 0xffff")
            A(f"buffer_store_dword v30, v17, {s(SKV,4)}, s{t4} offen offset:2240{SC}")
        else:
            A(f"v_cvt_pk_bf16_f32 v31, v{KD[1]+2}, v{KD[1]+3}")
            A(f"buffer_store_dwordx2 v[28:29], v16, {s(SKV,4)}, s{t2} offen offset:1024{SC}")
            A("v_cndmask_b32 v30, v30, v2, vcc")
            A("v_cndmask_b32 v31, v31, v2, vcc")
            A(f"s_mov_b64 exec, s[{sM}:{sM+1}]")
            A(f"buffer_store_dwordx2 v[30:31], v16, {s(SKV,4)}, s{t2} offen offset:{1024+256}{SC}")
        A("s_mov_b64 exec, -1")
        stamp('kvst')
        A("s_branch L_setup")
if W0FIRST:
    A("s_cbranch_scc0 L_bulk")
    emit_w0(); emit_bulk()
else:
    A("s_cbranch_scc1 L_w0")
    emit_bulk(); emit_w0()
def flag_code(first):
    A(f"s_getreg_b32 s{t0}, hwreg(HW_REG_XCC_ID, 0, 4)")
    A(f"s_mov_b32 s{sCNT}, 0")
    A("v_mov_b32 v6, 0")
    A(f"s_waitcnt vmcnt({first})")
    A("L_nonce:")
    A(f"v_readfirstlane_b32 s{sNL}, v{vN}")
    A(f"v_readfirstlane_b32 s{sNH}, v{vN+1}")
    A(f"s_add_u32 s{sCNT}, s{sCNT}, 1")
    A(f"s_cmp_gt_u32 s{sCNT}, {SPIN}")
    A("s_cbranch_scc1 L_gotnonce")
    A(f"s_cmp_lg_u32 s{sNL}, 0")
    A("s_cbranch_scc1 L_gotnonce")
    A(f"buffer_load_dwordx2 v[{vN}:{vN+1}], v6, {s(SDBG,4)}, 0 offen{SC}")
    A("s_waitcnt vmcnt(0)")
    A("s_branch L_nonce")
    A("L_gotnonce:")
    A(f"s_and_b32 s{sNH}, s{sNH}, 0x0fffffff")
    if REPL:
        A(f"s_and_b32 s{t1}, s{t0}, 7")
        A(f"s_lshl_b32 s{t1}, s{t1}, 13")
        A(f"v_add_u32 v{vPA}, s{t1}, v{vPA}")
        A("v_lshlrev_b32 v6, 13, v1")
    A(f"s_lshl_b32 s{t0}, s{t0}, 28")
    A(f"s_or_b32 s{sFAST}, s{sNH}, s{t0}")
    A(f"s_lshl_b32 s{t0}, s{sTB}, 8")
    A(f"s_lshl_b32 s{t1}, s{sKIND}, 7")
    A(f"s_add_u32 s{t0}, s{t0}, s{t1}")
    A(f"s_lshl_b32 s{t1}, s{sQT}, 3")
    A(f"s_add_u32 s{t0}, s{t0}, s{t1}")
    A(f"s_add_u32 s{t0}, s{t0}, {FLAG_OFF}")
    A(f"v_mov_b32 v4, s{sNL}")
    A(f"v_mov_b32 v5, s{sFAST}")
    A("s_mov_b64 exec, 0xff" if REPL else "s_mov_b64 exec, 1")
    A(f"buffer_store_dwordx2 v[4:5], v6, {s(SKV,4)}, s{t0} offen{SC}")
    A("s_mov_b64 exec, -1")
    stamp('flag')
A("L_flag:")
if FLAGAT < 0: flag_code(0)
A("s_setprio 0")
A.c("==================== Q projection ====================")
A("L_join:")
A(f"s_mul_i32 s{t2}, s{sW}, {4*912}")
A(f"s_mul_i32 s{t3}, s{sW}, {4*6912}")
wq_group(2)
A("s_barrier")
stamp('barA')
G2I = opt('g2i', 1)
if not G2I:
    wq_mask(1)
    for j in range(4): dma_wq(64 + j)
    wq_mask(0)
if X2L:
    A(f"s_cmp_lt_u32 s{sW1}, 6")
    A("s_cbranch_scc0 L_nox2")
    for sg in range(6, 9): dma_x(sg, vXO)
    A("L_nox2:")
def poll_loads():
    A(f"buffer_load_dwordx4 {v(PF,4)}, v{vPA}, {s(SKV,4)}, 0 offen{SC}")
    A(f"s_movk_i32 s{t1}, 0x1000")
    A(f"buffer_load_dwordx4 {v(PF2,4)}, v{vPA}, {s(SKV,4)}, s{t1} offen{SC}")
PF, PF2, vT2 = 104, 108, 112
def dma_kv():
    A(f"s_mov_b32 m0, s{sKVO}")
    A(f"s_add_u32 s{t4}, s{sKVO}, 4096")
    A(f"buffer_load_dwordx4 v{vL16}, {s(SKV,4)}, s{sKVO} offen{SC} lds")
    A(f"s_mov_b32 s{sKVO}, s{t4}")
DD, DE, FB = 16, 80, 32
NST = 6 if KSPLIT else 12
NRD = 4 if KSPLIT else 3
NBUF, FSZ = opt('ahead', 3) + 1, 8
def q_reads(n):
    q, i = divmod(n, NST)
    b = FB + FSZ * (n % NBUF)
    t = 12 * q + (2 * i if KSPLIT else i)
    sg = t >> 2
    if t == 4:
        for u in range(4): A(f"v_subrev_u32 v{10+u}, 0x10000, v{10+u}")
    xo = 0 if sg == 0 else (sg - 1) * 8192
    off = GPOS[q] + (t % 12) * 2432
    wa = 14
    if off >= 32768: wa, off = 8, off - 32768
    A(f"ds_read_b64_tr_b16 {v(b,2)}, v{wa} offset:{off}")
    A(f"ds_read_b64_tr_b16 {v(b+2,2)}, v{wa} offset:{off+608}")
    if KSPLIT:
        A(f"ds_read_b128 {v(b+4,4)}, v{10 + (i & 1)} offset:{xo}")
        A(f"ds_read_b128 {v(b+8,4)}, v{12 + (i & 1)} offset:{xo}")
    else:
        A(f"ds_read_b128 {v(b+4,4)}, v{10 + (t & 3)} offset:{xo}")
POLLAT = opt('pollat', 6)
AHEAD = opt('ahead', 3)
ESYNC = opt('esync', 1)
def syncB():
    stamp('g0done')
    A(f"s_cmp_lt_u32 s{sW1}, 6")
    A("s_cbranch_scc1 L_w7")
    A("s_waitcnt vmcnt(4)")
    A("s_branch L_w4")
    A("L_w7:")
    A("s_waitcnt vmcnt(7)")
    A("L_w4:")
    A("s_barrier")
def syncC():
    stamp('g1done')
    A(f"s_cmp_lg_u32 s{sW}, 0")
    A("s_cbranch_scc1 L_polled")
    A.c("wave 0 waits for every workgroup's flag")
    A(f"s_mov_b32 s{sCNT}, 0")
    A(f"s_mov_b32 s{t0}, 0x0fffffff")
    if POLLAT >= 12: poll_loads()
    A("L_poll:")
    A("s_waitcnt vmcnt(0)")
    A(f"v_xor_b32 v4, s{sNL}, v{PF}")
    A(f"v_xor_b32 v5, s{sNL}, v{PF+2}")
    A(f"v_xor_b32 v6, s{sNL}, v{PF+4}")
    A(f"v_or3_b32 v4, v4, v5, v6")
    A(f"v_xor_b32 v2, s{sNL}, v{PF+6}")
    A(f"v_xor_b32 v5, s{sFAST}, v{PF+1}")
    A(f"v_xor_b32 v6, s{sFAST}, v{PF+3}")
    A(f"v_or_b32 v{vT2}, v5, v6")
    A(f"v_xor_b32 v5, s{sFAST}, v{PF+5}")
    A(f"v_xor_b32 v6, s{sFAST}, v{PF+7}")
    A(f"v_or_b32 v{vT2+1}, v5, v6")
    A(f"v_or_b32 v5, v{vT2}, v{vT2+1}")
    A(f"v_and_b32 v5, s{t0}, v5")
    A(f"v_or3_b32 v4, v4, v2, v5")
    A(f"s_add_u32 s{sCNT}, s{sCNT}, 1")
    A(f"v_cmp_ne_u32 vcc, 0, v4")
    A(f"s_cmp_gt_u32 s{sCNT}, {SPIN}")
    A("s_cbranch_scc1 L_pollok")
    A("s_cbranch_vccz L_pollok")
    if opt('pmask', 1): A("s_mov_b64 exec, vcc")
    A(f"s_sleep {opt('psleep', 2)}")
    poll_loads()
    A("s_branch L_poll")
    A("L_pollok:")
    A("s_mov_b64 exec, -1")
    A.c("all eight workgroups of this token block on this XCD?")
    A(f"v_cmp_eq_u32 vcc, 0, v{vT2}")
    A(f"v_cmp_eq_u32 s[{sM}:{sM+1}], 0, v{vT2+1}")
    A(f"s_cmp_ge_u32 s{sTB}, 16")
    A(f"s_cselect_b64 s[{sM}:{sM+1}], s[{sM}:{sM+1}], vcc")
    A(f"s_and_b32 s{t0}, s{sTB}, 15")
    A(f"s_lshl_b32 s{t0}, s{t0}, 2")
    A(f"s_lshr_b64 s[{sM}:{sM+1}], s[{sM}:{sM+1}], s{t0}")
    A(f"s_and_b32 s{t0}, s{sM}, 15")
    A(f"v_mov_b32 v4, s{t0}")
    A(f"v_mov_b32 v5, s{sNL}")
    A(f"v_mov_b32 v6, s{sNH}")
    A(f"ds_write_b96 v{vFA}, v[4:6]")
    if DIAG: A(f"s_mov_b32 s69, s{sCNT}")
    A("L_polled:")
    A("s_waitcnt vmcnt(0) lgkmcnt(0)")
    stamp('g2landed')
    A("s_barrier")
    stamp('barC')
    A(f"buffer_load_dwordx4 {v(KF,4)}, v{AK}, {s(SKV,4)}, 0 offen{SC}")
    A(f"buffer_load_dword v{KR}, v{AR}, {s(SKV,4)}, 0 offen offset:2240{SC}")
assert not KSPLIT and not MERGEB
nkv = 0
for n in range(AHEAD): q_reads(n)
last = AHEAD - 1
for n in range(36):
    if ESYNC:
        nx = n + AHEAD
        if nx == 12: syncB()
        if nx == 24: syncC()
        if nx < 36:
            q_reads(nx); last = nx
            if nx == 24:
                dma_kv(); dma_kv(); nkv += 2
    else:
        if n in (12, 24):
            (syncB if n == 12 else syncC)()
            for m in range(n, n + AHEAD): q_reads(m)
            last = n + AHEAD - 1
            if n == 24:
                dma_kv(); dma_kv(); nkv += 2
        if (n % 12) + AHEAD < 12:
            q_reads(n + AHEAD); last = n + AHEAD
    W(NRD * (last - n))
    b = FB + FSZ * (n % NBUF)
    A(f"v_mfma_f32_32x32x16_bf16 {v(DD,16)}, {v(b,4)}, {v(b+4,4)}, {'0' if n == 0 else v(DD,16)}")
    if 0 < nkv < NPRE:
        dma_kv(); nkv += 1
    if G2I and n < 4:
        wq_mask(1); dma_wq(64 + n); wq_mask(0)
    if n == FLAGAT:
        A(f"s_cmp_lg_u32 s{sW}, 0")
        A("s_cbranch_scc1 L_noflag")
        flag_code(4)
        A("L_noflag:")
    if n == 12 + POLLAT:
        A(f"s_cmp_lg_u32 s{sW}, 0")
        A("s_cbranch_scc1 L_nopoll")
        poll_loads()
        A("L_nopoll:")
assert nkv == NPRE
stamp('qproj')
def fK(t): return KFb if t & 1 else KF
def fR(t): return KRb if t & 1 else KR
def fV(t, m): return ((VF0b, VF1b) if t & 1 else (VF0, VF1))[m]
def rdK(t): A(f"ds_read_b128 {v(fK(t),4)}, v{AK} offset:{t*TILE_B}")
def rdR(t): A(f"ds_read_b32 v{fR(t)}, v{AR} offset:{t*TILE_B+2240}")
def rdV(t, m): A(f"ds_read_b128 {v(fV(t,m),4)}, v{AV} offset:{t*TILE_B+1024+608*m}")
def M16(sd): A(f"v_mfma_f32_32x32x16_bf16 {v(sd,16)}, {v(KF,4)}, {v(QM[0],4)}, 0")
def M8(sd): A(f"v_mfma_f32_32x32x8_bf16 {v(sd,16)}, {v(KR,2)}, {v(QR,2)}, {v(sd,16)}")
def M2B(sd, t): A(f"v_mfma_f32_32x32x4_2b_bf16 {v(sd,32)}, {v(fR(t),2)}, {v(QX2,2)}, 0")
def M16A(q, sd, t): A(f"v_mfma_f32_32x32x16_bf16 {v(sd,16)}, {v(fK(t),4)}, {v(QM[q],4)}, {v(sd,16)}")
def PV(q, m, sd, t=0): A(f"v_smfmac_f32_32x32x32_bf16 {v(OO[q],16)}, {v(fV(t,m),4)}, {v(sd+8*m,8)}, v{IDX}")
def EX(sd, a, b):
    for i in range(a, b): A(f"v_exp_f32 v{sd+i}, v{sd+i}")
def rowmax(sd, dst, tmp):
    A(f"v_max3_f32 v{dst}, v{sd}, v{sd+1}, v{sd+2}")
    for i in range(3, 15, 2): A(f"v_max3_f32 v{dst}, v{dst}, v{sd+i}, v{sd+i+1}")
    A(f"v_max_f32 v{dst}, v{dst}, v{sd+15}")
    A(f"v_mov_b32 v{tmp}, v{dst}")
    A("s_nop 1")
    A(f"v_permlane32_swap_b32 v{dst}, v{tmp}")
    A("s_nop 0")
    A(f"v_max_f32 v{dst}, v{dst}, v{tmp}")
def pair_wait(tag, flagoff, addr, dst):
    A(f"L_{tag}:")
    A(f"ds_read_b32 v2, v{vFP} offset:{flagoff}")
    for i in range(3): A(f"ds_read_b128 {v(dst+4*i,4)}, v{addr} offset:{1024*i}")
    A(f"s_add_u32 s{sCNT}, s{sCNT}, 1")
    W(3)
    A(f"v_readfirstlane_b32 s{t2}, v2")
    A(f"s_cmp_gt_u32 s{sCNT}, {SPIN * 16}")
    A(f"s_cbranch_scc1 L_{tag}ok")
    A(f"s_cmp_eq_u32 s{t2}, 1")
    A(f"s_cbranch_scc1 L_{tag}ok")
    W(0)
    A("s_sleep 1")
    A(f"s_branch L_{tag}")
    A(f"L_{tag}ok:")
A.c("Q epilogue: scale by log2(e)/sqrt(18), round, row maximum over key tile 0 (stand-in maximum), LDS exchange")
A("v_mov_b32 v36, 0")
A("v_mov_b32 v37, 0")
A("v_mov_b32 v2, 1")
A(f"s_mov_b32 s{sCNT}, 0")
A(f"s_cmp_eq_u32 s{sPAR}, 1")
A("s_nop 5" if KSPLIT else "s_nop 6")
A("s_cbranch_scc1 L_qodd")
for par in range(2):
    if par == 1: A("L_qodd:")
    b = 2 * par
    r = 8 if par == 0 else 14
    if KSPLIT:
        A(f"ds_write_b128 v{vPW}, {v(DE+b,4)}")
        A(f"ds_write_b128 v{vPW}, {v(DE+b+4,4)} offset:1024")
        A("s_mov_b32 exec_hi, 0")
        A(f"ds_write_b128 v{vPW}, {v(DE+(r & ~3),4)} offset:2048")
        A("s_mov_b32 exec_hi, -1")
        W(0)
        A(f"ds_write_b32 v{vFO}, v2 offset:32")
        pair_wait(f"px{par}", 32, vPR, 48)
        W(1)
        for i in range(4): A(f"v_pk_add_f32 {v(DD+b+2*i,2)}, {v(DD+b+2*i,2)}, {v(48+2*i,2)}")
        W(0)
        A(f"v_pk_add_f32 {v(DD+r,2)}, {v(DD+r,2)}, {v(56+(r & 3),2)}")
    for i in range(4): A(f"v_pk_mul_f32 {v(DD+b+2*i,2)}, {v(DD+b+2*i,2)}, s[{sSC}:{sSC+1}]")
    A(f"v_pk_mul_f32 {v(DD+r,2)}, {v(DD+r,2)}, s[{sSC}:{sSC+1}]")
    for i in range(4): A(f"v_cvt_pk_bf16_f32 v{32+i}, v{DD+b+2*i}, v{DD+b+2*i+1}")
    A("s_mov_b32 exec_hi, 0")
    A(f"v_cvt_pk_bf16_f32 v36, v{DD+r}, v{DD+r+1}")
    if par == 0: A("s_branch L_qdone")
A("L_qdone:")
A("s_mov_b32 exec_hi, -1")
A(f"s_waitcnt vmcnt({NPRE})")
M16(SS[1]); M8(SS[1])
A(f"ds_write_b128 v{vQW}, v[32:35]")
for r in (AK, AV, AR): A(f"v_add_u32 v{r}, s{sHALF}, v{r}")
for i in range(8): A(f"v_mov_b32 v{SS[3]+8+i}, 0")
rowmax(SS[1], T0, T1)
A("s_mov_b32 exec_hi, 0")
A(f"v_cvt_pk_bf16_f32 v37, -v{T0}, 0")
A(f"ds_write_b64 v{vQWr}, v[36:37] offset:1024")
A("s_mov_b32 exec_hi, -1")
A(f"s_mov_b32 s{sCNT}, 0")
A(f"s_waitcnt vmcnt(0) lgkmcnt(0)")
A("s_barrier")
stamp('barD')
rdR(0)
A(f"ds_read_b64 {v(QX2,2)}, v{vQRr} offset:1024")
rdK(0)
A(f"ds_read_b128 {v(QM[0],4)}, v{vQR}")
A(f"ds_read_b128 {v(QM[1],4)}, v{vQR} offset:1280")
A(f"ds_read_b96 v[4:6], v{vFA}")
rdR(1); rdV(0, 0); rdV(0, 1); rdK(1); rdV(1, 0)
W(9)
M2B(SS[0], 0)
W(3)
A(f"v_readfirstlane_b32 s{sFAST}, v4")
A(f"v_readfirstlane_b32 s{sNL}, v5")
A(f"v_readfirstlane_b32 s{sNH}, v6")
A("s_nop 13")
M16A(0, SS[0], 0); M16A(1, SS[1], 0)
A("s_nop 8")
stamp('loop0')
A.c("==================== attention ====================")
def dma_wo(j):
    A(f"s_add_u32 m0, s{sWOM}, {(j % 6) * 7680 + (j // 6) * HALF_B}")
    A(f"s_add_u32 s{t4}, s{sWOS}, {j * 8 * 6912}")
    A(f"buffer_load_dwordx4 v{vWO}, {s(SWO,4)}, s{t4} offen lds")
def ostores(lo, hi, sc):
    A(f"buffer_store_dwordx4 {v(lo,4)}, v{vL16}, {s(SOI,4)}, s{sOW} offen{sc}")
    A("s_mov_b32 exec_hi, 0")
    A(f"buffer_store_dword v{hi}, v{vL16}, {s(SOI,4)}, s{sOR} offen{sc}")
    A("s_mov_b32 exec_hi, -1")
FAIR = [int(c, 16) for c in OPT.get('fair', '15')]
FH = opt('fh', 0)
if FH: FAIR = [int(c, 16) for c in OPT.get('fair', '15')]
PCNT = [0]
def oldprio(p):
    PCNT[0] += 1
    A(f"s_cbranch_vccz L_pr{PCNT[0]}")
    A(f"s_setprio {p}")
    A(f"L_pr{PCNT[0]}:")
def fair_at(h):
    low = (lambda x: x % 16 in FAIR) if FH else (lambda x: (x % 16) // 2 in FAIR)
    if FAIR and low(h) != low(h - 1): oldprio(0 if low(h) else 2)
def body(kind):
    for t in range(8):
        if kind == 'mid' and t == 2:
            A(f"s_cmp_lg_u32 s{sCNT}, 0")
            A("s_cbranch_scc1 L_nobar")
            A("s_waitcnt vmcnt(0)")
            A("s_barrier")
            A(f"s_cmp_lg_u32 s{sW}, 0")
            A("s_cbranch_scc1 L_nobar")
            A(f"v_mov_b32 v4, s{sNL}")
            A(f"v_mov_b32 v5, s{sNH}")
            A(f"s_lshl_b32 s{t0}, s{sHG}, 3")
            A(f"v_mov_b32 v6, s{t0}")
            A("s_mov_b64 exec, 1")
            A(f"buffer_store_dwordx2 v[4:5], v6, {s(SKV,4)}, s{sF2} offen{SC}")
            A("s_mov_b64 exec, -1")
            A("L_nobar:")
        kv = kind == 'kv' and t < 6
        wo = kind == 'wo' and t < 6
        def kvslot(f):
            if kv: A("s_add_u32 m0, m0, 4096")
            f()
            if kv: A(f"buffer_load_dwordx4 v{vL16}, {s(SKV,4)}, m0 offen{SC} lds")
        a0, b0 = SS[2*(t&1)], SS[2*(t&1)+1]
        a1, b1 = SS[2*(1-(t&1))], SS[2*(1-(t&1))+1]
        PV(1, 1, b1, t - 1); fair_at(2*t); EX(a0, 0, 4)
        kvslot(lambda: M2B(a1, t + 1))
        rdR(t + 2)
        if wo: dma_wo(2*t)
        if kind == 'kv' and t == 6: ostores(vPO, vPO, SC)
        EX(a0, 4, 12)
        PV(0, 0, a0, t); EX(a0, 12, 16)
        W(0); rdV(t + 1, 1)
        PV(0, 1, a0, t); fair_at(2*t + 1); EX(b0, 0, 4)
        kvslot(lambda: M16A(0, a1, t + 1))
        if wo: dma_wo(2*t + 1)
        EX(b0, 4, 8)
        M16A(1, b1, t + 1); EX(b0, 8, 12)
        PV(1, 0, b0, t); EX(b0, 12, 16)
        rdK(t + 2); rdV(t + 2, 0)
def bump():
    for r in (AK, AV, AR): A(f"v_add_u32 v{r}, {8*TILE_B}, v{r}")
if FAIR:
    A(f"s_cmp_lt_u32 s{sW}, 4")
    A("s_cselect_b64 vcc, -1, 0")
    A("s_setprio 1")
    oldprio(0 if (15 in FAIR if FH else 7 in FAIR) else 2)
A(f"s_sub_u32 m0, s{sKVO}, 4096")
body('kv')
bump()
A(".p2align 6")
A("L_loop:")
body('mid')
bump()
A(f"s_add_u32 s{sCNT}, s{sCNT}, 1")
A(f"s_cmp_lt_u32 s{sCNT}, 2")
A("s_cbranch_scc1 L_loop")
A("s_waitcnt vmcnt(0)")
A("s_barrier")
A(f"buffer_load_dwordx2 {v(vF2D,2)}, v{vF2}, {s(SKV,4)}, s{sF2} offen{SC}")
body('wo')
PV(1, 1, SS[3], 7)
stamp('loop1')
if FAIR: A("s_setprio 0")
A.c("combine the two key halves: wave kh keeps q-block kh and sends the other one")
O0 = OO[0]
A(f"s_mov_b32 s{t0}, {f32bits(2.0**-32):#x}")
A(f"s_mov_b32 s{t1}, {f32bits(2.0**64):#x}")
A(f"s_mov_b32 s{t4}, 0x7f800000")
A(f"s_mov_b32 s{sCNT}, 0")
A("s_nop 0")
A(f"s_cmp_eq_u32 s{sP}, 1")
A("s_cbranch_scc1 L_send0")
OB = 24; DO = 60
TORD = [0, 2, 4, 6, 1, 3, 5, 7, 8]
PACE = opt('pace', 3)
PRE0 = opt('pre0', 2)
SLOTS = (list(range(80, 120, 4)) + list(range(220, 256, 4)) + list(range(148, 176, 4)) + list(range(180, 212, 4)))[:opt('ns', 30) + 1]
seq = [(t, c) for t in TORD for c in range(5)]
def o_read(n):
    t, c = seq[n]
    b = SLOTS[n % len(SLOTS)]
    a0, a1, off = (WA[0], WA[1], t * 36 * 160) if t < 8 else (WA[2], WA[3], 0)
    A(f"ds_read_b64_tr_b16 {v(b,2)}, v{a0} offset:{off + 32*c}")
    A(f"ds_read_b64_tr_b16 {v(b+2,2)}, v{a1} offset:{off + 32*c}")
def oload(t):
    if t < 8:
        A(f"s_add_u32 s{t1}, s{sOLM}, {2048*t}")
        A(f"buffer_load_dwordx4 {v(OB+4*t,4)}, v{vOM}, {s(SOI,4)}, s{t1} offen{SC}")
    else:
        A(f"buffer_load_dwordx4 {v(OB+32,4)}, v{vOR}, {s(SOI,4)}, s{sOLR} offen{SC}")
def send(q):
    A(f"ds_write_b128 v{vCO}, {v(OO[q],4)}")
    A(f"ds_write_b128 v{vCO}, {v(OO[q]+4,4)} offset:1024")
    A("s_mov_b32 exec_hi, 0")
    A(f"ds_write_b128 v{vCO}, {v(OO[q]+8,4)} offset:2048")
    A("s_mov_b32 exec_hi, -1")
def normalise(o):
    A(f"v_rcp_f32 v{T0}, v{T0}")
    A("s_nop 0")
    A(f"v_mov_b32 v{T1}, v{T0}")
    for i in range(0, 10, 2): A(f"v_pk_mul_f32 {v(o+i,2)}, {v(o+i,2)}, {v(T0,2)}")
    for i in range(5): A(f"v_cvt_pk_bf16_f32 v{16+i}, v{o+2*i}, v{o+2*i+1}")
for kh in range(2):
    o = OO[kh]
    if kh == 0: A("s_nop 4")
    else: A("L_send0:")
    send(1 - kh)
    A("s_waitcnt vmcnt(0)")
    A.c("all eight workgroups of this token block must have poisoned their part before anything is read")
    A(f"L_f2{kh}:")
    A(f"v_xor_b32 v{vF2D}, s{sNL}, v{vF2D}")
    A(f"v_xor_b32 v{vF2D+1}, s{sNH}, v{vF2D+1}")
    A(f"v_or_b32 v2, v{vF2D}, v{vF2D+1}")
    A("v_cmp_ne_u32 vcc, 0, v2")
    A(f"s_cbranch_vccnz L_f2retry{kh}")
    A(f"L_f2ok{kh}:")
    A(f"s_mov_b32 s{sCNT}, 0")
    W(0)
    A("s_barrier")
    stamp('comb')
    for i in range(3): A(f"ds_read_b128 {v(48+4*i,4)}, v{vCP} offset:{1024*i}")
    for n in range(PRE0): o_read(n)
    W(2 * PRE0 + 1)
    for i in range(0, 8, 2): A(f"v_pk_add_f32 {v(o+i,2)}, {v(o+i,2)}, {v(48+i,2)}")
    W(2 * PRE0)
    A("s_mov_b32 exec_hi, 0")
    for i in range(8, 12, 2): A(f"v_pk_add_f32 {v(o+i,2)}, {v(o+i,2)}, {v(48+i,2)}")
    A("s_mov_b32 exec_hi, -1")
    A.c("safety check of the stand-in maximum: 2^-32 <= l <= 2^64 and all O finite")
    A(f"v_mov_b32 v{T0}, v{o+10}")
    A(f"v_mov_b32 v{T1}, v{o+10}")
    A(f"v_maximum3_f32 v{T2}, |v{o}|, |v{o+1}|, |v{o+2}|")
    A(f"v_maximum3_f32 v{T3}, |v{o+3}|, |v{o+4}|, |v{o+5}|")
    A(f"v_permlane32_swap_b32 v{T0}, v{T1}")
    A(f"v_maximum3_f32 v{T2}, v{T2}, |v{o+6}|, |v{o+7}|")
    A(f"v_maximum3_f32 v{T3}, v{T3}, |v{o+8}|, |v{o+9}|")
    A(f"v_cmp_nle_f32 vcc, s{t0}, v{T0}")
    A(f"v_cmp_nge_f32 s[{sM}:{sM+1}], s{t1}, v{T0}")
    A(f"v_maximum3_f32 v{T2}, v{T2}, v{T3}, v{T3}")
    A(f"s_or_b64 vcc, vcc, s[{sM}:{sM+1}]")
    A(f"v_cmp_ngt_f32 s[{sM}:{sM+1}], s{t4}, v{T2}")
    A(f"s_or_b64 vcc, vcc, s[{sM}:{sM+1}]")
    A(f"s_cbranch_vccnz L_slow{kh}")
    normalise(o)
    if kh == 0: A("s_branch L_fin")
A("L_fin:")
if opt('fast', 1):
    A(f"s_cmp_eq_u32 s{sFAST}, 15")
    A("s_cbranch_scc1 L_ofast")
    ostores(16, 20, SC)
    A("s_branch L_odone")
    A("L_ofast:")
    ostores(16, 20, "")
    A("L_odone:")
else:
    ostores(16, 20, SC)
stamp('ostore')
A.c("==================== output projection ====================")
DELAY = opt('odelay', 6)
for n in range(PRE0, PRE0 + DELAY): o_read(n)
if opt('bare', 0): A("s_barrier")
for t in TORD[:PACE]: oload(t)
stamp('barE')
PRE = len(SLOTS) - 1
for n in range(PRE0 + DELAY, PRE): o_read(n)
issued = PRE
for n, (t, c) in enumerate(seq):
    k = n // 5
    if c == 0:
        A(f"L_ochk{k}:")
        A(f"s_waitcnt vmcnt({min(PACE - 1, 8 - k)})")
        A(f"v_max3_u32 v2, v{OB+4*t}, v{OB+4*t+1}, v{OB+4*t+2}")
        A(f"v_max_u32 v2, v2, v{OB+4*t+3}")
        A("v_cmp_eq_u32 vcc, -1, v2")
        A(f"s_cbranch_vccnz L_oretry{k}")
        A(f"L_ook{k}:")
        if k == 0: stamp('oready')
        if k + PACE < 9: oload(TORD[k + PACE])
    left = issued - 1 - n
    if n == 0 and PRE > 7: W(0)
    elif n >= PRE or PRE <= 7: W(min(2 * left, 15))
    cc = "0" if k == 0 else v(DO+4*c, 4)
    A(f"v_mfma_f32_16x16x32_bf16 {v(DO+4*c,4)}, {v(SLOTS[n % len(SLOTS)],4)}, {v(OB+4*t,4)}, {cc}")
    if issued < len(seq): o_read(issued); issued += 1
stamp('omfma')
A(f"s_cmp_eq_u32 s{sKH}, 0")
A("s_cbranch_scc0 L_ofin1")
for kh in range(2):
    keep, give = ((0, 1, 4), (2, 3)) if kh == 0 else ((2, 3), (0, 1, 4))
    if kh == 1: A("L_ofin1:")
    A("s_nop 5")
    for c in give: A(f"ds_write_b128 v{vRD}, {v(DO+4*c,4)} offset:{1024*c}")
    W(0)
    A("s_barrier")
    for c in keep: A(f"ds_read_b128 {v(80+4*c,4)}, v{vRD} offset:{1024*c}")
    if opt('wide', 1):
        c0 = keep[0]
        for n, c in enumerate(keep):
            W(len(keep)-1-n)
            for i in (0, 2): A(f"v_pk_add_f32 {v(DO+4*c+i,2)}, {v(DO+4*c+i,2)}, {v(80+4*c+i,2)}")
            A(f"v_cvt_pk_bf16_f32 v{16+2*n}, v{DO+4*c}, v{DO+4*c+1}")
            A(f"v_cvt_pk_bf16_f32 v{17+2*n}, v{DO+4*c+2}, v{DO+4*c+3}")
            if n == 1 and len(keep) == 2: A("s_nop 1")
            if n == len(keep) - 1:
                A("v_permlane16_swap_b32 v16, v18")
                A("v_permlane16_swap_b32 v17, v19")
                A(f"buffer_store_dwordx4 v[16:19], v{vOB}, {s(SOUT,4)}, s{sOUT} offen offset:{32*c0}")
                if c == 4:
                    A("s_mov_b32 exec_hi, 0")
                    A(f"buffer_store_dwordx2 v[20:21], v{vOA}, {s(SOUT,4)}, s{sOUT} offen offset:128")
    else:
        for n, c in enumerate(keep):
            W(len(keep)-1-n)
            for i in (0, 2): A(f"v_pk_add_f32 {v(DO+4*c+i,2)}, {v(DO+4*c+i,2)}, {v(80+4*c+i,2)}")
            A(f"v_cvt_pk_bf16_f32 v{DO+4*c}, v{DO+4*c}, v{DO+4*c+1}")
            A(f"v_cvt_pk_bf16_f32 v{DO+4*c+1}, v{DO+4*c+2}, v{DO+4*c+3}")
            if c == 4: A("s_mov_b32 exec_hi, 0")
            A(f"buffer_store_dwordx2 {v(DO+4*c,2)}, v{vOA}, {s(SOUT,4)}, s{sOUT} offen offset:{32*c}")
    if kh == 0: A("s_branch L_flush" if DIAG or ECHO else "s_endpgm")
if ECHO:
    a, b = ECHO.split(':')
    A("L_flush:")
    A("s_waitcnt vmcnt(0)")
    A("s_memrealtime s[80:81]")
    A("s_waitcnt lgkmcnt(0)")
    if b == 'end': A(f"s_sub_u32 s82, s80, s{ECHOREG[a]}")
    elif a == b: A("s_mov_b32 s82, 0")
    else: A(f"s_sub_u32 s82, s{ECHOREG[b]}, s{ECHOREG[a]}")
    A("s_min_u32 s82, s82, 20000")
    A("s_mov_b32 s83, s80")
    A("L_echo:")
    A("s_memrealtime s[80:81]")
    A("s_waitcnt lgkmcnt(0)")
    A("s_sub_u32 s81, s80, s83")
    A("s_cmp_lt_u32 s81, s82")
    A("s_cbranch_scc1 L_echo")
if DIAG:
    A("L_flush:")
    A("s_mov_b64 exec, -1")
    stamp('stored')
    A("s_waitcnt vmcnt(0)")
    A("s_memtime s[80:81]")
    A("s_memrealtime s[82:83]")
    A("s_waitcnt lgkmcnt(0)")
    A(f"v_writelane_b32 v{VST}, s80, 30")
    A(f"v_writelane_b32 v{VST}, s82, 31")
    A(f"v_writelane_b32 v{VST}, s{sCNT}, 29")
    A(f"v_writelane_b32 v{VST}, s69, 28")
    A(f"v_writelane_b32 v{VST}, s{sFAST}, 27")
    A(f"s_add_u32 s96, s18, 0x400000")
    A(f"s_addc_u32 s97, s19, 0")
    A("s_mov_b32 s98, 0x80000")
    A("s_mov_b32 s99, 0x00020000")
    A(f"s_lshl_b32 s{t0}, s2, 3")
    A(f"s_add_u32 s{t0}, s{t0}, s{sW}")
    A(f"s_lshl_b32 s{t0}, s{t0}, 7")
    A("s_mov_b32 exec_hi, 0")
    A("v_lshlrev_b32 v2, 2, v1")
    A(f"buffer_store_dword v{VST}, v2, s[96:99], s{t0} offen")
A("L_end:")
A("s_endpgm")
A.c("some O fragment still holds the poison: fetch it and the ones behind it again")
for k in range(9):
    A(f"L_oretry{k}:")
    A(f"s_add_u32 s{sCNT}, s{sCNT}, 1")
    A(f"s_cmp_gt_u32 s{sCNT}, {SPIN}")
    A(f"s_cbranch_scc1 L_ook{k}")
    A("s_waitcnt vmcnt(0)")
    for u in TORD[k:k + PACE]: oload(u)
    A(f"s_branch L_ochk{k}")
for kh in range(2):
    A(f"L_f2retry{kh}:")
    A(f"s_add_u32 s{sCNT}, s{sCNT}, 1")
    A(f"s_cmp_gt_u32 s{sCNT}, {SPIN}")
    A(f"s_cbranch_scc1 L_f2ok{kh}")
    A("s_sleep 2")
    A(f"buffer_load_dwordx2 {v(vF2D,2)}, v{vF2}, {s(SKV,4)}, s{sF2} offen{SC}")
    A("s_waitcnt vmcnt(0)")
    A(f"s_branch L_f2{kh}")
A.c("fallback: online softmax with the true running maximum, K/V fragments straight from memory")
A("L_slow1:")
for i in range(4): A(f"v_mov_b32 v{QM[0]+i}, v{QM[1]+i}")
A("L_slow0:")
W(0)
MM = 9
A(f"s_add_u32 s{t0}, s{sHALF}, {24*TILE_B}")
for r in (AK, AV, AR): A(f"v_subrev_u32 v{r}, s{t0}, v{r}")
A(f"v_mov_b32 v{QR}, v{QX2}")
A(f"v_mov_b32 v{QR+1}, 0")
A(f"s_cmp_eq_u32 s{sP}, 1")
A(f"s_cselect_b64 vcc, -1, 0")
A(f"v_permlane32_swap_b32 v{QR}, v{QX2}")
A("s_nop 1")
A(f"v_cndmask_b32 v{QR}, v{QR}, v{QX2}, vcc")
A("s_mov_b32 exec_lo, 0")
A(f"v_mov_b32 v{QR}, 0")
A("s_mov_b32 exec_lo, -1")
A(f"v_mov_b32 v{MM}, 0xff800000")
for i in range(16): A(f"v_mov_b32 v{O0+i}, 0")
A(f"s_mov_b32 s{t1}, 0")
A("L_sloop:")
A(f"buffer_load_dwordx4 {v(KF,4)}, v{AK}, {s(SKV,4)}, s{t1} offen{SC}")
A(f"buffer_load_dword v{KR}, v{AR}, {s(SKV,4)}, s{t1} offen offset:2240{SC}")
A(f"buffer_load_dwordx4 {v(VF0,4)}, v{AV}, {s(SKV,4)}, s{t1} offen offset:1024{SC}")
A(f"buffer_load_dwordx4 {v(VF1,4)}, v{AV}, {s(SKV,4)}, s{t1} offen offset:1632{SC}")
A("s_waitcnt vmcnt(0)")
M16(SS[0]); M8(SS[0])
A("s_nop 11")
rowmax(SS[0], T0, T1)
A(f"v_max_f32 v{T0}, v{T0}, v{MM}")
A(f"v_sub_f32 v{T1}, v{MM}, v{T0}")
A(f"v_exp_f32 v{T1}, v{T1}")
A(f"v_mov_b32 v{MM}, v{T0}")
for i in range(16): A(f"v_mul_f32 v{O0+i}, v{O0+i}, v{T1}")
for i in range(16): A(f"v_sub_f32 v{SS[0]+i}, v{SS[0]+i}, v{T0}")
EX(SS[0], 0, 16)
A("s_nop 1")
PV(0, 0, SS[0]); PV(0, 1, SS[0])
A(f"s_add_u32 s{t1}, s{t1}, {TILE_B}")
A(f"s_cmp_lt_u32 s{t1}, {KV_B}")
A("s_cbranch_scc1 L_sloop")
A("s_nop 11")
A(f"v_mov_b32 v{T0}, v{O0+10}")
A(f"v_mov_b32 v{T1}, v{O0+10}")
A("s_nop 1")
A(f"v_permlane32_swap_b32 v{T0}, v{T1}")
A(f"s_mov_b32 s{t0}, 0xfffffffe")
normalise(O0)
for i in range(5): A(f"v_min_u32 v{16+i}, s{t0}, v{16+i}")
A("s_branch L_fin")
A("L_codeend:")
kernel_desc(A, NAME, NVGPR, 102)

DOC = '''
; Fused multi-query attention in one launch: 256 workgroups (one per CU) x 8 waves.
;   workgroup (tb, hg) = 64 tokens x 4 heads; it also projects K or V of 16 of its tokens.
;      flag tagged with a per-launch value that workgroup 0 puts in d_debug); waves 1-7 stage x and wq in LDS.
;      f32 P registers directly); a ones row of V^T gives the row sum.  Two waves share each 64 queries, one key
;   4. O is exchanged between the 8 workgroups of a token block through d_ws (poisoned first, re-read until
;      the poison is gone) and multiplied by wo (16x16x32 MFMA).
'''
HEADER = open('standalone__grouped_kv_mqa__prompt.s.ref').read().split('\n')
hdr = [l for l in HEADER if l.startswith(';') and '@launch' not in l]
out = "\n".join(hdr) + "\n; @launch grid=(256,1,1) block=(512,1,1) lds=163840" + DOC + A.text()
path = [a for a in sys.argv[1:] if a.endswith('.s')]
path = path[0] if path else 'standalone__grouped_kv_mqa__prompt.s'
open(path, 'w').write(out)
if DIAG: open(path + '.stamps', 'w').write(' '.join(STAMPS))
print("wrote", path, len(out))
```

```python
import sys, struct, math
sys.path.insert(0, 'work')
from gen_common import *

OPT = dict(a.split('=') for a in sys.argv[1:] if '=' in a)
def opt(k, d): return type(d)(OPT.get(k, d))
S_, D_, H_, DH = 2048, 576, 32, 18
ROWB = D_ * 2
TILE_B = 2368
KV_B = 64 * TILE_B
HALF_B = 32 * TILE_B
FLAG_OFF, FLAG2_OFF, OIMG_OFF = 0x30000, 0x28000, 0x40000
REPL = None
OHALF_B = 36864
OIMG_B = 64 * OHALF_B
CSCALE = (DH ** -0.5) * math.log2(math.e)
def f32bits(x): return struct.unpack('<I', struct.pack('<f', x))[0]
def nib(tab): return sum(t << (4 * i) for i, t in enumerate(tab))
DIAG = 'diag' in sys.argv
ECHO = OPT.get('echo')
SC = " sc1"
NAME = "standalone__grouped_kv_mqa__prompt_kernel"
SPIN = 0x20000
OSC = (' ' + OPT['osc'].replace('+', ' ')) if 'osc' in OPT else ''
REPL = opt('repl', 1)

A = Asm()
VST = 120
STAMPS = []
ECHOREG = {}
if ECHO:
    ea, eb = ECHO.split(':')
    ECHOREG = {ea: 69, eb: 93} if ea != eb else {ea: 69}
def stamp(name, real=False):
    if ECHO and name in ECHOREG:
        A("s_memrealtime s[80:81]")
        A("s_waitcnt lgkmcnt(0)")
        A(f"s_mov_b32 s{ECHOREG[name]}, s80")
        if ECHOREG[name] == 69: A("s_mov_b32 s93, s80")
    if DIAG:
        if name in STAMPS: i = STAMPS.index(name)
        else: i = len(STAMPS); STAMPS.append(name)
        assert i < 27
        A(f"s_mem{'real' if real else ''}time s[80:81]")
        A("s_waitcnt lgkmcnt(0)")
        A(f"v_writelane_b32 v{VST}, s80, {i}")

SX, SWQ, SWKV, SKV, SOI, SWO, SOUT, SDBG = 20, 24, 28, 32, 36, 40, 44, 48
sW, sTB, sHG, sQT, sKIND, sHL, sP = 52, 53, 54, 55, 56, 57, 58
t0, t1, t2, t3, t4, t5 = 59, 60, 61, 62, 63, 64
sKVO, sCNT, sOW, sOR = 65, 66, 67, 68
sXM, sXS, sNL, sNH, sFAST, sPAR = 70, 71, 72, 73, 74, 75
sM = 76
sF2, sWOM, sWOS, sHALF, sOLM, sOLR, sOUT, sKH, sW1 = 84, 85, 86, 87, 88, 89, 90, 91, 92
sSC = 94
sGW, sGX = [96, 97, 98], [99, 100, 101]
WKVB, XB, QXB = 29184, 87552, 153088
GPOS = [0, 58368, 29184]
PXB = 104448
FASTB = QXB + 10240
PFLG = FASTB + 32
CMB = 46336
def slot(sg): return (sg + 8) % 9
NPRE = 7
vXO, vWQ, vWK, vL16 = 3, 7, 9, 15
vN, PF = 118, 112
AK, AV, AR, IDX, vWO = 124, 125, 126, 127, 128
vQW, vQWr, vQR, vQRr, vFA, vCO, vCP = 129, 130, 131, 132, 133, 134, 135
WA = [136, 137, 138, 139]
vRD, vOA, vOM, vOR, vPA, vFO, vFP, vPW = 140, 141, 142, 143, 144, 145, 146, 147
VF1, VF0, KF, KR = 148, 152, 156, 160
VF1b, VF0b, KFb, KRb = 164, 168, 172, 176
vF2, vT = 178, 179
QM = [32, 40]; QR = 36; QX2 = 46
SS = [48, 64, 80, 96]
OO = [180, 196]
vPO, vF2D, vPR, vOB = 212, 216, 218, 219
NVGPR = 256
T0, T1, T2, T3 = 4, 5, 6, 8
KSPLIT = opt('ksplit', 0)
MERGEB = opt('mergeb', 0)
X2L = opt('x2l', 0)
FLAGAT = opt('flagat', -1)

def W(n): A(f"s_waitcnt lgkmcnt({n})")
def cpf():
    A.c("pull the kernel's own code into L2: one dword per 128-B line")
    A("s_getpc_b64 s[78:79]")
    A("L_pc:")
    A(f"s_sub_u32 s78, s78, L_pc-{NAME}")
    A("s_subb_u32 s79, s79, 0")
    A("v_lshlrev_b32 v4, 7, v1")
    A("v_mov_b32 v5, s79")
    A("v_add_co_u32 v4, vcc, s78, v4")
    A("s_nop 1")
    A("v_addc_co_u32 v5, vcc, 0, v5, vcc")
    for k in range(3):
        A(f"v_cmp_gt_u32 vcc, (L_codeend-{NAME}-{8192*k}+127)/128, v1")
        A("s_and_b64 exec, exec, vcc")
        A(f"global_load_dword v{16+k}, v[4:5], off")
        A("s_mov_b64 exec, -1")
        if k < 2:
            A("v_add_co_u32 v4, vcc, 0x2000, v4")
            A("s_nop 1")
            A("v_addc_co_u32 v5, vcc, 0, v5, vcc")
def dma_x(sg, vreg, extra=0, sreg=None):
    A(f"s_add_u32 m0, s{sXM}, {slot(sg) * 8192 - (sg % 3) * 128 + extra}")
    A(f"s_add_u32 s{t0}, s{sXS if sreg is None else sreg}, s{sGX[sg // 3]}")
    A(f"buffer_load_dwordx4 v{vreg}, {s(SX,4)}, s{t0} offen offset:{(sg % 3)*128} lds")
def wq_group(q): A(f"s_add_u32 s{t5}, s{t3}, s{sGW[q]}")
def dma_wq(i):
    A(f"s_add_u32 m0, s{t2}, {GPOS[i // 32] + (i % 32) * 912}")
    A(f"s_add_u32 s{t0}, s{t5}, {(i % 32) * 6912}")
    A(f"buffer_load_dwordx4 v{vWQ}, {s(SWQ,4)}, s{t0} offen lds")
def wq_mask(on): A(f"s_mov_b32 exec_hi, {(1 << 25) - 1:#x}" if on else "s_mov_b32 exec_hi, -1")

def setup():
    A(f"s_lshr_b32 s{sKH}, s{sW}, 2")
    A(f"s_and_b32 s{sPAR}, s{sHL}, 1")
    A(f"s_mul_i32 s{sHALF}, s{sP}, {HALF_B}")
    A.c("fragment addresses for the Q projection: v10..13 x, v14 / v8 wq")
    A("v_and_b32 v4, 31, v1")
    A("v_lshrrev_b32 v5, 1, v4")
    A("v_and_b32 v5, 7, v5")
    A("v_lshrrev_b32 v6, 5, v1")
    if KSPLIT:
        A(f"s_lshl_b32 s{t0}, s{sP}, 1")
        A(f"v_add_u32 v6, s{t0}, v6")
        A("v_xor_b32 v8, v6, v5")
        A("v_lshlrev_b32 v8, 4, v8")
        A("v_lshl_add_u32 v8, v4, 7, v8")
        A(f"s_lshl_b32 s{t0}, s{sP}, 12")
        A(f"s_add_u32 s{t0}, s{t0}, {XB + 65536}")
        A(f"v_add_u32 v10, s{t0}, v8")
        A("v_xor_b32 v11, 64, v10")
        A(f"s_lshl_b32 s{t0}, s{sP}, 13")
        A(f"s_sub_u32 s{t0}, 0x1000, s{t0}")
        A(f"v_add_u32 v12, s{t0}, v10")
        A(f"v_add_u32 v13, s{t0}, v11")
        A("v_lshrrev_b32 v6, 5, v1")
    else:
        A(f"s_lshl_b32 s{t0}, s{sP}, 5")
        A(f"v_add_u32 v4, s{t0}, v4")
        for u in range(4):
            A(f"v_add_u32 v8, {2*u}, v6")
            A("v_xor_b32 v8, v8, v5")
            A("v_lshlrev_b32 v8, 4, v8")
            A(f"v_lshl_add_u32 v{10+u}, v4, 7, v8")
            A(f"v_add_u32 v{10+u}, {XB + 65536}, v{10+u}")
    A("v_mul_u32_u24 v4, 1216, v6")
    A("v_bfe_u32 v5, v1, 3, 1")
    A("v_mul_u32_u24 v5, 304, v5")
    A("v_add_u32 v4, v4, v5")
    A("v_bfe_u32 v5, v1, 2, 1")
    A("v_mul_u32_u24 v5, 144, v5")
    A("v_add_u32 v4, v4, v5")
    A("v_and_b32 v5, 3, v1")
    A("v_bfe_u32 v8, v1, 4, 1")
    A("v_lshl_add_u32 v5, v8, 2, v5")
    A("v_lshlrev_b32 v5, 2, v5")
    A(f"s_mov_b32 s{t0}, {nib([0,2,1,3,4,0,0,0]):#x}")
    A(f"s_mov_b32 s{t1}, {nib([0,2,1,3,2,4,4,0]):#x}")
    A(f"s_cmp_eq_u32 s{sPAR}, 1")
    A(f"s_cselect_b32 s{t0}, s{t1}, s{t0}")
    A(f"s_mul_i32 s{t1}, s{sHL}, 36")
    A(f"s_and_b32 s{t1}, s{t1}, 0xf8")
    if KSPLIT:
        A(f"s_mul_i32 s{t4}, s{sP}, 2432")
        A(f"s_add_u32 s{t1}, s{t1}, s{t4}")
    A(f"v_lshrrev_b32 v5, v5, s{t0}")
    A("v_and_b32 v5, 15, v5")
    A("v_lshl_add_u32 v14, v5, 3, v4")
    A(f"v_add_u32 v14, s{t1}, v14")
    A(f"v_add_u32 v8, 0x8000, v14")
    A.c("K/V stream")
    A(f"s_mul_i32 s{sKVO}, s{sP}, 74")
    A(f"s_add_u32 s{sKVO}, s{sKVO}, s{sHL}")
    A(f"s_lshl_b32 s{sKVO}, s{sKVO}, 10")
    A(f"s_mov_b32 s{sSC}, {f32bits(CSCALE):#x}")
    A(f"s_mov_b32 s{sSC+1}, {f32bits(CSCALE):#x}")
    A("v_lshrrev_b32 v4, 1, v1")
    A("v_lshlrev_b32 v4, 7, v4")
    A("v_and_b32 v5, 1, v1")
    A(f"v_lshl_add_u32 v{vPA}, v5, 4, v4")
    A(f"v_add_u32 v{vPA}, {FLAG_OFF}, v{vPA}")
    A.c("main-loop LDS addresses")
    A("v_and_b32 v4, 31, v1")
    A(f"v_lshlrev_b32 v{AR}, 2, v4")
    A("v_lshrrev_b32 v5, 2, v4")
    A("v_lshlrev_b32 v5, 2, v5")
    A(f"s_mov_b32 s{t0}, {nib([0,3,1,2,4,0,0,0]):#x}")
    A(f"v_lshrrev_b32 v5, v5, s{t0}")
    A("v_and_b32 v5, 15, v5")
    A("v_and_b32 v6, 3, v4")
    A("v_lshl_add_u32 v5, v5, 2, v6")
    A("v_lshrrev_b32 v6, 5, v1")
    A("v_mul_u32_u24 v2, 304, v6")
    A(f"v_lshl_add_u32 v{AV}, v5, 4, v2")
    A("v_mov_b32 v2, 0x80000")
    A("v_cmp_gt_u32 vcc, 19, v4")
    A(f"v_mov_b32 v{IDX}, 0xdddd")
    A(f"v_mov_b32 v{AK}, v{vL16}")
    A(f"v_cndmask_b32 v{AV}, v2, v{AV}, vcc")
    A(f"v_mov_b32 v{KR+1}, 0x3f803f80")
    A(f"v_mov_b32 v{KRb+1}, 0x3f803f80")
    A("v_mov_b32 v4, 0")
    A("v_mov_b32 v5, 0")
    for i in range(0, 4, 2): A(f"v_pk_mov_b32 {v(VF1b+i,2)}, v[4:5], v[4:5]")
    for i in range(0, 32, 2): A(f"v_pk_mov_b32 {v(OO[0]+i,2)}, v[4:5], v[4:5]")
    A.c("Q exchange, flags")
    A(f"s_mul_i32 s{t1}, s{sW}, 1280")
    A(f"s_add_u32 s{t1}, s{t1}, {QXB}")
    A(f"v_add_u32 v{vQW}, s{t1}, v{vL16}")
    A(f"v_lshl_add_u32 v{vQWr}, v1, 3, s{t1}")
    A(f"s_and_b32 s{t1}, s{sW}, 6")
    A(f"s_mul_i32 s{t1}, s{t1}, 1280")
    A(f"s_add_u32 s{t1}, s{t1}, {QXB}")
    A(f"v_add_u32 v{vQR}, s{t1}, v{vL16}")
    A(f"v_lshl_add_u32 v{vQRr}, v1, 3, s{t1}")
    A(f"v_lshl_add_u32 v{vQRr}, v6, 10, v{vQRr}")
    A(f"v_mov_b32 v{vFA}, {FASTB}")
    A(f"s_lshl_b32 s{t0}, s{sW}, 2")
    A(f"s_add_u32 s{t0}, s{t0}, {PFLG}")
    A(f"v_mov_b32 v{vFO}, s{t0}")
    A(f"v_xor_b32 v{vFP}, 4, v{vFO}")
    A(f"ds_write2_b32 v{vFO}, v4, v4 offset0:0 offset1:8")
    A(f"s_mul_i32 s{t0}, s{sW}, 2560")
    A(f"s_add_u32 s{t0}, s{t0}, {PXB}")
    A(f"v_add_u32 v{vPW}, s{t0}, v{vL16}")
    A(f"s_xor_b32 s{t0}, s{sW}, 1")
    A(f"s_mul_i32 s{t0}, s{t0}, 2560")
    A(f"s_add_u32 s{t0}, s{t0}, {PXB}")
    A(f"v_add_u32 v{vPR}, s{t0}, v{vL16}")
    A.c("O image, wo stream")
    A(f"s_lshl_b32 s{t0}, s{sTB}, 1")
    A(f"s_add_u32 s{t0}, s{t0}, s{sP}")
    A(f"s_mul_i32 s{t0}, s{t0}, {OHALF_B}")
    A(f"s_lshl_b32 s{t1}, s{sHG}, 2")
    A(f"s_add_u32 s{t1}, s{t1}, s{sHL}")
    A(f"s_lshl_b32 s{t1}, s{t1}, 10")
    A(f"s_add_u32 s{sOW}, s{t0}, s{t1}")
    A(f"s_and_b32 s{t1}, s{sHG}, 1")
    A(f"s_lshl_b32 s{t1}, s{t1}, 1")
    A(f"s_xor_b32 s{t1}, s{t1}, s{sHL}")
    A(f"s_lshl_b32 s{t1}, s{t1}, 2")
    A(f"s_lshl_b32 s{t4}, s{sHG}, 9")
    A(f"s_add_u32 s{t1}, s{t1}, s{t4}")
    A(f"s_add_u32 s{t1}, s{t1}, s{t0}")
    A(f"s_add_u32 s{sOR}, s{t1}, 32768")
    A(f"s_and_b32 s{t4}, s{sW}, 3")
    A(f"s_mul_i32 s{sWOM}, s{sW}, 960")
    A(f"s_mul_i32 s{sWOS}, s{sW}, 6912")
    for i in range(4): A(f"v_mov_b32 v{vPO+i}, -1")
    A(f"v_and_b32 v{vF2}, 7, v1")
    A(f"v_lshlrev_b32 v{vF2}, 3, v{vF2}")
    A(f"s_lshl_b32 s{sF2}, s{sTB}, 7")
    A(f"s_add_u32 s{sF2}, s{sF2}, {FLAG2_OFF}")
    mul, sh = magic_div(10, 64)
    A(f"v_mul_u32_u24 v4, {mul}, v1")
    A(f"v_lshrrev_b32 v4, {sh}, v4")
    A("v_mul_u32_u24 v5, 10, v4")
    A("v_sub_u32 v5, v1, v5")
    A("v_min_u32 v5, 8, v5")
    A(f"v_mul_u32_u24 v{vWO}, {ROWB}, v4")
    A(f"v_lshl_add_u32 v{vWO}, v5, 4, v{vWO}")
    A(f"v_add_u32 v{vWO}, s{sOUT}, v{vWO}")
    A(f"s_mul_i32 s{t0}, s{sHL}, 2560")
    A(f"s_add_u32 s{t0}, s{t0}, {CMB}")
    A(f"s_add_u32 s{t1}, s{sHALF}, s{t0}")
    A(f"v_add_u32 v{vCO}, s{t1}, v{vL16}")
    A(f"s_sub_u32 s{t1}, {HALF_B}, s{sHALF}")
    A(f"s_add_u32 s{t1}, s{t1}, s{t0}")
    A(f"v_add_u32 v{vCP}, s{t1}, v{vL16}")
    A.c("output projection (tt = w&3, kh = w>>2)")
    A("v_and_b32 v6, 15, v1")
    A("v_lshrrev_b32 v5, 4, v1")
    A(f"s_lshl_b32 s{t0}, s{sP}, 4")
    A(f"v_add_u32 v2, s{t0}, v6")
    A("v_lshlrev_b32 v2, 4, v2")
    A(f"v_lshl_add_u32 v{vOR}, v5, 9, v2")
    A(f"v_lshrrev_b32 v{vT}, 5, v1")
    A("v_bfe_u32 v4, v1, 4, 1")
    A(f"v_lshl_add_u32 v{vOM}, v{vT}, 10, v2")
    A(f"v_lshl_add_u32 v{vOM}, v4, 9, v{vOM}")
    A(f"s_lshl_b32 s{t0}, s{sTB}, 1")
    A(f"s_add_u32 s{t0}, s{t0}, s{sPAR}")
    A(f"s_mul_i32 s{t0}, s{t0}, {OHALF_B}")
    A(f"s_lshl_b32 s{t1}, s{sKH}, 14")
    A(f"s_add_u32 s{sOLM}, s{t0}, s{t1}")
    A(f"s_lshl_b32 s{t1}, s{sKH}, 11")
    A(f"s_add_u32 s{sOLR}, s{t0}, s{t1}")
    A(f"s_add_u32 s{sOLR}, s{sOLR}, 32768")
    A(f"s_lshl_b32 s{t0}, s{sTB}, 6")
    A(f"s_lshl_b32 s{t1}, s{t4}, 4")
    A(f"s_add_u32 s{t0}, s{t0}, s{t1}")
    A(f"v_add_u32 v6, s{t0}, v6")
    A(f"v_mul_u32_u24 v6, {ROWB}, v6")
    A(f"v_lshl_add_u32 v{vOA}, v5, 3, v6")
    A(f"v_lshl_add_u32 v{vOB}, v4, 5, v6")
    A(f"v_lshl_add_u32 v{vOB}, v{vT}, 4, v{vOB}")
    A(f"s_mul_i32 s{t0}, s{sPAR}, {HALF_B}")
    A(f"s_mul_i32 s{t1}, s{sP}, 5120")
    A(f"s_add_u32 s{t0}, s{t0}, s{t1}")
    A(f"s_add_u32 s{t0}, s{t0}, {24*TILE_B}")
    A(f"v_add_u32 v{vRD}, s{t0}, v{vL16}")
    A("v_bfe_u32 v2, v1, 2, 2")
    A(f"v_mul_u32_u24 v6, 18, v{vT}")
    A("v_add_u32 v6, v6, v2")
    A(f"v_mul_u32_u24 v{WA[0]}, 12, v4")
    A(f"v_lshl_add_u32 v{WA[1]}, v4, 2, 4")
    A(f"v_add_u32 v{WA[0]}, v6, v{WA[0]}")
    A(f"v_add_u32 v{WA[1]}, v6, v{WA[1]}")
    A("v_mul_u32_u24 v6, 72, v5")
    A(f"v_and_b32 v{vT}, 1, v2")
    A(f"v_add3_u32 v6, v6, v{vT}, 16")
    A("v_lshrrev_b32 v2, 1, v2")
    A("v_lshl_add_u32 v2, v4, 1, v2")
    A(f"v_xor_b32 v{vT}, 2, v2")
    A(f"v_mad_u32_u24 v{WA[2]}, v2, 18, v6")
    A(f"v_mad_u32_u24 v{WA[3]}, v{vT}, 18, v6")
    A("v_and_b32 v2, 3, v1")
    A("v_lshlrev_b32 v2, 3, v2")
    A(f"s_mul_i32 s{t0}, s{sKH}, {HALF_B}")
    A(f"v_add_u32 v2, s{t0}, v2")
    A(f"s_movk_i32 s{t0}, 160")
    for i in range(4): A(f"v_mad_u32_u24 v{WA[i]}, v{WA[i]}, s{t0}, v2")

A('.amdgcn_target "amdgcn-amd-amdhsa--gfx950"')
kernel_begin(A, NAME)
A("s_cmp_ge_u32 s2, 256")
A("s_cbranch_scc1 L_end")
if DIAG: A(f"v_mov_b32 v{VST}, 0")
stamp('entry'); stamp('rt0', True)
A("s_load_dwordx16 s[4:19], s[0:1], 0")
A("v_and_b32 v1, 63, v0")
A("v_lshrrev_b32 v2, 6, v0")
A(f"s_and_b32 s{sTB}, s2, 7")
A(f"v_readfirstlane_b32 s{sW}, v2")
A(f"s_lshr_b32 s{t1}, s2, 6")
A(f"s_lshl_b32 s{t0}, s{t1}, 3")
A(f"s_cmp_lg_u32 s{sW}, {opt('cpfw', 7)}")
A("s_cbranch_scc1 L_nocpf")
cpf()
A("L_nocpf:")
A(f"s_add_u32 s{sTB}, s{sTB}, s{t0}")
A(f"s_lshr_b32 s{sHG}, s2, 3")
A(f"s_and_b32 s{sHG}, s{sHG}, 7")
A(f"s_and_b32 s{sQT}, s{sHG}, 3")
A(f"s_lshr_b32 s{sKIND}, s{sHG}, 2")
A.c("k-group rotation: workgroups that share lines start on different groups")
A(f"s_add_u32 s{t1}, s{t1}, s{sHG}")
A(f"s_mul_i32 s{t2}, s{t1}, 11")
A(f"s_lshr_b32 s{t2}, s{t2}, 5")
A(f"s_mul_i32 s{t2}, s{t2}, 3")
A(f"s_sub_u32 s{t1}, s{t1}, s{t2}")
assert all((n * 11 >> 5) == n // 3 for n in range(11))
for q in range(3):
    A(f"s_mul_i32 s{sGW[q]}, s{t1}, {192*ROWB}")
    A(f"s_mul_i32 s{sGX[q]}, s{t1}, 384")
    if q < 2:
        A(f"s_add_u32 s{t1}, s{t1}, 1")
        A(f"s_cmp_eq_u32 s{t1}, 3")
        A(f"s_cselect_b32 s{t1}, 0, s{t1}")
A("v_lshrrev_b32 v4, 3, v1")
A("v_lshrrev_b32 v5, 4, v1")
A("v_and_b32 v6, 7, v1")
A("v_xor_b32 v5, v5, v6")
A("v_lshlrev_b32 v5, 4, v5")
A(f"s_lshl_b32 s{t0}, s{sTB}, 6")
A(f"v_add_u32 v4, s{t0}, v4")
A(f"v_mul_u32_u24 v{vXO}, {ROWB}, v4")
A(f"v_add_u32 v{vXO}, v{vXO}, v5")
A(f"v_lshlrev_b32 v{vL16}, 4, v1")
A(f"s_lshr_b32 s{sHL}, s{sW}, 1")
A(f"s_and_b32 s{sP}, s{sW}, 1")
A(f"s_sub_u32 s{sW1}, s{sW}, 1")
A(f"s_cmp_eq_u32 s{sW}, 0")
def late_common():
    mul, sh = magic_div(19, 64)
    A(f"v_mul_u32_u24 v4, {mul}, v1")
    A(f"v_lshrrev_b32 v4, {sh}, v4")
    A("v_mul_u32_u24 v5, 19, v4")
    A("v_sub_u32 v5, v1, v5")
    A("v_min_u32 v5, 17, v5")
    A("v_cmp_le_u32 vcc, 9, v5")
    A("v_lshlrev_b32 v4, 1, v4")
    A("v_subrev_u32 v6, 9, v5")
    A("v_cndmask_b32 v5, v5, v6, vcc")
    A("v_addc_co_u32 v4, vcc, 0, v4, vcc")
    A(f"v_mul_u32_u24 v{vWQ}, {ROWB}, v4")
    A(f"v_lshl_add_u32 v{vWQ}, v5, 4, v{vWQ}")
    A(f"s_mul_i32 s{sOUT}, s{sHG}, 144")
    A(f"v_add_u32 v{vWQ}, s{sOUT}, v{vWQ}")
def late_srds():
    srd(A, SWQ, 6, D_ * ROWB)
    srd(A, SKV, 18, 0x40000)
    A(f"s_add_u32 s{SOI}, s18, {OIMG_OFF}")
    A(f"s_addc_u32 s{SOI+1}, s19, 0")
    A(f"s_mov_b32 s{SOI+2}, {OIMG_B}")
    A(f"s_mov_b32 s{SOI+3}, 0x00020000")
    srd(A, SWO, 12, D_ * ROWB)
    srd(A, SOUT, 14, S_ * ROWB)
W0FIRST = opt('w0first', 1)
def emit_bulk():
    A("L_bulk:")
    A(f"s_lshl_b32 s{t0}, s{sQT}, 1")
    A(f"s_add_u32 s{t0}, s{t0}, s{sW}")
    A(f"s_add_u32 s{t0}, s{t0}, 1")
    A(f"s_and_b32 s{t0}, s{t0}, 7")
    A(f"s_lshl_b32 s{sXM}, s{t0}, 10")
    A(f"s_add_u32 s{sXM}, s{sXM}, {XB}")
    A(f"s_mul_i32 s{sXS}, s{t0}, 9216")
    A(f"s_and_b32 s{t0}, s{t0}, 1")
    A(f"s_lshl_b32 s{t0}, s{t0}, 6")
    A(f"v_xor_b32 v{vXO}, s{t0}, v{vXO}")
    late_common()
    A(f"v_mov_b32 v{vN}, 0")
    A(f"v_mov_b32 v{vN+1}, 0")
    A(f"s_mul_i32 s{t2}, s{sW1}, {4*912}")
    A(f"s_mul_i32 s{t3}, s{sW1}, {4*6912}")
    A("s_waitcnt lgkmcnt(0)")
    srd(A, SX, 4, S_ * ROWB)
    srd(A, SDBG, 16, 256)
    late_srds()
    A("L_setup:")
    setup()
    stamp('setup')
    A(f"s_cmp_eq_u32 s{sW}, 0")
    A("s_cbranch_scc1 L_flag")
    A.c("==================== waves 1..7: bulk staging of x and wq ====================")
    A("L_issue:")
    for q in range(2):
        if opt('gprio', 1): A(f"s_setprio {2 if q == 0 else 0}")
        wq_group(q)
        A(f"s_cmp_eq_u32 s{sW}, 7")
        A(f"s_cbranch_scc1 L_b7_{q}")
        for sg in range(3*q, 3*q + 3): dma_x(sg, vXO)
        wq_mask(1)
        A(f"s_branch L_bc_{q}")
        A(f"L_b7_{q}:")
        wq_mask(1)
        for j in range(4, 8): dma_wq(32*q + j)
        A(f"L_bc_{q}:")
        for j in range(4): dma_wq(32*q + j)
        wq_mask(0)
    if not X2L:
        A(f"s_cmp_eq_u32 s{sW}, 7")
        A("s_cbranch_scc1 L_nox2")
        for sg in range(6, 9): dma_x(sg, vXO)
        A("L_nox2:")
    stamp('issued')
    A("L_wait:")
    A(f"s_cmp_eq_u32 s{sW}, 7")
    A("s_cbranch_scc1 L_x2w8")
    A(f"s_waitcnt vmcnt({7 if X2L else 10})")
    A("s_branch L_join")
    A("L_x2w8:")
    A(f"s_waitcnt vmcnt(8)")
    A("s_branch L_join")
def emit_w0():
    A.c("==================== wave 0: K/V projection of 16 tokens ====================")
    A("L_w0:")
    A("s_setprio 3")
    A("s_memrealtime s[78:79]")
    mul, sh = magic_div(3, 64)
    A(f"v_mul_u32_u24 v4, {mul}, v1")
    A(f"v_lshrrev_b32 v4, {sh}, v4")
    A("v_mul_u32_u24 v5, 3, v4")
    A("v_sub_u32 v5, v1, v5")
    A(f"v_mul_u32_u24 v{vWK}, 36, v4")
    A(f"v_lshl_add_u32 v{vWK}, v5, 4, v{vWK}")
    A(f"v_xor_b32 v8, 64, v{vXO}")
    A(f"s_lshl_b32 s{sXM}, s{sQT}, 11")
    A(f"s_add_u32 s{sXM}, s{sXM}, {XB}")
    A(f"s_mul_i32 s{sXS}, s{sQT}, {2*9216}")
    A(f"s_add_u32 s{t1}, s{sXS}, 9216")
    A("v_mov_b32 v6, 0")
    A("s_waitcnt lgkmcnt(0)")
    stamp('karg')
    A(f"s_cmp_eq_u32 s{sKIND}, 1")
    A(f"s_cselect_b32 s{SWKV}, s10, s8")
    A(f"s_cselect_b32 s{SWKV+1}, s11, s9")
    A(f"s_mov_b32 s{SWKV+2}, {D_*36}")
    A(f"s_mov_b32 s{SWKV+3}, 0x00020000")
    srd(A, SX, 4, S_ * ROWB)
    srd(A, SDBG, 16, 256)
    A("s_cmp_lg_u32 s2, 0")
    A("s_cbranch_scc1 L_nononce")
    A("s_or_b32 s78, s78, 1")
    A("v_mov_b32 v4, s78")
    A("v_mov_b32 v5, s79")
    A("s_mov_b64 exec, 1")
    A(f"buffer_store_dwordx2 v[4:5], v6, {s(SDBG,4)}, 0 offen{SC}")
    A("s_mov_b64 exec, -1")
    A("L_nononce:")
    for wi in range(28):
        A(f"s_mov_b32 m0, {WKVB + 1008 * wi}")
        A(f"s_mov_b32 s{t0}, {756 * wi}")
        A(f"buffer_load_dwordx4 v{vWK}, {s(SWKV,4)}, s{t0} offen lds")
        if wi == 13:
            for sg in range(3): dma_x(sg, vXO); dma_x(sg, 8, 1024, t1)
    for sg in range(3, 9):
        dma_x(sg, vXO); dma_x(sg, 8, 1024, t1)
    A(f"buffer_load_dwordx2 v[{vN}:{vN+1}], v6, {s(SDBG,4)}, 0 offen{SC}")
    stamp('call')
    late_srds()
    late_common()
    A("v_and_b32 v4, 15, v1")
    A(f"s_lshl_b32 s{t0}, s{sQT}, 4")
    A(f"v_add_u32 v4, s{t0}, v4")
    A("v_lshrrev_b32 v5, 1, v4")
    A("v_and_b32 v5, 7, v5")
    A("v_lshrrev_b32 v6, 4, v1")
    A("v_xor_b32 v8, v6, v5")
    A("v_lshlrev_b32 v8, 4, v8")
    A("v_lshl_add_u32 v10, v4, 7, v8")
    A(f"v_add_u32 v10, {XB}, v10")
    A("v_xor_b32 v11, 64, v10")
    A("v_bfe_u32 v4, v1, 2, 2")
    A("v_lshl_add_u32 v4, v6, 3, v4")
    A("v_mul_u32_u24 v4, 48, v4")
    A("v_and_b32 v5, 3, v1")
    A("v_lshl_add_u32 v12, v5, 3, v4")
    A(f"v_add_u32 v12, {WKVB}, v12")
    for q in range(3):
        A(f"s_mul_i32 s{t0}, s{sGX[q]}, 24")
        A(f"v_add_u32 v{121+q}, s{t0}, v12")
    A("v_add_u32 v13, 0x10000, v10")
    A("v_add_u32 v14, 0x10000, v11")
    A(f"s_lshl_b32 s{t0}, s{sTB}, 1")
    A(f"s_lshr_b32 s{t1}, s{sQT}, 1")
    A(f"s_add_u32 s{t0}, s{t0}, s{t1}")
    A(f"s_mul_i32 s{t0}, s{t0}, {TILE_B}")
    A(f"s_and_b32 s{t1}, s{sQT}, 1")
    A("v_and_b32 v4, 15, v1")
    A("v_lshrrev_b32 v5, 5, v1")
    A("v_bfe_u32 v6, v1, 4, 1")
    KD = [20, 24]; KFB = 32
    def kv_reads(t):
        b = KFB + 12 * (t % 3)
        sg = t >> 1
        if t % 2 == 0 and (sg == 0 or sg >= 3): A(f"s_waitcnt vmcnt({13 if sg == 0 else 17 - 2*sg})")
        if sg == 0: A(f"ds_read_b128 {v(b,4)}, v{13 + (t & 1)}")
        else: A(f"ds_read_b128 {v(b,4)}, v{10 + (t & 1)} offset:{(sg - 1) * 8192}")
        for ct in range(2):
            for p in range(2):
                A(f"ds_read_b64_tr_b16 {v(b+4+4*ct+2*p,2)}, v{121 + t // 6} offset:{(t % 6)*1536 + p*192 + ct*32}")
    A(f"s_cmp_eq_u32 s{sKIND}, 1")
    A("s_cbranch_scc1 L_vproj")
    for which in ("k", "v"):
        if which == "v": A("L_vproj:")
        if which == "k":
            A(f"s_lshl_b32 s{t2}, s{t1}, 8")
            A(f"s_add_u32 s{t2}, s{t2}, s{t0}")
            A(f"s_lshl_b32 s{t4}, s{t1}, 6")
            A(f"s_add_u32 s{t4}, s{t4}, s{t0}")
            A("v_lshlrev_b32 v5, 9, v5")
            A("v_lshl_add_u32 v5, v4, 4, v5")
            A("v_lshl_add_u32 v16, v6, 3, v5")
            A("v_lshlrev_b32 v17, 2, v4")
        else:
            A(f"s_mul_i32 s{t2}, s{t1}, 608")
            A(f"s_add_u32 s{t2}, s{t2}, s{t0}")
            A("v_mul_u32_u24 v5, 304, v5")
            A("v_lshl_add_u32 v5, v4, 4, v5")
            A("v_lshl_add_u32 v16, v6, 3, v5")
            A("v_cmp_eq_u32 vcc, 2, v4")
            A(f"v_cmp_gt_u32 s[{sM}:{sM+1}], 3, v4")
            A("v_mov_b32 v2, 0x3f803f80")
        kv_reads(0); kv_reads(1)
        for t in range(18):
            if t + 2 < 18:
                kv_reads(t + 2)
                W(10)
            else:
                W(5 * (17 - t))
            b = KFB + 12 * (t % 3)
            for ct in range(2):
                cc = "0" if t == 0 else v(KD[ct], 4)
                if which == "k": A(f"v_mfma_f32_16x16x32_bf16 {v(KD[ct],4)}, {v(b+4+4*ct,4)}, {v(b,4)}, {cc}")
                else: A(f"v_mfma_f32_16x16x32_bf16 {v(KD[ct],4)}, {v(b,4)}, {v(b+4+4*ct,4)}, {cc}")
        A("s_nop 6")
        A(f"v_cvt_pk_bf16_f32 v28, v{KD[0]}, v{KD[0]+1}")
        A(f"v_cvt_pk_bf16_f32 v29, v{KD[0]+2}, v{KD[0]+3}")
        A(f"v_cvt_pk_bf16_f32 v30, v{KD[1]}, v{KD[1]+1}")
        if which == "k":
            A(f"buffer_store_dwordx2 v[28:29], v16, {s(SKV,4)}, s{t2} offen{SC}")
            A("s_mov_b64 exec, 0xffff")
            A(f"buffer_store_dword v30, v17, {s(SKV,4)}, s{t4} offen offset:2240{SC}")
        else:
            A(f"v_cvt_pk_bf16_f32 v31, v{KD[1]+2}, v{KD[1]+3}")
            A(f"buffer_store_dwordx2 v[28:29], v16, {s(SKV,4)}, s{t2} offen offset:1024{SC}")
            A("v_cndmask_b32 v30, v30, v2, vcc")
            A("v_cndmask_b32 v31, v31, v2, vcc")
            A(f"s_mov_b64 exec, s[{sM}:{sM+1}]")
            A(f"buffer_store_dwordx2 v[30:31], v16, {s(SKV,4)}, s{t2} offen offset:{1024+256}{SC}")
        A("s_mov_b64 exec, -1")
        stamp('kvst')
        A("s_branch L_setup")
if W0FIRST:
    A("s_cbranch_scc0 L_bulk")
    emit_w0(); emit_bulk()
else:
    A("s_cbranch_scc1 L_w0")
    emit_bulk(); emit_w0()
def flag_code(first):
    A(f"s_getreg_b32 s{t0}, hwreg(HW_REG_XCC_ID, 0, 4)")
    A(f"s_mov_b32 s{sCNT}, 0")
    A("v_mov_b32 v6, 0")
    A(f"s_waitcnt vmcnt({first})")
    A("L_nonce:")
    A(f"v_readfirstlane_b32 s{sNL}, v{vN}")
    A(f"v_readfirstlane_b32 s{sNH}, v{vN+1}")
    A(f"s_add_u32 s{sCNT}, s{sCNT}, 1")
    A(f"s_cmp_gt_u32 s{sCNT}, {SPIN}")
    A("s_cbranch_scc1 L_gotnonce")
    A(f"s_cmp_lg_u32 s{sNL}, 0")
    A("s_cbranch_scc1 L_gotnonce")
    A(f"buffer_load_dwordx2 v[{vN}:{vN+1}], v6, {s(SDBG,4)}, 0 offen{SC}")
    A("s_waitcnt vmcnt(0)")
    A("s_branch L_nonce")
    A("L_gotnonce:")
    A(f"s_and_b32 s{sNH}, s{sNH}, 0x0fffffff")
    if REPL:
        A(f"s_and_b32 s{t1}, s{t0}, 7")
        A(f"s_lshl_b32 s{t1}, s{t1}, 13")
        A(f"v_add_u32 v{vPA}, s{t1}, v{vPA}")
        A("v_lshlrev_b32 v6, 13, v1")
    A(f"s_lshl_b32 s{t0}, s{t0}, 28")
    A(f"s_or_b32 s{sFAST}, s{sNH}, s{t0}")
    A(f"s_lshl_b32 s{t0}, s{sTB}, 8")
    A(f"s_lshl_b32 s{t1}, s{sKIND}, 7")
    A(f"s_add_u32 s{t0}, s{t0}, s{t1}")
    A(f"s_lshl_b32 s{t1}, s{sQT}, 3")
    A(f"s_add_u32 s{t0}, s{t0}, s{t1}")
    A(f"s_add_u32 s{t0}, s{t0}, {FLAG_OFF}")
    A(f"v_mov_b32 v4, s{sNL}")
    A(f"v_mov_b32 v5, s{sFAST}")
    A("s_mov_b64 exec, 0xff" if REPL else "s_mov_b64 exec, 1")
    A(f"buffer_store_dwordx2 v[4:5], v6, {s(SKV,4)}, s{t0} offen{SC}")
    A("s_mov_b64 exec, -1")
    stamp('flag')
A("L_flag:")
if FLAGAT < 0: flag_code(0)
A("s_setprio 0")
A.c("==================== Q projection ====================")
A("L_join:")
A(f"s_mul_i32 s{t2}, s{sW}, {4*912}")
A(f"s_mul_i32 s{t3}, s{sW}, {4*6912}")
wq_group(2)
A("s_barrier")
stamp('barA')
G2I = opt('g2i', 1)
if not G2I:
    wq_mask(1)
    for j in range(4): dma_wq(64 + j)
    wq_mask(0)
if X2L:
    A(f"s_cmp_lt_u32 s{sW1}, 6")
    A("s_cbranch_scc0 L_nox2")
    for sg in range(6, 9): dma_x(sg, vXO)
    A("L_nox2:")
def poll_loads():
    A(f"buffer_load_dwordx4 {v(PF,4)}, v{vPA}, {s(SKV,4)}, 0 offen{SC}")
    A(f"s_movk_i32 s{t1}, 0x1000")
    A(f"buffer_load_dwordx4 {v(PF2,4)}, v{vPA}, {s(SKV,4)}, s{t1} offen{SC}")
PF, PF2, vT2 = 104, 108, 112
def dma_kv():
    A(f"s_mov_b32 m0, s{sKVO}")
    A(f"s_add_u32 s{t4}, s{sKVO}, 4096")
    A(f"buffer_load_dwordx4 v{vL16}, {s(SKV,4)}, s{sKVO} offen{SC} lds")
    A(f"s_mov_b32 s{sKVO}, s{t4}")
DD, DE, FB = 16, 80, 32
NST = 6 if KSPLIT else 12
NRD = 4 if KSPLIT else 3
NBUF, FSZ = opt('ahead', 3) + 1, 8
def q_reads(n):
    q, i = divmod(n, NST)
    b = FB + FSZ * (n % NBUF)
    t = 12 * q + (2 * i if KSPLIT else i)
    sg = t >> 2
    if t == 4:
        for u in range(4): A(f"v_subrev_u32 v{10+u}, 0x10000, v{10+u}")
    xo = 0 if sg == 0 else (sg - 1) * 8192
    off = GPOS[q] + (t % 12) * 2432
    wa = 14
    if off >= 32768: wa, off = 8, off - 32768
    A(f"ds_read_b64_tr_b16 {v(b,2)}, v{wa} offset:{off}")
    A(f"ds_read_b64_tr_b16 {v(b+2,2)}, v{wa} offset:{off+608}")
    if KSPLIT:
        A(f"ds_read_b128 {v(b+4,4)}, v{10 + (i & 1)} offset:{xo}")
        A(f"ds_read_b128 {v(b+8,4)}, v{12 + (i & 1)} offset:{xo}")
    else:
        A(f"ds_read_b128 {v(b+4,4)}, v{10 + (t & 3)} offset:{xo}")
POLLAT = opt('pollat', 6)
AHEAD = opt('ahead', 3)
ESYNC = opt('esync', 1)
def syncB():
    stamp('g0done')
    A(f"s_cmp_lt_u32 s{sW1}, 6")
    A("s_cbranch_scc1 L_w7")
    A("s_waitcnt vmcnt(4)")
    A("s_branch L_w4")
    A("L_w7:")
    A("s_waitcnt vmcnt(7)")
    A("L_w4:")
    A("s_barrier")
def syncC():
    stamp('g1done')
    A(f"s_cmp_lg_u32 s{sW}, 0")
    A("s_cbranch_scc1 L_polled")
    A.c("wave 0 waits for every workgroup's flag")
    A(f"s_mov_b32 s{sCNT}, 0")
    A(f"s_mov_b32 s{t0}, 0x0fffffff")
    if POLLAT >= 12: poll_loads()
    A("L_poll:")
    A("s_waitcnt vmcnt(0)")
    A(f"v_xor_b32 v4, s{sNL}, v{PF}")
    A(f"v_xor_b32 v5, s{sNL}, v{PF+2}")
    A(f"v_xor_b32 v6, s{sNL}, v{PF+4}")
    A(f"v_or3_b32 v4, v4, v5, v6")
    A(f"v_xor_b32 v2, s{sNL}, v{PF+6}")
    A(f"v_xor_b32 v5, s{sFAST}, v{PF+1}")
    A(f"v_xor_b32 v6, s{sFAST}, v{PF+3}")
    A(f"v_or_b32 v{vT2}, v5, v6")
    A(f"v_xor_b32 v5, s{sFAST}, v{PF+5}")
    A(f"v_xor_b32 v6, s{sFAST}, v{PF+7}")
    A(f"v_or_b32 v{vT2+1}, v5, v6")
    A(f"v_or_b32 v5, v{vT2}, v{vT2+1}")
    A(f"v_and_b32 v5, s{t0}, v5")
    A(f"v_or3_b32 v4, v4, v2, v5")
    A(f"s_add_u32 s{sCNT}, s{sCNT}, 1")
    A(f"v_cmp_ne_u32 vcc, 0, v4")
    A(f"s_cmp_gt_u32 s{sCNT}, {SPIN}")
    A("s_cbranch_scc1 L_pollok")
    A("s_cbranch_vccz L_pollok")
    if opt('pmask', 1): A("s_mov_b64 exec, vcc")
    A(f"s_sleep {opt('psleep', 2)}")
    poll_loads()
    A("s_branch L_poll")
    A("L_pollok:")
    A("s_mov_b64 exec, -1")
    A.c("all eight workgroups of this token block on this XCD?")
    A(f"v_cmp_eq_u32 vcc, 0, v{vT2}")
    A(f"v_cmp_eq_u32 s[{sM}:{sM+1}], 0, v{vT2+1}")
    A(f"s_cmp_ge_u32 s{sTB}, 16")
    A(f"s_cselect_b64 s[{sM}:{sM+1}], s[{sM}:{sM+1}], vcc")
    A(f"s_and_b32 s{t0}, s{sTB}, 15")
    A(f"s_lshl_b32 s{t0}, s{t0}, 2")
    A(f"s_lshr_b64 s[{sM}:{sM+1}], s[{sM}:{sM+1}], s{t0}")
    A(f"s_and_b32 s{t0}, s{sM}, 15")
    A(f"v_mov_b32 v4, s{t0}")
    A(f"v_mov_b32 v5, s{sNL}")
    A(f"v_mov_b32 v6, s{sNH}")
    A(f"ds_write_b96 v{vFA}, v[4:6]")
    if DIAG: A(f"s_mov_b32 s69, s{sCNT}")
    A("L_polled:")
    A("s_waitcnt vmcnt(0) lgkmcnt(0)")
    stamp('g2landed')
    A("s_barrier")
    stamp('barC')
    A(f"buffer_load_dwordx4 {v(KF,4)}, v{AK}, {s(SKV,4)}, 0 offen{SC}")
    A(f"buffer_load_dword v{KR}, v{AR}, {s(SKV,4)}, 0 offen offset:2240{SC}")
assert not KSPLIT and not MERGEB
nkv = 0
for n in range(AHEAD): q_reads(n)
last = AHEAD - 1
for n in range(36):
    if ESYNC:
        nx = n + AHEAD
        if nx == 12: syncB()
        if nx == 24: syncC()
        if nx < 36:
            q_reads(nx); last = nx
            if nx == 24:
                dma_kv(); dma_kv(); nkv += 2
    else:
        if n in (12, 24):
            (syncB if n == 12 else syncC)()
            for m in range(n, n + AHEAD): q_reads(m)
            last = n + AHEAD - 1
            if n == 24:
                dma_kv(); dma_kv(); nkv += 2
        if (n % 12) + AHEAD < 12:
            q_reads(n + AHEAD); last = n + AHEAD
    W(NRD * (last - n))
    b = FB + FSZ * (n % NBUF)
    A(f"v_mfma_f32_32x32x16_bf16 {v(DD,16)}, {v(b,4)}, {v(b+4,4)}, {'0' if n == 0 else v(DD,16)}")
    if 0 < nkv < NPRE:
        dma_kv(); nkv += 1
    if G2I and n < 4:
        wq_mask(1); dma_wq(64 + n); wq_mask(0)
    if n == FLAGAT:
        A(f"s_cmp_lg_u32 s{sW}, 0")
        A("s_cbranch_scc1 L_noflag")
        flag_code(4)
        A("L_noflag:")
    if n == 12 + POLLAT:
        A(f"s_cmp_lg_u32 s{sW}, 0")
        A("s_cbranch_scc1 L_nopoll")
        poll_loads()
        A("L_nopoll:")
assert nkv == NPRE
stamp('qproj')
def fK(t): return KFb if t & 1 else KF
def fR(t): return KRb if t & 1 else KR
def fV(t, m): return ((VF0b, VF1b) if t & 1 else (VF0, VF1))[m]
def rdK(t): A(f"ds_read_b128 {v(fK(t),4)}, v{AK} offset:{t*TILE_B}")
def rdR(t): A(f"ds_read_b32 v{fR(t)}, v{AR} offset:{t*TILE_B+2240}")
def rdV(t, m): A(f"ds_read_b128 {v(fV(t,m),4)}, v{AV} offset:{t*TILE_B+1024+608*m}")
def M16(sd): A(f"v_mfma_f32_32x32x16_bf16 {v(sd,16)}, {v(KF,4)}, {v(QM[0],4)}, 0")
def M8(sd): A(f"v_mfma_f32_32x32x8_bf16 {v(sd,16)}, {v(KR,2)}, {v(QR,2)}, {v(sd,16)}")
def M2B(sd, t): A(f"v_mfma_f32_32x32x4_2b_bf16 {v(sd,32)}, {v(fR(t),2)}, {v(QX2,2)}, 0")
def M16A(q, sd, t): A(f"v_mfma_f32_32x32x16_bf16 {v(sd,16)}, {v(fK(t),4)}, {v(QM[q],4)}, {v(sd,16)}")
def PV(q, m, sd, t=0): A(f"v_smfmac_f32_32x32x32_bf16 {v(OO[q],16)}, {v(fV(t,m),4)}, {v(sd+8*m,8)}, v{IDX}")
def EX(sd, a, b):
    for i in range(a, b): A(f"v_exp_f32 v{sd+i}, v{sd+i}")
def rowmax(sd, dst, tmp):
    A(f"v_max3_f32 v{dst}, v{sd}, v{sd+1}, v{sd+2}")
    for i in range(3, 15, 2): A(f"v_max3_f32 v{dst}, v{dst}, v{sd+i}, v{sd+i+1}")
    A(f"v_max_f32 v{dst}, v{dst}, v{sd+15}")
    A(f"v_mov_b32 v{tmp}, v{dst}")
    A("s_nop 1")
    A(f"v_permlane32_swap_b32 v{dst}, v{tmp}")
    A("s_nop 0")
    A(f"v_max_f32 v{dst}, v{dst}, v{tmp}")
def pair_wait(tag, flagoff, addr, dst):
    A(f"L_{tag}:")
    A(f"ds_read_b32 v2, v{vFP} offset:{flagoff}")
    for i in range(3): A(f"ds_read_b128 {v(dst+4*i,4)}, v{addr} offset:{1024*i}")
    A(f"s_add_u32 s{sCNT}, s{sCNT}, 1")
    W(3)
    A(f"v_readfirstlane_b32 s{t2}, v2")
    A(f"s_cmp_gt_u32 s{sCNT}, {SPIN * 16}")
    A(f"s_cbranch_scc1 L_{tag}ok")
    A(f"s_cmp_eq_u32 s{t2}, 1")
    A(f"s_cbranch_scc1 L_{tag}ok")
    W(0)
    A("s_sleep 1")
    A(f"s_branch L_{tag}")
    A(f"L_{tag}ok:")
A.c("Q epilogue: scale by log2(e)/sqrt(18), round, row maximum over key tile 0 (stand-in maximum), LDS exchange")
A("v_mov_b32 v36, 0")
A("v_mov_b32 v37, 0")
A("v_mov_b32 v2, 1")
A(f"s_mov_b32 s{sCNT}, 0")
A(f"s_cmp_eq_u32 s{sPAR}, 1")
A("s_nop 5" if KSPLIT else "s_nop 6")
A("s_cbranch_scc1 L_qodd")
for par in range(2):
    if par == 1: A("L_qodd:")
    b = 2 * par
    r = 8 if par == 0 else 14
    if KSPLIT:
        A(f"ds_write_b128 v{vPW}, {v(DE+b,4)}")
        A(f"ds_write_b128 v{vPW}, {v(DE+b+4,4)} offset:1024")
        A("s_mov_b32 exec_hi, 0")
        A(f"ds_write_b128 v{vPW}, {v(DE+(r & ~3),4)} offset:2048")
        A("s_mov_b32 exec_hi, -1")
        W(0)
        A(f"ds_write_b32 v{vFO}, v2 offset:32")
        pair_wait(f"px{par}", 32, vPR, 48)
        W(1)
        for i in range(4): A(f"v_pk_add_f32 {v(DD+b+2*i,2)}, {v(DD+b+2*i,2)}, {v(48+2*i,2)}")
        W(0)
        A(f"v_pk_add_f32 {v(DD+r,2)}, {v(DD+r,2)}, {v(56+(r & 3),2)}")
    for i in range(4): A(f"v_pk_mul_f32 {v(DD+b+2*i,2)}, {v(DD+b+2*i,2)}, s[{sSC}:{sSC+1}]")
    A(f"v_pk_mul_f32 {v(DD+r,2)}, {v(DD+r,2)}, s[{sSC}:{sSC+1}]")
    for i in range(4): A(f"v_cvt_pk_bf16_f32 v{32+i}, v{DD+b+2*i}, v{DD+b+2*i+1}")
    A("s_mov_b32 exec_hi, 0")
    A(f"v_cvt_pk_bf16_f32 v36, v{DD+r}, v{DD+r+1}")
    if par == 0: A("s_branch L_qdone")
A("L_qdone:")
A("s_mov_b32 exec_hi, -1")
A(f"s_waitcnt vmcnt({NPRE})")
M16(SS[1]); M8(SS[1])
A(f"ds_write_b128 v{vQW}, v[32:35]")
for r in (AK, AV, AR): A(f"v_add_u32 v{r}, s{sHALF}, v{r}")
for i in range(8): A(f"v_mov_b32 v{SS[3]+8+i}, 0")
rowmax(SS[1], T0, T1)
A("s_mov_b32 exec_hi, 0")
A(f"v_cvt_pk_bf16_f32 v37, -v{T0}, 0")
A(f"ds_write_b64 v{vQWr}, v[36:37] offset:1024")
A("s_mov_b32 exec_hi, -1")
A(f"s_mov_b32 s{sCNT}, 0")
A(f"s_waitcnt vmcnt(0) lgkmcnt(0)")
A("s_barrier")
stamp('barD')
rdR(0)
A(f"ds_read_b64 {v(QX2,2)}, v{vQRr} offset:1024")
rdK(0)
A(f"ds_read_b128 {v(QM[0],4)}, v{vQR}")
A(f"ds_read_b128 {v(QM[1],4)}, v{vQR} offset:1280")
A(f"ds_read_b96 v[4:6], v{vFA}")
rdR(1); rdV(0, 0); rdV(0, 1); rdK(1); rdV(1, 0)
W(9)
M2B(SS[0], 0)
W(3)
A(f"v_readfirstlane_b32 s{sFAST}, v4")
A(f"v_readfirstlane_b32 s{sNL}, v5")
A(f"v_readfirstlane_b32 s{sNH}, v6")
A("s_nop 13")
M16A(0, SS[0], 0); M16A(1, SS[1], 0)
A("s_nop 8")
stamp('loop0')
A.c("==================== attention ====================")
def dma_wo(j):
    A(f"s_add_u32 m0, s{sWOM}, {(j % 6) * 7680 + (j // 6) * HALF_B}")
    A(f"s_add_u32 s{t4}, s{sWOS}, {j * 8 * 6912}")
    A(f"buffer_load_dwordx4 v{vWO}, {s(SWO,4)}, s{t4} offen lds")
def ostores(lo, hi, sc):
    A(f"buffer_store_dwordx4 {v(lo,4)}, v{vL16}, {s(SOI,4)}, s{sOW} offen{sc}")
    A("s_mov_b32 exec_hi, 0")
    A(f"buffer_store_dword v{hi}, v{vL16}, {s(SOI,4)}, s{sOR} offen{sc}")
    A("s_mov_b32 exec_hi, -1")
FAIR = [int(c, 16) for c in OPT.get('fair', '15')]
FH = opt('fh', 0)
if FH: FAIR = [int(c, 16) for c in OPT.get('fair', '15')]
PCNT = [0]
def oldprio(p):
    PCNT[0] += 1
    A(f"s_cbranch_vccz L_pr{PCNT[0]}")
    A(f"s_setprio {p}")
    A(f"L_pr{PCNT[0]}:")
def fair_at(h):
    low = (lambda x: x % 16 in FAIR) if FH else (lambda x: (x % 16) // 2 in FAIR)
    if FAIR and low(h) != low(h - 1): oldprio(0 if low(h) else 2)
def body(kind):
    for t in range(8):
        if kind == 'mid' and t == 2:
            A(f"s_cmp_lg_u32 s{sCNT}, 0")
            A("s_cbranch_scc1 L_nobar")
            A("s_waitcnt vmcnt(0)")
            A("s_barrier")
            A(f"s_cmp_lg_u32 s{sW}, 0")
            A("s_cbranch_scc1 L_nobar")
            A(f"v_mov_b32 v4, s{sNL}")
            A(f"v_mov_b32 v5, s{sNH}")
            A(f"s_lshl_b32 s{t0}, s{sHG}, 3")
            A(f"v_mov_b32 v6, s{t0}")
            A("s_mov_b64 exec, 1")
            A(f"buffer_store_dwordx2 v[4:5], v6, {s(SKV,4)}, s{sF2} offen{SC}")
            A("s_mov_b64 exec, -1")
            A("L_nobar:")
        kv = kind == 'kv' and t < 6
        wo = kind == 'wo' and t < 6
        def kvslot(f):
            if kv: A("s_add_u32 m0, m0, 4096")
            f()
            if kv: A(f"buffer_load_dwordx4 v{vL16}, {s(SKV,4)}, m0 offen{SC} lds")
        a0, b0 = SS[2*(t&1)], SS[2*(t&1)+1]
        a1, b1 = SS[2*(1-(t&1))], SS[2*(1-(t&1))+1]
        PV(1, 1, b1, t - 1); fair_at(2*t); EX(a0, 0, 4)
        kvslot(lambda: M2B(a1, t + 1))
        rdR(t + 2)
        if wo: dma_wo(2*t)
        if kind == 'kv' and t == 6: ostores(vPO, vPO, SC)
        EX(a0, 4, 12)
        PV(0, 0, a0, t); EX(a0, 12, 16)
        W(0); rdV(t + 1, 1)
        PV(0, 1, a0, t); fair_at(2*t + 1); EX(b0, 0, 4)
        kvslot(lambda: M16A(0, a1, t + 1))
        if wo: dma_wo(2*t + 1)
        EX(b0, 4, 8)
        M16A(1, b1, t + 1); EX(b0, 8, 12)
        PV(1, 0, b0, t); EX(b0, 12, 16)
        rdK(t + 2); rdV(t + 2, 0)
def bump():
    for r in (AK, AV, AR): A(f"v_add_u32 v{r}, {8*TILE_B}, v{r}")
if FAIR:
    A(f"s_cmp_lt_u32 s{sW}, 4")
    A("s_cselect_b64 vcc, -1, 0")
    A("s_setprio 1")
    oldprio(0 if (15 in FAIR if FH else 7 in FAIR) else 2)
A(f"s_sub_u32 m0, s{sKVO}, 4096")
body('kv')
bump()
A(".p2align 6")
A("L_loop:")
body('mid')
bump()
A(f"s_add_u32 s{sCNT}, s{sCNT}, 1")
A(f"s_cmp_lt_u32 s{sCNT}, 2")
A("s_cbranch_scc1 L_loop")
A("s_waitcnt vmcnt(0)")
A("s_barrier")
A(f"buffer_load_dwordx2 {v(vF2D,2)}, v{vF2}, {s(SKV,4)}, s{sF2} offen{SC}")
body('wo')
PV(1, 1, SS[3], 7)
stamp('loop1')
if FAIR: A("s_setprio 0")
A.c("combine the two key halves: wave kh keeps q-block kh and sends the other one")
O0 = OO[0]
A(f"s_mov_b32 s{t0}, {f32bits(2.0**-32):#x}")
A(f"s_mov_b32 s{t1}, {f32bits(2.0**64):#x}")
A(f"s_mov_b32 s{t4}, 0x7f800000")
A(f"s_mov_b32 s{sCNT}, 0")
A("s_nop 0")
A(f"s_cmp_eq_u32 s{sP}, 1")
A("s_cbranch_scc1 L_send0")
OB = 24; DO = 60
TORD = [0, 2, 4, 6, 1, 3, 5, 7, 8]
PACE = opt('pace', 3)
PRE0 = opt('pre0', 2)
SLOTS = (list(range(80, 120, 4)) + list(range(220, 256, 4)) + list(range(148, 176, 4)) + list(range(180, 212, 4)))[:opt('ns', 30) + 1]
seq = [(t, c) for t in TORD for c in range(5)]
def o_read(n):
    t, c = seq[n]
    b = SLOTS[n % len(SLOTS)]
    a0, a1, off = (WA[0], WA[1], t * 36 * 160) if t < 8 else (WA[2], WA[3], 0)
    A(f"ds_read_b64_tr_b16 {v(b,2)}, v{a0} offset:{off + 32*c}")
    A(f"ds_read_b64_tr_b16 {v(b+2,2)}, v{a1} offset:{off + 32*c}")
def oload(t):
    if t < 8:
        A(f"s_add_u32 s{t1}, s{sOLM}, {2048*t}")
        A(f"buffer_load_dwordx4 {v(OB+4*t,4)}, v{vOM}, {s(SOI,4)}, s{t1} offen{SC}")
    else:
        A(f"buffer_load_dwordx4 {v(OB+32,4)}, v{vOR}, {s(SOI,4)}, s{sOLR} offen{SC}")
def send(q):
    A(f"ds_write_b128 v{vCO}, {v(OO[q],4)}")
    A(f"ds_write_b128 v{vCO}, {v(OO[q]+4,4)} offset:1024")
    A("s_mov_b32 exec_hi, 0")
    A(f"ds_write_b128 v{vCO}, {v(OO[q]+8,4)} offset:2048")
    A("s_mov_b32 exec_hi, -1")
def normalise(o):
    A(f"v_rcp_f32 v{T0}, v{T0}")
    A("s_nop 0")
    A(f"v_mov_b32 v{T1}, v{T0}")
    for i in range(0, 10, 2): A(f"v_pk_mul_f32 {v(o+i,2)}, {v(o+i,2)}, {v(T0,2)}")
    for i in range(5): A(f"v_cvt_pk_bf16_f32 v{16+i}, v{o+2*i}, v{o+2*i+1}")
for kh in range(2):
    o = OO[kh]
    if kh == 0: A("s_nop 4")
    else: A("L_send0:")
    send(1 - kh)
    A("s_waitcnt vmcnt(0)")
    A.c("all eight workgroups of this token block must have poisoned their part before anything is read")
    A(f"L_f2{kh}:")
    A(f"v_xor_b32 v{vF2D}, s{sNL}, v{vF2D}")
    A(f"v_xor_b32 v{vF2D+1}, s{sNH}, v{vF2D+1}")
    A(f"v_or_b32 v2, v{vF2D}, v{vF2D+1}")
    A("v_cmp_ne_u32 vcc, 0, v2")
    A(f"s_cbranch_vccnz L_f2retry{kh}")
    A(f"L_f2ok{kh}:")
    A(f"s_mov_b32 s{sCNT}, 0")
    W(0)
    A("s_barrier")
    stamp('comb')
    for i in range(3): A(f"ds_read_b128 {v(48+4*i,4)}, v{vCP} offset:{1024*i}")
    for n in range(PRE0): o_read(n)
    W(2 * PRE0 + 1)
    for i in range(0, 8, 2): A(f"v_pk_add_f32 {v(o+i,2)}, {v(o+i,2)}, {v(48+i,2)}")
    W(2 * PRE0)
    A("s_mov_b32 exec_hi, 0")
    for i in range(8, 12, 2): A(f"v_pk_add_f32 {v(o+i,2)}, {v(o+i,2)}, {v(48+i,2)}")
    A("s_mov_b32 exec_hi, -1")
    A.c("safety check of the stand-in maximum: 2^-32 <= l <= 2^64 and all O finite")
    A(f"v_mov_b32 v{T0}, v{o+10}")
    A(f"v_mov_b32 v{T1}, v{o+10}")
    A(f"v_maximum3_f32 v{T2}, |v{o}|, |v{o+1}|, |v{o+2}|")
    A(f"v_maximum3_f32 v{T3}, |v{o+3}|, |v{o+4}|, |v{o+5}|")
    A(f"v_permlane32_swap_b32 v{T0}, v{T1}")
    A(f"v_maximum3_f32 v{T2}, v{T2}, |v{o+6}|, |v{o+7}|")
    A(f"v_maximum3_f32 v{T3}, v{T3}, |v{o+8}|, |v{o+9}|")
    A(f"v_cmp_nle_f32 vcc, s{t0}, v{T0}")
    A(f"v_cmp_nge_f32 s[{sM}:{sM+1}], s{t1}, v{T0}")
    A(f"v_maximum3_f32 v{T2}, v{T2}, v{T3}, v{T3}")
    A(f"s_or_b64 vcc, vcc, s[{sM}:{sM+1}]")
    A(f"v_cmp_ngt_f32 s[{sM}:{sM+1}], s{t4}, v{T2}")
    A(f"s_or_b64 vcc, vcc, s[{sM}:{sM+1}]")
    A(f"s_cbranch_vccnz L_slow{kh}")
    normalise(o)
    if kh == 0: A("s_branch L_fin")
A("L_fin:")
if opt('fast', 1):
    A(f"s_cmp_eq_u32 s{sFAST}, 15")
    A("s_cbranch_scc1 L_ofast")
    ostores(16, 20, SC)
    A("s_branch L_odone")
    A("L_ofast:")
    ostores(16, 20, "")
    A("L_odone:")
else:
    ostores(16, 20, SC)
stamp('ostore')
A.c("==================== output projection ====================")
DELAY = opt('odelay', 6)
for n in range(PRE0, PRE0 + DELAY): o_read(n)
if opt('bare', 0): A("s_barrier")
for t in TORD[:PACE]: oload(t)
stamp('barE')
PRE = len(SLOTS) - 1
for n in range(PRE0 + DELAY, PRE): o_read(n)
issued = PRE
for n, (t, c) in enumerate(seq):
    k = n // 5
    if c == 0:
        A(f"L_ochk{k}:")
        A(f"s_waitcnt vmcnt({min(PACE - 1, 8 - k)})")
        A(f"v_max3_u32 v2, v{OB+4*t}, v{OB+4*t+1}, v{OB+4*t+2}")
        A(f"v_max_u32 v2, v2, v{OB+4*t+3}")
        A("v_cmp_eq_u32 vcc, -1, v2")
        A(f"s_cbranch_vccnz L_oretry{k}")
        A(f"L_ook{k}:")
        if k == 0: stamp('oready')
        if k + PACE < 9: oload(TORD[k + PACE])
        if opt('wb', 0) and k == opt('wbk', 6):
            A(f"s_cmp_lg_u32 s{sW}, 7")
            A("s_cbranch_scc1 L_nowb")
            A(f"s_cmp_ge_u32 s2, {opt('wb', 0)}")
            A("s_cbranch_scc1 L_nowb")
            A("buffer_wbl2 sc1")
            A("L_nowb:")
    left = issued - 1 - n
    if n == 0 and PRE > 7: W(0)
    elif n >= PRE or PRE <= 7: W(min(2 * left, 15))
    cc = "0" if k == 0 else v(DO+4*c, 4)
    A(f"v_mfma_f32_16x16x32_bf16 {v(DO+4*c,4)}, {v(SLOTS[n % len(SLOTS)],4)}, {v(OB+4*t,4)}, {cc}")
    if issued < len(seq): o_read(issued); issued += 1
stamp('omfma')
A(f"s_cmp_eq_u32 s{sKH}, 0")
A("s_cbranch_scc0 L_ofin1")
for kh in range(2):
    keep, give = ((0, 1, 4), (2, 3)) if kh == 0 else ((2, 3), (0, 1, 4))
    if kh == 1: A("L_ofin1:")
    A("s_nop 5")
    for c in give: A(f"ds_write_b128 v{vRD}, {v(DO+4*c,4)} offset:{1024*c}")
    W(0)
    A("s_barrier")
    for c in keep: A(f"ds_read_b128 {v(80+4*c,4)}, v{vRD} offset:{1024*c}")
    if opt('wide', 1):
        c0 = keep[0]
        for n, c in enumerate(keep):
            W(len(keep)-1-n)
            for i in (0, 2): A(f"v_pk_add_f32 {v(DO+4*c+i,2)}, {v(DO+4*c+i,2)}, {v(80+4*c+i,2)}")
            A(f"v_cvt_pk_bf16_f32 v{16+2*n}, v{DO+4*c}, v{DO+4*c+1}")
            A(f"v_cvt_pk_bf16_f32 v{17+2*n}, v{DO+4*c+2}, v{DO+4*c+3}")
            if n == 1 and len(keep) == 2: A("s_nop 1")
            if n == len(keep) - 1:
                A("v_permlane16_swap_b32 v16, v18")
                A("v_permlane16_swap_b32 v17, v19")
                A(f"buffer_store_dwordx4 v[16:19], v{vOB}, {s(SOUT,4)}, s{sOUT} offen offset:{32*c0}{OSC}")
                if c == 4:
                    A("s_mov_b32 exec_hi, 0")
                    A(f"buffer_store_dwordx2 v[20:21], v{vOA}, {s(SOUT,4)}, s{sOUT} offen offset:128{OSC}")
    else:
        for n, c in enumerate(keep):
            W(len(keep)-1-n)
            for i in (0, 2): A(f"v_pk_add_f32 {v(DO+4*c+i,2)}, {v(DO+4*c+i,2)}, {v(80+4*c+i,2)}")
            A(f"v_cvt_pk_bf16_f32 v{DO+4*c}, v{DO+4*c}, v{DO+4*c+1}")
            A(f"v_cvt_pk_bf16_f32 v{DO+4*c+1}, v{DO+4*c+2}, v{DO+4*c+3}")
            if c == 4: A("s_mov_b32 exec_hi, 0")
            A(f"buffer_store_dwordx2 {v(DO+4*c,2)}, v{vOA}, {s(SOUT,4)}, s{sOUT} offen offset:{32*c}")
    if kh == 0: A("s_branch L_flush" if DIAG or ECHO else "s_endpgm")
if ECHO:
    a, b = ECHO.split(':')
    A("L_flush:")
    A("s_waitcnt vmcnt(0)")
    A("s_memrealtime s[80:81]")
    A("s_waitcnt lgkmcnt(0)")
    if b == 'end': A(f"s_sub_u32 s82, s80, s{ECHOREG[a]}")
    elif a == b: A("s_mov_b32 s82, 0")
    else: A(f"s_sub_u32 s82, s{ECHOREG[b]}, s{ECHOREG[a]}")
    A("s_min_u32 s82, s82, 20000")
    A("s_mov_b32 s83, s80")
    A("L_echo:")
    A("s_memrealtime s[80:81]")
    A("s_waitcnt lgkmcnt(0)")
    A("s_sub_u32 s81, s80, s83")
    A("s_cmp_lt_u32 s81, s82")
    A("s_cbranch_scc1 L_echo")
if DIAG:
    A("L_flush:")
    A("s_mov_b64 exec, -1")
    stamp('stored')
    A("s_waitcnt vmcnt(0)")
    A("s_memtime s[80:81]")
    A("s_memrealtime s[82:83]")
    A("s_waitcnt lgkmcnt(0)")
    A(f"v_writelane_b32 v{VST}, s80, 30")
    A(f"v_writelane_b32 v{VST}, s82, 31")
    A(f"v_writelane_b32 v{VST}, s{sCNT}, 29")
    A(f"v_writelane_b32 v{VST}, s69, 28")
    A(f"v_writelane_b32 v{VST}, s{sFAST}, 27")
    A(f"s_add_u32 s96, s18, 0x400000")
    A(f"s_addc_u32 s97, s19, 0")
    A("s_mov_b32 s98, 0x80000")
    A("s_mov_b32 s99, 0x00020000")
    A(f"s_lshl_b32 s{t0}, s2, 3")
    A(f"s_add_u32 s{t0}, s{t0}, s{sW}")
    A(f"s_lshl_b32 s{t0}, s{t0}, 7")
    A("s_mov_b32 exec_hi, 0")
    A("v_lshlrev_b32 v2, 2, v1")
    A(f"buffer_store_dword v{VST}, v2, s[96:99], s{t0} offen")
A("L_end:")
A("s_endpgm")
A.c("some O fragment still holds the poison: fetch it and the ones behind it again")
for k in range(9):
    A(f"L_oretry{k}:")
    A(f"s_add_u32 s{sCNT}, s{sCNT}, 1")
    A(f"s_cmp_gt_u32 s{sCNT}, {SPIN}")
    A(f"s_cbranch_scc1 L_ook{k}")
    A("s_waitcnt vmcnt(0)")
    for u in TORD[k:k + PACE]: oload(u)
    A(f"s_branch L_ochk{k}")
for kh in range(2):
    A(f"L_f2retry{kh}:")
    A(f"s_add_u32 s{sCNT}, s{sCNT}, 1")
    A(f"s_cmp_gt_u32 s{sCNT}, {SPIN}")
    A(f"s_cbranch_scc1 L_f2ok{kh}")
    A("s_sleep 2")
    A(f"buffer_load_dwordx2 {v(vF2D,2)}, v{vF2}, {s(SKV,4)}, s{sF2} offen{SC}")
    A("s_waitcnt vmcnt(0)")
    A(f"s_branch L_f2{kh}")
A.c("fallback: online softmax with the true running maximum, K/V fragments straight from memory")
A("L_slow1:")
for i in range(4): A(f"v_mov_b32 v{QM[0]+i}, v{QM[1]+i}")
A("L_slow0:")
W(0)
MM = 9
A(f"s_add_u32 s{t0}, s{sHALF}, {24*TILE_B}")
for r in (AK, AV, AR): A(f"v_subrev_u32 v{r}, s{t0}, v{r}")
A(f"v_mov_b32 v{QR}, v{QX2}")
A(f"v_mov_b32 v{QR+1}, 0")
A(f"s_cmp_eq_u32 s{sP}, 1")
A(f"s_cselect_b64 vcc, -1, 0")
A(f"v_permlane32_swap_b32 v{QR}, v{QX2}")
A("s_nop 1")
A(f"v_cndmask_b32 v{QR}, v{QR}, v{QX2}, vcc")
A("s_mov_b32 exec_lo, 0")
A(f"v_mov_b32 v{QR}, 0")
A("s_mov_b32 exec_lo, -1")
A(f"v_mov_b32 v{MM}, 0xff800000")
for i in range(16): A(f"v_mov_b32 v{O0+i}, 0")
A(f"s_mov_b32 s{t1}, 0")
A("L_sloop:")
A(f"buffer_load_dwordx4 {v(KF,4)}, v{AK}, {s(SKV,4)}, s{t1} offen{SC}")
A(f"buffer_load_dword v{KR}, v{AR}, {s(SKV,4)}, s{t1} offen offset:2240{SC}")
A(f"buffer_load_dwordx4 {v(VF0,4)}, v{AV}, {s(SKV,4)}, s{t1} offen offset:1024{SC}")
A(f"buffer_load_dwordx4 {v(VF1,4)}, v{AV}, {s(SKV,4)}, s{t1} offen offset:1632{SC}")
A("s_waitcnt vmcnt(0)")
M16(SS[0]); M8(SS[0])
A("s_nop 11")
rowmax(SS[0], T0, T1)
A(f"v_max_f32 v{T0}, v{T0}, v{MM}")
A(f"v_sub_f32 v{T1}, v{MM}, v{T0}")
A(f"v_exp_f32 v{T1}, v{T1}")
A(f"v_mov_b32 v{MM}, v{T0}")
for i in range(16): A(f"v_mul_f32 v{O0+i}, v{O0+i}, v{T1}")
for i in range(16): A(f"v_sub_f32 v{SS[0]+i}, v{SS[0]+i}, v{T0}")
EX(SS[0], 0, 16)
A("s_nop 1")
PV(0, 0, SS[0]); PV(0, 1, SS[0])
A(f"s_add_u32 s{t1}, s{t1}, {TILE_B}")
A(f"s_cmp_lt_u32 s{t1}, {KV_B}")
A("s_cbranch_scc1 L_sloop")
A("s_nop 11")
A(f"v_mov_b32 v{T0}, v{O0+10}")
A(f"v_mov_b32 v{T1}, v{O0+10}")
A("s_nop 1")
A(f"v_permlane32_swap_b32 v{T0}, v{T1}")
A(f"s_mov_b32 s{t0}, 0xfffffffe")
normalise(O0)
for i in range(5): A(f"v_min_u32 v{16+i}, s{t0}, v{16+i}")
A("s_branch L_fin")
A("L_codeend:")
kernel_desc(A, NAME, NVGPR, 102)

DOC = '''
; Fused multi-query attention in one launch: 256 workgroups (one per CU) x 8 waves.
;   workgroup (tb, hg) = 64 tokens x 4 heads; it also projects K or V of 16 of its tokens.
;      flag tagged with a per-launch value that workgroup 0 puts in d_debug); waves 1-7 stage x and wq in LDS.
;      f32 P registers directly); a ones row of V^T gives the row sum.  Two waves share each 64 queries, one key
;   4. O is exchanged between the 8 workgroups of a token block through d_ws (poisoned first, re-read until
;      the poison is gone) and multiplied by wo (16x16x32 MFMA).
'''
HEADER = open('standalone__grouped_kv_mqa__prompt.s.ref').read().split('\n')
hdr = [l for l in HEADER if l.startswith(';') and '@launch' not in l]
out = "\n".join(hdr) + "\n; @launch grid=(256,1,1) block=(512,1,1) lds=163840" + DOC + A.text()
path = [a for a in sys.argv[1:] if a.endswith('.s')]
path = path[0] if path else 'standalone__grouped_kv_mqa__prompt.s'
open(path, 'w').write(out)
if DIAG: open(path + '.stamps', 'w').write(' '.join(STAMPS))
print("wrote", path, len(out))
```

```python
import sys, struct, math
sys.path.insert(0, 'work')
from gen_common import *

OPT = dict(a.split('=') for a in sys.argv[1:] if '=' in a)
def opt(k, d): return type(d)(OPT.get(k, d))
S_, D_, H_, DH = 2048, 576, 32, 18
ROWB = D_ * 2
TILE_B = 2368
KV_B = 64 * TILE_B
HALF_B = 32 * TILE_B
FLAG_OFF, FLAG2_OFF, OIMG_OFF = 0x30000, 0x28000, 0x40000
REPL = None
OHALF_B = 36864
OIMG_B = 64 * OHALF_B
CSCALE = (DH ** -0.5) * math.log2(math.e)
def f32bits(x): return struct.unpack('<I', struct.pack('<f', x))[0]
def nib(tab): return sum(t << (4 * i) for i, t in enumerate(tab))
DIAG = 'diag' in sys.argv
ECHO = OPT.get('echo')
SC = " sc1"
NAME = "standalone__grouped_kv_mqa__prompt_kernel"
SPIN = 0x20000
OSC = (' ' + OPT['osc'].replace('+', ' ')) if 'osc' in OPT else ''
REPL = opt('repl', 1)

A = Asm()
VST = 120
STAMPS = []
ECHOREG = {}
if ECHO:
    ea, eb = ECHO.split(':')
    ECHOREG = {ea: 69, eb: 93} if ea != eb else {ea: 69}
def stamp(name, real=False):
    if ECHO and name in ECHOREG:
        A("s_memrealtime s[80:81]")
        A("s_waitcnt lgkmcnt(0)")
        A(f"s_mov_b32 s{ECHOREG[name]}, s80")
        if ECHOREG[name] == 69: A("s_mov_b32 s93, s80")
    if DIAG:
        if name in STAMPS: i = STAMPS.index(name)
        else: i = len(STAMPS); STAMPS.append(name)
        assert i < 27
        A(f"s_mem{'real' if real else ''}time s[80:81]")
        A("s_waitcnt lgkmcnt(0)")
        A(f"v_writelane_b32 v{VST}, s80, {i}")

SX, SWQ, SWKV, SKV, SOI, SWO, SOUT, SDBG = 20, 24, 28, 32, 36, 40, 44, 48
sW, sTB, sHG, sQT, sKIND, sHL, sP = 52, 53, 54, 55, 56, 57, 58
t0, t1, t2, t3, t4, t5 = 59, 60, 61, 62, 63, 64
sKVO, sCNT, sOW, sOR = 65, 66, 67, 68
sXM, sXS, sNL, sNH, sFAST, sPAR = 70, 71, 72, 73, 74, 75
sM = 76
sF2, sWOM, sWOS, sHALF, sOLM, sOLR, sOUT, sKH, sW1 = 84, 85, 86, 87, 88, 89, 90, 91, 92
sSC = 94
sGW, sGX = [96, 97, 98], [99, 100, 101]
WKVB, XB, QXB = 29184, 87552, 153088
GPOS = [0, 58368, 29184]
PXB = 104448
FASTB = QXB + 10240
PFLG = FASTB + 32
CMB = 46336
def slot(sg): return (sg + 8) % 9
NPRE = 7
vXO, vWQ, vWK, vL16 = 3, 7, 9, 15
vN, PF = 118, 112
AK, AV, AR, IDX, vWO = 124, 125, 126, 127, 128
vQW, vQWr, vQR, vQRr, vFA, vCO, vCP = 129, 130, 131, 132, 133, 134, 135
WA = [136, 137, 138, 139]
vRD, vOA, vOM, vOR, vPA, vFO, vFP, vPW = 140, 141, 142, 143, 144, 145, 146, 147
VF1, VF0, KF, KR = 148, 152, 156, 160
VF1b, VF0b, KFb, KRb = 164, 168, 172, 176
vF2, vT = 178, 179
QM = [32, 40]; QR = 36; QX2 = 46
SS = [48, 64, 80, 96]
OO = [180, 196]
vPO, vF2D, vPR, vOB = 212, 216, 218, 219
NVGPR = 256
T0, T1, T2, T3 = 4, 5, 6, 8
KSPLIT = opt('ksplit', 0)
MERGEB = opt('mergeb', 0)
X2L = opt('x2l', 0)
FLAGAT = opt('flagat', -1)

def W(n): A(f"s_waitcnt lgkmcnt({n})")
def cpf():
    A.c("pull the kernel's own code into L2: one dword per 128-B line")
    A("s_getpc_b64 s[78:79]")
    A("L_pc:")
    A(f"s_sub_u32 s78, s78, L_pc-{NAME}")
    A("s_subb_u32 s79, s79, 0")
    A("v_lshlrev_b32 v4, 7, v1")
    A("v_mov_b32 v5, s79")
    A("v_add_co_u32 v4, vcc, s78, v4")
    A("s_nop 1")
    A("v_addc_co_u32 v5, vcc, 0, v5, vcc")
    for k in range(3):
        A(f"v_cmp_gt_u32 vcc, (L_codeend-{NAME}-{8192*k}+127)/128, v1")
        A("s_and_b64 exec, exec, vcc")
        A(f"global_load_dword v{16+k}, v[4:5], off")
        A("s_mov_b64 exec, -1")
        if k < 2:
            A("v_add_co_u32 v4, vcc, 0x2000, v4")
            A("s_nop 1")
            A("v_addc_co_u32 v5, vcc, 0, v5, vcc")
def dma_x(sg, vreg, extra=0, sreg=None):
    A(f"s_add_u32 m0, s{sXM}, {slot(sg) * 8192 - (sg % 3) * 128 + extra}")
    A(f"s_add_u32 s{t0}, s{sXS if sreg is None else sreg}, s{sGX[sg // 3]}")
    A(f"buffer_load_dwordx4 v{vreg}, {s(SX,4)}, s{t0} offen offset:{(sg % 3)*128} lds")
def wq_group(q): A(f"s_add_u32 s{t5}, s{t3}, s{sGW[q]}")
def dma_wq(i):
    A(f"s_add_u32 m0, s{t2}, {GPOS[i // 32] + (i % 32) * 912}")
    A(f"s_add_u32 s{t0}, s{t5}, {(i % 32) * 6912}")
    A(f"buffer_load_dwordx4 v{vWQ}, {s(SWQ,4)}, s{t0} offen lds")
def wq_mask(on): A(f"s_mov_b32 exec_hi, {(1 << 25) - 1:#x}" if on else "s_mov_b32 exec_hi, -1")

def setup():
    A(f"s_lshr_b32 s{sKH}, s{sW}, 2")
    A(f"s_and_b32 s{sPAR}, s{sHL}, 1")
    A(f"s_mul_i32 s{sHALF}, s{sP}, {HALF_B}")
    A.c("fragment addresses for the Q projection: v10..13 x, v14 / v8 wq")
    A("v_and_b32 v4, 31, v1")
    A("v_lshrrev_b32 v5, 1, v4")
    A("v_and_b32 v5, 7, v5")
    A("v_lshrrev_b32 v6, 5, v1")
    if KSPLIT:
        A(f"s_lshl_b32 s{t0}, s{sP}, 1")
        A(f"v_add_u32 v6, s{t0}, v6")
        A("v_xor_b32 v8, v6, v5")
        A("v_lshlrev_b32 v8, 4, v8")
        A("v_lshl_add_u32 v8, v4, 7, v8")
        A(f"s_lshl_b32 s{t0}, s{sP}, 12")
        A(f"s_add_u32 s{t0}, s{t0}, {XB + 65536}")
        A(f"v_add_u32 v10, s{t0}, v8")
        A("v_xor_b32 v11, 64, v10")
        A(f"s_lshl_b32 s{t0}, s{sP}, 13")
        A(f"s_sub_u32 s{t0}, 0x1000, s{t0}")
        A(f"v_add_u32 v12, s{t0}, v10")
        A(f"v_add_u32 v13, s{t0}, v11")
        A("v_lshrrev_b32 v6, 5, v1")
    else:
        A(f"s_lshl_b32 s{t0}, s{sP}, 5")
        A(f"v_add_u32 v4, s{t0}, v4")
        for u in range(4):
            A(f"v_add_u32 v8, {2*u}, v6")
            A("v_xor_b32 v8, v8, v5")
            A("v_lshlrev_b32 v8, 4, v8")
            A(f"v_lshl_add_u32 v{10+u}, v4, 7, v8")
            A(f"v_add_u32 v{10+u}, {XB + 65536}, v{10+u}")
    A("v_mul_u32_u24 v4, 1216, v6")
    A("v_bfe_u32 v5, v1, 3, 1")
    A("v_mul_u32_u24 v5, 304, v5")
    A("v_add_u32 v4, v4, v5")
    A("v_bfe_u32 v5, v1, 2, 1")
    A("v_mul_u32_u24 v5, 144, v5")
    A("v_add_u32 v4, v4, v5")
    A("v_and_b32 v5, 3, v1")
    A("v_bfe_u32 v8, v1, 4, 1")
    A("v_lshl_add_u32 v5, v8, 2, v5")
    A("v_lshlrev_b32 v5, 2, v5")
    A(f"s_mov_b32 s{t0}, {nib([0,2,1,3,4,0,0,0]):#x}")
    A(f"s_mov_b32 s{t1}, {nib([0,2,1,3,2,4,4,0]):#x}")
    A(f"s_cmp_eq_u32 s{sPAR}, 1")
    A(f"s_cselect_b32 s{t0}, s{t1}, s{t0}")
    A(f"s_mul_i32 s{t1}, s{sHL}, 36")
    A(f"s_and_b32 s{t1}, s{t1}, 0xf8")
    if KSPLIT:
        A(f"s_mul_i32 s{t4}, s{sP}, 2432")
        A(f"s_add_u32 s{t1}, s{t1}, s{t4}")
    A(f"v_lshrrev_b32 v5, v5, s{t0}")
    A("v_and_b32 v5, 15, v5")
    A("v_lshl_add_u32 v14, v5, 3, v4")
    A(f"v_add_u32 v14, s{t1}, v14")
    A(f"v_add_u32 v8, 0x8000, v14")
    A.c("K/V stream")
    A(f"s_mul_i32 s{sKVO}, s{sP}, 74")
    A(f"s_add_u32 s{sKVO}, s{sKVO}, s{sHL}")
    A(f"s_lshl_b32 s{sKVO}, s{sKVO}, 10")
    A(f"s_mov_b32 s{sSC}, {f32bits(CSCALE):#x}")
    A(f"s_mov_b32 s{sSC+1}, {f32bits(CSCALE):#x}")
    A("v_lshrrev_b32 v4, 1, v1")
    A("v_lshlrev_b32 v4, 7, v4")
    A("v_and_b32 v5, 1, v1")
    A(f"v_lshl_add_u32 v{vPA}, v5, 4, v4")
    A(f"v_add_u32 v{vPA}, {FLAG_OFF}, v{vPA}")
    A.c("main-loop LDS addresses")
    A("v_and_b32 v4, 31, v1")
    A(f"v_lshlrev_b32 v{AR}, 2, v4")
    A("v_lshrrev_b32 v5, 2, v4")
    A("v_lshlrev_b32 v5, 2, v5")
    A(f"s_mov_b32 s{t0}, {nib([0,3,1,2,4,0,0,0]):#x}")
    A(f"v_lshrrev_b32 v5, v5, s{t0}")
    A("v_and_b32 v5, 15, v5")
    A("v_and_b32 v6, 3, v4")
    A("v_lshl_add_u32 v5, v5, 2, v6")
    A("v_lshrrev_b32 v6, 5, v1")
    A("v_mul_u32_u24 v2, 304, v6")
    A(f"v_lshl_add_u32 v{AV}, v5, 4, v2")
    A("v_mov_b32 v2, 0x80000")
    A("v_cmp_gt_u32 vcc, 19, v4")
    A(f"v_mov_b32 v{IDX}, 0xdddd")
    A(f"v_mov_b32 v{AK}, v{vL16}")
    A(f"v_cndmask_b32 v{AV}, v2, v{AV}, vcc")
    A(f"v_mov_b32 v{KR+1}, 0x3f803f80")
    A(f"v_mov_b32 v{KRb+1}, 0x3f803f80")
    A("v_mov_b32 v4, 0")
    A("v_mov_b32 v5, 0")
    for i in range(0, 4, 2): A(f"v_pk_mov_b32 {v(VF1b+i,2)}, v[4:5], v[4:5]")
    for i in range(0, 32, 2): A(f"v_pk_mov_b32 {v(OO[0]+i,2)}, v[4:5], v[4:5]")
    A.c("Q exchange, flags")
    A(f"s_mul_i32 s{t1}, s{sW}, 1280")
    A(f"s_add_u32 s{t1}, s{t1}, {QXB}")
    A(f"v_add_u32 v{vQW}, s{t1}, v{vL16}")
    A(f"v_lshl_add_u32 v{vQWr}, v1, 3, s{t1}")
    A(f"s_and_b32 s{t1}, s{sW}, 6")
    A(f"s_mul_i32 s{t1}, s{t1}, 1280")
    A(f"s_add_u32 s{t1}, s{t1}, {QXB}")
    A(f"v_add_u32 v{vQR}, s{t1}, v{vL16}")
    A(f"v_lshl_add_u32 v{vQRr}, v1, 3, s{t1}")
    A(f"v_lshl_add_u32 v{vQRr}, v6, 10, v{vQRr}")
    A(f"v_mov_b32 v{vFA}, {FASTB}")
    A.c("O image, wo stream")
    A(f"s_lshl_b32 s{t0}, s{sTB}, 1")
    A(f"s_add_u32 s{t0}, s{t0}, s{sP}")
    A(f"s_mul_i32 s{t0}, s{t0}, {OHALF_B}")
    A(f"s_lshl_b32 s{t1}, s{sHG}, 2")
    A(f"s_add_u32 s{t1}, s{t1}, s{sHL}")
    A(f"s_lshl_b32 s{t1}, s{t1}, 10")
    A(f"s_add_u32 s{sOW}, s{t0}, s{t1}")
    A(f"s_and_b32 s{t1}, s{sHG}, 1")
    A(f"s_lshl_b32 s{t1}, s{t1}, 1")
    A(f"s_xor_b32 s{t1}, s{t1}, s{sHL}")
    A(f"s_lshl_b32 s{t1}, s{t1}, 2")
    A(f"s_lshl_b32 s{t4}, s{sHG}, 9")
    A(f"s_add_u32 s{t1}, s{t1}, s{t4}")
    A(f"s_add_u32 s{t1}, s{t1}, s{t0}")
    A(f"s_add_u32 s{sOR}, s{t1}, 32768")
    A(f"s_and_b32 s{t4}, s{sW}, 3")
    A(f"s_mul_i32 s{sWOM}, s{sW}, 960")
    A(f"s_mul_i32 s{sWOS}, s{sW}, 6912")
    for i in range(4): A(f"v_mov_b32 v{vPO+i}, -1")
    A(f"v_and_b32 v{vF2}, 7, v1")
    A(f"v_lshlrev_b32 v{vF2}, 3, v{vF2}")
    A(f"s_lshl_b32 s{sF2}, s{sTB}, 7")
    A(f"s_add_u32 s{sF2}, s{sF2}, {FLAG2_OFF}")
    mul, sh = magic_div(10, 64)
    A(f"v_mul_u32_u24 v4, {mul}, v1")
    A(f"v_lshrrev_b32 v4, {sh}, v4")
    A("v_mul_u32_u24 v5, 10, v4")
    A("v_sub_u32 v5, v1, v5")
    A("v_min_u32 v5, 8, v5")
    A(f"v_mul_u32_u24 v{vWO}, {ROWB}, v4")
    A(f"v_lshl_add_u32 v{vWO}, v5, 4, v{vWO}")
    A(f"v_add_u32 v{vWO}, s{sOUT}, v{vWO}")
    A(f"s_mul_i32 s{t0}, s{sHL}, 2560")
    A(f"s_add_u32 s{t0}, s{t0}, {CMB}")
    A(f"s_add_u32 s{t1}, s{sHALF}, s{t0}")
    A(f"v_add_u32 v{vCO}, s{t1}, v{vL16}")
    A(f"s_sub_u32 s{t1}, {HALF_B}, s{sHALF}")
    A(f"s_add_u32 s{t1}, s{t1}, s{t0}")
    A(f"v_add_u32 v{vCP}, s{t1}, v{vL16}")
    A.c("output projection (tt = w&3, kh = w>>2)")
    A("v_and_b32 v6, 15, v1")
    A("v_lshrrev_b32 v5, 4, v1")
    A(f"s_lshl_b32 s{t0}, s{sP}, 4")
    A(f"v_add_u32 v2, s{t0}, v6")
    A("v_lshlrev_b32 v2, 4, v2")
    A(f"v_lshl_add_u32 v{vOR}, v5, 9, v2")
    A(f"v_lshrrev_b32 v{vT}, 5, v1")
    A("v_bfe_u32 v4, v1, 4, 1")
    A(f"v_lshl_add_u32 v{vOM}, v{vT}, 10, v2")
    A(f"v_lshl_add_u32 v{vOM}, v4, 9, v{vOM}")
    A(f"s_lshl_b32 s{t0}, s{sTB}, 1")
    A(f"s_add_u32 s{t0}, s{t0}, s{sPAR}")
    A(f"s_mul_i32 s{t0}, s{t0}, {OHALF_B}")
    A(f"s_lshl_b32 s{t1}, s{sKH}, 14")
    A(f"s_add_u32 s{sOLM}, s{t0}, s{t1}")
    A(f"s_lshl_b32 s{t1}, s{sKH}, 11")
    A(f"s_add_u32 s{sOLR}, s{t0}, s{t1}")
    A(f"s_add_u32 s{sOLR}, s{sOLR}, 32768")
    A(f"s_lshl_b32 s{t0}, s{sTB}, 6")
    A(f"s_lshl_b32 s{t1}, s{t4}, 4")
    A(f"s_add_u32 s{t0}, s{t0}, s{t1}")
    A(f"v_add_u32 v6, s{t0}, v6")
    A(f"v_mul_u32_u24 v6, {ROWB}, v6")
    A(f"v_lshl_add_u32 v{vOA}, v5, 3, v6")
    A(f"v_lshl_add_u32 v{vOB}, v4, 5, v6")
    A(f"v_lshl_add_u32 v{vOB}, v{vT}, 4, v{vOB}")
    A(f"s_mul_i32 s{t0}, s{sPAR}, {HALF_B}")
    A(f"s_mul_i32 s{t1}, s{sP}, 5120")
    A(f"s_add_u32 s{t0}, s{t0}, s{t1}")
    A(f"s_add_u32 s{t0}, s{t0}, {24*TILE_B}")
    A(f"v_add_u32 v{vRD}, s{t0}, v{vL16}")
    A("v_bfe_u32 v2, v1, 2, 2")
    A(f"v_mul_u32_u24 v6, 18, v{vT}")
    A("v_add_u32 v6, v6, v2")
    A(f"v_mul_u32_u24 v{WA[0]}, 12, v4")
    A(f"v_lshl_add_u32 v{WA[1]}, v4, 2, 4")
    A(f"v_add_u32 v{WA[0]}, v6, v{WA[0]}")
    A(f"v_add_u32 v{WA[1]}, v6, v{WA[1]}")
    A("v_mul_u32_u24 v6, 72, v5")
    A(f"v_and_b32 v{vT}, 1, v2")
    A(f"v_add3_u32 v6, v6, v{vT}, 16")
    A("v_lshrrev_b32 v2, 1, v2")
    A("v_lshl_add_u32 v2, v4, 1, v2")
    A(f"v_xor_b32 v{vT}, 2, v2")
    A(f"v_mad_u32_u24 v{WA[2]}, v2, 18, v6")
    A(f"v_mad_u32_u24 v{WA[3]}, v{vT}, 18, v6")
    A("v_and_b32 v2, 3, v1")
    A("v_lshlrev_b32 v2, 3, v2")
    A(f"s_mul_i32 s{t0}, s{sKH}, {HALF_B}")
    A(f"v_add_u32 v2, s{t0}, v2")
    A(f"s_movk_i32 s{t0}, 160")
    for i in range(4): A(f"v_mad_u32_u24 v{WA[i]}, v{WA[i]}, s{t0}, v2")

A('.amdgcn_target "amdgcn-amd-amdhsa--gfx950"')
kernel_begin(A, NAME)
A("s_cmp_ge_u32 s2, 256")
A("s_cbranch_scc1 L_end")
if DIAG: A(f"v_mov_b32 v{VST}, 0")
stamp('entry'); stamp('rt0', True)
A("s_load_dwordx16 s[4:19], s[0:1], 0")
A("v_and_b32 v1, 63, v0")
A("v_lshrrev_b32 v2, 6, v0")
A(f"s_and_b32 s{sTB}, s2, 7")
A(f"v_readfirstlane_b32 s{sW}, v2")
A(f"s_lshr_b32 s{t1}, s2, 6")
A(f"s_lshl_b32 s{t0}, s{t1}, 3")
A(f"s_cmp_lg_u32 s{sW}, {opt('cpfw', 7)}")
A("s_cbranch_scc1 L_nocpf")
cpf()
A("L_nocpf:")
A(f"s_add_u32 s{sTB}, s{sTB}, s{t0}")
A(f"s_lshr_b32 s{sHG}, s2, 3")
A(f"s_and_b32 s{sHG}, s{sHG}, 7")
A(f"s_and_b32 s{sQT}, s{sHG}, 3")
A(f"s_lshr_b32 s{sKIND}, s{sHG}, 2")
A.c("k-group rotation: workgroups that share lines start on different groups")
A(f"s_add_u32 s{t1}, s{t1}, s{sHG}")
A(f"s_mul_i32 s{t2}, s{t1}, 11")
A(f"s_lshr_b32 s{t2}, s{t2}, 5")
A(f"s_mul_i32 s{t2}, s{t2}, 3")
A(f"s_sub_u32 s{t1}, s{t1}, s{t2}")
assert all((n * 11 >> 5) == n // 3 for n in range(11))
for q in range(3):
    A(f"s_mul_i32 s{sGW[q]}, s{t1}, {192*ROWB}")
    A(f"s_mul_i32 s{sGX[q]}, s{t1}, 384")
    if q < 2:
        A(f"s_add_u32 s{t1}, s{t1}, 1")
        A(f"s_cmp_eq_u32 s{t1}, 3")
        A(f"s_cselect_b32 s{t1}, 0, s{t1}")
A("v_lshrrev_b32 v4, 3, v1")
A("v_lshrrev_b32 v5, 4, v1")
A("v_and_b32 v6, 7, v1")
A("v_xor_b32 v5, v5, v6")
A("v_lshlrev_b32 v5, 4, v5")
A(f"s_lshl_b32 s{t0}, s{sTB}, 6")
A(f"v_add_u32 v4, s{t0}, v4")
A(f"v_mul_u32_u24 v{vXO}, {ROWB}, v4")
A(f"v_add_u32 v{vXO}, v{vXO}, v5")
A(f"v_lshlrev_b32 v{vL16}, 4, v1")
A(f"s_lshr_b32 s{sHL}, s{sW}, 1")
A(f"s_and_b32 s{sP}, s{sW}, 1")
A(f"s_sub_u32 s{sW1}, s{sW}, 1")
A(f"s_cmp_eq_u32 s{sW}, 0")
def late_common():
    mul, sh = magic_div(19, 64)
    A(f"v_mul_u32_u24 v4, {mul}, v1")
    A(f"v_lshrrev_b32 v4, {sh}, v4")
    A("v_mul_u32_u24 v5, 19, v4")
    A("v_sub_u32 v5, v1, v5")
    A("v_min_u32 v5, 17, v5")
    A("v_cmp_le_u32 vcc, 9, v5")
    A("v_lshlrev_b32 v4, 1, v4")
    A("v_subrev_u32 v6, 9, v5")
    A("v_cndmask_b32 v5, v5, v6, vcc")
    A("v_addc_co_u32 v4, vcc, 0, v4, vcc")
    A(f"v_mul_u32_u24 v{vWQ}, {ROWB}, v4")
    A(f"v_lshl_add_u32 v{vWQ}, v5, 4, v{vWQ}")
    A(f"s_mul_i32 s{sOUT}, s{sHG}, 144")
    A(f"v_add_u32 v{vWQ}, s{sOUT}, v{vWQ}")
def late_srds():
    srd(A, SWQ, 6, D_ * ROWB)
    srd(A, SKV, 18, 0x40000)
    A(f"s_add_u32 s{SOI}, s18, {OIMG_OFF}")
    A(f"s_addc_u32 s{SOI+1}, s19, 0")
    A(f"s_mov_b32 s{SOI+2}, {OIMG_B}")
    A(f"s_mov_b32 s{SOI+3}, 0x00020000")
    srd(A, SWO, 12, D_ * ROWB)
    srd(A, SOUT, 14, S_ * ROWB)
W0FIRST = opt('w0first', 1)
def emit_bulk():
    A("L_bulk:")
    A(f"s_lshl_b32 s{t0}, s{sQT}, 1")
    A(f"s_add_u32 s{t0}, s{t0}, s{sW}")
    A(f"s_add_u32 s{t0}, s{t0}, 1")
    A(f"s_and_b32 s{t0}, s{t0}, 7")
    A(f"s_lshl_b32 s{sXM}, s{t0}, 10")
    A(f"s_add_u32 s{sXM}, s{sXM}, {XB}")
    A(f"s_mul_i32 s{sXS}, s{t0}, 9216")
    A(f"s_and_b32 s{t0}, s{t0}, 1")
    A(f"s_lshl_b32 s{t0}, s{t0}, 6")
    A(f"v_xor_b32 v{vXO}, s{t0}, v{vXO}")
    late_common()
    A(f"v_mov_b32 v{vN}, 0")
    A(f"v_mov_b32 v{vN+1}, 0")
    A(f"s_mul_i32 s{t2}, s{sW1}, {4*912}")
    A(f"s_mul_i32 s{t3}, s{sW1}, {4*6912}")
    A("s_waitcnt lgkmcnt(0)")
    srd(A, SX, 4, S_ * ROWB)
    srd(A, SDBG, 16, 256)
    late_srds()
    A("L_setup:")
    setup()
    stamp('setup')
    A(f"s_cmp_eq_u32 s{sW}, 0")
    A("s_cbranch_scc1 L_flag")
    A.c("==================== waves 1..7: bulk staging of x and wq ====================")
    A("L_issue:")
    for q in range(2):
        if opt('gprio', 1): A(f"s_setprio {2 if q == 0 else 0}")
        wq_group(q)
        A(f"s_cmp_eq_u32 s{sW}, 7")
        A(f"s_cbranch_scc1 L_b7_{q}")
        for sg in range(3*q, 3*q + 3): dma_x(sg, vXO)
        wq_mask(1)
        A(f"s_branch L_bc_{q}")
        A(f"L_b7_{q}:")
        wq_mask(1)
        for j in range(4, 8): dma_wq(32*q + j)
        A(f"L_bc_{q}:")
        for j in range(4): dma_wq(32*q + j)
        wq_mask(0)
    if not X2L:
        A(f"s_cmp_eq_u32 s{sW}, 7")
        A("s_cbranch_scc1 L_nox2")
        for sg in range(6, 9): dma_x(sg, vXO)
        A("L_nox2:")
    stamp('issued')
    A("L_wait:")
    A(f"s_cmp_eq_u32 s{sW}, 7")
    A("s_cbranch_scc1 L_x2w8")
    A(f"s_waitcnt vmcnt({7 if X2L else 10})")
    A("s_branch L_join")
    A("L_x2w8:")
    A(f"s_waitcnt vmcnt(8)")
    A("s_branch L_join")
def emit_w0():
    A.c("==================== wave 0: K/V projection of 16 tokens ====================")
    A("L_w0:")
    A("s_setprio 3")
    A("s_memrealtime s[78:79]")
    mul, sh = magic_div(3, 64)
    A(f"v_mul_u32_u24 v4, {mul}, v1")
    A(f"v_lshrrev_b32 v4, {sh}, v4")
    A("v_mul_u32_u24 v5, 3, v4")
    A("v_sub_u32 v5, v1, v5")
    A(f"v_mul_u32_u24 v{vWK}, 36, v4")
    A(f"v_lshl_add_u32 v{vWK}, v5, 4, v{vWK}")
    A(f"v_xor_b32 v8, 64, v{vXO}")
    A(f"s_lshl_b32 s{sXM}, s{sQT}, 11")
    A(f"s_add_u32 s{sXM}, s{sXM}, {XB}")
    A(f"s_mul_i32 s{sXS}, s{sQT}, {2*9216}")
    A(f"s_add_u32 s{t1}, s{sXS}, 9216")
    A("v_mov_b32 v6, 0")
    A("s_waitcnt lgkmcnt(0)")
    stamp('karg')
    A(f"s_cmp_eq_u32 s{sKIND}, 1")
    A(f"s_cselect_b32 s{SWKV}, s10, s8")
    A(f"s_cselect_b32 s{SWKV+1}, s11, s9")
    A(f"s_mov_b32 s{SWKV+2}, {D_*36}")
    A(f"s_mov_b32 s{SWKV+3}, 0x00020000")
    srd(A, SX, 4, S_ * ROWB)
    srd(A, SDBG, 16, 256)
    A("s_cmp_lg_u32 s2, 0")
    A("s_cbranch_scc1 L_nononce")
    A("s_or_b32 s78, s78, 1")
    A("v_mov_b32 v4, s78")
    A("v_mov_b32 v5, s79")
    A("s_mov_b64 exec, 1")
    A(f"buffer_store_dwordx2 v[4:5], v6, {s(SDBG,4)}, 0 offen{SC}")
    A("s_mov_b64 exec, -1")
    A("L_nononce:")
    for wi in range(28):
        A(f"s_mov_b32 m0, {WKVB + 1008 * wi}")
        A(f"s_mov_b32 s{t0}, {756 * wi}")
        A(f"buffer_load_dwordx4 v{vWK}, {s(SWKV,4)}, s{t0} offen lds")
        if wi == 13:
            for sg in range(3): dma_x(sg, vXO); dma_x(sg, 8, 1024, t1)
    for sg in range(3, 9):
        dma_x(sg, vXO); dma_x(sg, 8, 1024, t1)
    A(f"buffer_load_dwordx2 v[{vN}:{vN+1}], v6, {s(SDBG,4)}, 0 offen{SC}")
    stamp('call')
    late_srds()
    late_common()
    A("v_and_b32 v4, 15, v1")
    A(f"s_lshl_b32 s{t0}, s{sQT}, 4")
    A(f"v_add_u32 v4, s{t0}, v4")
    A("v_lshrrev_b32 v5, 1, v4")
    A("v_and_b32 v5, 7, v5")
    A("v_lshrrev_b32 v6, 4, v1")
    A("v_xor_b32 v8, v6, v5")
    A("v_lshlrev_b32 v8, 4, v8")
    A("v_lshl_add_u32 v10, v4, 7, v8")
    A(f"v_add_u32 v10, {XB}, v10")
    A("v_xor_b32 v11, 64, v10")
    A("v_bfe_u32 v4, v1, 2, 2")
    A("v_lshl_add_u32 v4, v6, 3, v4")
    A("v_mul_u32_u24 v4, 48, v4")
    A("v_and_b32 v5, 3, v1")
    A("v_lshl_add_u32 v12, v5, 3, v4")
    A(f"v_add_u32 v12, {WKVB}, v12")
    for q in range(3):
        A(f"s_mul_i32 s{t0}, s{sGX[q]}, 24")
        A(f"v_add_u32 v{121+q}, s{t0}, v12")
    A("v_add_u32 v13, 0x10000, v10")
    A("v_add_u32 v14, 0x10000, v11")
    A(f"s_lshl_b32 s{t0}, s{sTB}, 1")
    A(f"s_lshr_b32 s{t1}, s{sQT}, 1")
    A(f"s_add_u32 s{t0}, s{t0}, s{t1}")
    A(f"s_mul_i32 s{t0}, s{t0}, {TILE_B}")
    A(f"s_and_b32 s{t1}, s{sQT}, 1")
    A("v_and_b32 v4, 15, v1")
    A("v_lshrrev_b32 v5, 5, v1")
    A("v_bfe_u32 v6, v1, 4, 1")
    KD = [20, 24]; KFB = 32
    def kv_reads(t):
        b = KFB + 12 * (t % 3)
        sg = t >> 1
        if t % 2 == 0 and (sg == 0 or sg >= 3): A(f"s_waitcnt vmcnt({13 if sg == 0 else 17 - 2*sg})")
        if sg == 0: A(f"ds_read_b128 {v(b,4)}, v{13 + (t & 1)}")
        else: A(f"ds_read_b128 {v(b,4)}, v{10 + (t & 1)} offset:{(sg - 1) * 8192}")
        for ct in range(2):
            for p in range(2):
                A(f"ds_read_b64_tr_b16 {v(b+4+4*ct+2*p,2)}, v{121 + t // 6} offset:{(t % 6)*1536 + p*192 + ct*32}")
    A(f"s_cmp_eq_u32 s{sKIND}, 1")
    A("s_cbranch_scc1 L_vproj")
    for which in ("k", "v"):
        if which == "v": A("L_vproj:")
        if which == "k":
            A(f"s_lshl_b32 s{t2}, s{t1}, 8")
            A(f"s_add_u32 s{t2}, s{t2}, s{t0}")
            A(f"s_lshl_b32 s{t4}, s{t1}, 6")
            A(f"s_add_u32 s{t4}, s{t4}, s{t0}")
            A("v_lshlrev_b32 v5, 9, v5")
            A("v_lshl_add_u32 v5, v4, 4, v5")
            A("v_lshl_add_u32 v16, v6, 3, v5")
            A("v_lshlrev_b32 v17, 2, v4")
        else:
            A(f"s_mul_i32 s{t2}, s{t1}, 608")
            A(f"s_add_u32 s{t2}, s{t2}, s{t0}")
            A("v_mul_u32_u24 v5, 304, v5")
            A("v_lshl_add_u32 v5, v4, 4, v5")
            A("v_lshl_add_u32 v16, v6, 3, v5")
            A("v_cmp_eq_u32 vcc, 2, v4")
            A(f"v_cmp_gt_u32 s[{sM}:{sM+1}], 3, v4")
            A("v_mov_b32 v2, 0x3f803f80")
        kv_reads(0); kv_reads(1)
        for t in range(18):
            if t + 2 < 18:
                kv_reads(t + 2)
                W(10)
            else:
                W(5 * (17 - t))
            b = KFB + 12 * (t % 3)
            for ct in range(2):
                cc = "0" if t == 0 else v(KD[ct], 4)
                if which == "k": A(f"v_mfma_f32_16x16x32_bf16 {v(KD[ct],4)}, {v(b+4+4*ct,4)}, {v(b,4)}, {cc}")
                else: A(f"v_mfma_f32_16x16x32_bf16 {v(KD[ct],4)}, {v(b,4)}, {v(b+4+4*ct,4)}, {cc}")
        A("s_nop 6")
        A(f"v_cvt_pk_bf16_f32 v28, v{KD[0]}, v{KD[0]+1}")
        A(f"v_cvt_pk_bf16_f32 v29, v{KD[0]+2}, v{KD[0]+3}")
        A(f"v_cvt_pk_bf16_f32 v30, v{KD[1]}, v{KD[1]+1}")
        if which == "k":
            A(f"buffer_store_dwordx2 v[28:29], v16, {s(SKV,4)}, s{t2} offen{SC}")
            A("s_mov_b64 exec, 0xffff")
            A(f"buffer_store_dword v30, v17, {s(SKV,4)}, s{t4} offen offset:2240{SC}")
        else:
            A(f"v_cvt_pk_bf16_f32 v31, v{KD[1]+2}, v{KD[1]+3}")
            A(f"buffer_store_dwordx2 v[28:29], v16, {s(SKV,4)}, s{t2} offen offset:1024{SC}")
            A("v_cndmask_b32 v30, v30, v2, vcc")
            A("v_cndmask_b32 v31, v31, v2, vcc")
            A(f"s_mov_b64 exec, s[{sM}:{sM+1}]")
            A(f"buffer_store_dwordx2 v[30:31], v16, {s(SKV,4)}, s{t2} offen offset:{1024+256}{SC}")
        A("s_mov_b64 exec, -1")
        stamp('kvst')
        A("s_branch L_setup")
if W0FIRST:
    A("s_cbranch_scc0 L_bulk")
    emit_w0(); emit_bulk()
else:
    A("s_cbranch_scc1 L_w0")
    emit_bulk(); emit_w0()
def flag_code(first):
    A(f"s_getreg_b32 s{t0}, hwreg(HW_REG_XCC_ID, 0, 4)")
    A(f"s_mov_b32 s{sCNT}, 0")
    A("v_mov_b32 v6, 0")
    A(f"s_waitcnt vmcnt({first})")
    A("L_nonce:")
    A(f"v_readfirstlane_b32 s{sNL}, v{vN}")
    A(f"v_readfirstlane_b32 s{sNH}, v{vN+1}")
    A(f"s_add_u32 s{sCNT}, s{sCNT}, 1")
    A(f"s_cmp_gt_u32 s{sCNT}, {SPIN}")
    A("s_cbranch_scc1 L_gotnonce")
    A(f"s_cmp_lg_u32 s{sNL}, 0")
    A("s_cbranch_scc1 L_gotnonce")
    A(f"buffer_load_dwordx2 v[{vN}:{vN+1}], v6, {s(SDBG,4)}, 0 offen{SC}")
    A("s_waitcnt vmcnt(0)")
    A("s_branch L_nonce")
    A("L_gotnonce:")
    A(f"s_and_b32 s{sNH}, s{sNH}, 0x0fffffff")
    if REPL:
        A(f"s_and_b32 s{t1}, s{t0}, 7")
        A(f"s_lshl_b32 s{t1}, s{t1}, 13")
        A(f"v_add_u32 v{vPA}, s{t1}, v{vPA}")
        A("v_lshlrev_b32 v6, 13, v1")
    A(f"s_lshl_b32 s{t0}, s{t0}, 28")
    A(f"s_or_b32 s{sFAST}, s{sNH}, s{t0}")
    A(f"s_lshl_b32 s{t0}, s{sTB}, 8")
    A(f"s_lshl_b32 s{t1}, s{sKIND}, 7")
    A(f"s_add_u32 s{t0}, s{t0}, s{t1}")
    A(f"s_lshl_b32 s{t1}, s{sQT}, 3")
    A(f"s_add_u32 s{t0}, s{t0}, s{t1}")
    A(f"s_add_u32 s{t0}, s{t0}, {FLAG_OFF}")
    A(f"v_mov_b32 v4, s{sNL}")
    A(f"v_mov_b32 v5, s{sFAST}")
    A("s_mov_b64 exec, 0xff" if REPL else "s_mov_b64 exec, 1")
    A(f"buffer_store_dwordx2 v[4:5], v6, {s(SKV,4)}, s{t0} offen{SC}")
    A("s_mov_b64 exec, -1")
    stamp('flag')
A("L_flag:")
if FLAGAT < 0: flag_code(0)
A("s_setprio 0")
A.c("==================== Q projection ====================")
A("L_join:")
A(f"s_mul_i32 s{t2}, s{sW}, {4*912}")
A(f"s_mul_i32 s{t3}, s{sW}, {4*6912}")
wq_group(2)
A("s_barrier")
stamp('barA')
G2I = opt('g2i', 1)
if not G2I:
    wq_mask(1)
    for j in range(4): dma_wq(64 + j)
    wq_mask(0)
if X2L:
    A(f"s_cmp_lt_u32 s{sW1}, 6")
    A("s_cbranch_scc0 L_nox2")
    for sg in range(6, 9): dma_x(sg, vXO)
    A("L_nox2:")
def poll_loads():
    A(f"buffer_load_dwordx4 {v(PF,4)}, v{vPA}, {s(SKV,4)}, 0 offen{SC}")
    A(f"s_movk_i32 s{t1}, 0x1000")
    A(f"buffer_load_dwordx4 {v(PF2,4)}, v{vPA}, {s(SKV,4)}, s{t1} offen{SC}")
PF, PF2, vT2 = 104, 108, 112
def dma_kv():
    A(f"s_mov_b32 m0, s{sKVO}")
    A(f"s_add_u32 s{sKVO}, s{sKVO}, 4096")
    A(f"buffer_load_dwordx4 v{vL16}, {s(SKV,4)}, m0 offen{SC} lds")
DD, DE, FB = 16, 80, 32
NST = 6 if KSPLIT else 12
NRD = 4 if KSPLIT else 3
NBUF, FSZ = opt('ahead', 3) + 1, 8
def q_reads(n):
    q, i = divmod(n, NST)
    b = FB + FSZ * (n % NBUF)
    t = 12 * q + (2 * i if KSPLIT else i)
    sg = t >> 2
    if t == 4:
        for u in range(4): A(f"v_subrev_u32 v{10+u}, 0x10000, v{10+u}")
    xo = 0 if sg == 0 else (sg - 1) * 8192
    off = GPOS[q] + (t % 12) * 2432
    wa = 14
    if off >= 32768: wa, off = 8, off - 32768
    A(f"ds_read_b64_tr_b16 {v(b,2)}, v{wa} offset:{off}")
    A(f"ds_read_b64_tr_b16 {v(b+2,2)}, v{wa} offset:{off+608}")
    if KSPLIT:
        A(f"ds_read_b128 {v(b+4,4)}, v{10 + (i & 1)} offset:{xo}")
        A(f"ds_read_b128 {v(b+8,4)}, v{12 + (i & 1)} offset:{xo}")
    else:
        A(f"ds_read_b128 {v(b+4,4)}, v{10 + (t & 3)} offset:{xo}")
POLLAT = opt('pollat', 6)
AHEAD = opt('ahead', 3)
ESYNC = opt('esync', 1)
def syncB():
    stamp('g0done')
    A(f"s_cmp_lt_u32 s{sW1}, 6")
    A("s_cbranch_scc1 L_w7")
    A("s_waitcnt vmcnt(4)")
    A("s_branch L_w4")
    A("L_w7:")
    A("s_waitcnt vmcnt(7)")
    A("L_w4:")
    A("s_barrier")
def syncC():
    stamp('g1done')
    A(f"s_cmp_lg_u32 s{sW}, 0")
    A("s_cbranch_scc1 L_polled")
    A.c("wave 0 waits for every workgroup's flag")
    A(f"s_mov_b32 s{sCNT}, 0")
    A(f"s_mov_b32 s{t0}, 0x0fffffff")
    if POLLAT >= 12: poll_loads()
    A("L_poll:")
    A("s_waitcnt vmcnt(0)")
    A(f"v_xor_b32 v4, s{sNL}, v{PF}")
    A(f"v_xor_b32 v5, s{sNL}, v{PF+2}")
    A(f"v_xor_b32 v6, s{sNL}, v{PF+4}")
    A(f"v_or3_b32 v4, v4, v5, v6")
    A(f"v_xor_b32 v2, s{sNL}, v{PF+6}")
    A(f"v_xor_b32 v5, s{sFAST}, v{PF+1}")
    A(f"v_xor_b32 v6, s{sFAST}, v{PF+3}")
    A(f"v_or_b32 v{vT2}, v5, v6")
    A(f"v_xor_b32 v5, s{sFAST}, v{PF+5}")
    A(f"v_xor_b32 v6, s{sFAST}, v{PF+7}")
    A(f"v_or_b32 v{vT2+1}, v5, v6")
    A(f"v_or_b32 v5, v{vT2}, v{vT2+1}")
    A(f"v_and_b32 v5, s{t0}, v5")
    A(f"v_or3_b32 v4, v4, v2, v5")
    A(f"s_add_u32 s{sCNT}, s{sCNT}, 1")
    A(f"v_cmp_ne_u32 vcc, 0, v4")
    A(f"s_cmp_gt_u32 s{sCNT}, {SPIN}")
    A("s_cbranch_scc1 L_pollok")
    A("s_cbranch_vccz L_pollok")
    if opt('pmask', 1): A("s_mov_b64 exec, vcc")
    A(f"s_sleep {opt('psleep', 2)}")
    poll_loads()
    A("s_branch L_poll")
    A("L_pollok:")
    A("s_mov_b64 exec, -1")
    A.c("all eight workgroups of this token block on this XCD?")
    A(f"v_cmp_eq_u32 vcc, 0, v{vT2}")
    A(f"v_cmp_eq_u32 s[{sM}:{sM+1}], 0, v{vT2+1}")
    A(f"s_cmp_ge_u32 s{sTB}, 16")
    A(f"s_cselect_b64 s[{sM}:{sM+1}], s[{sM}:{sM+1}], vcc")
    A(f"s_and_b32 s{t0}, s{sTB}, 15")
    A(f"s_lshl_b32 s{t0}, s{t0}, 2")
    A(f"s_lshr_b64 s[{sM}:{sM+1}], s[{sM}:{sM+1}], s{t0}")
    A(f"s_and_b32 s{t0}, s{sM}, 15")
    A(f"v_mov_b32 v4, s{t0}")
    A(f"v_mov_b32 v5, s{sNL}")
    A(f"v_mov_b32 v6, s{sNH}")
    A(f"ds_write_b96 v{vFA}, v[4:6]")
    if DIAG: A(f"s_mov_b32 s69, s{sCNT}")
    A("L_polled:")
    A("s_waitcnt vmcnt(0) lgkmcnt(0)")
    stamp('g2landed')
    A("s_barrier")
    stamp('barC')
    A(f"buffer_load_dwordx4 {v(KF,4)}, v{AK}, {s(SKV,4)}, 0 offen{SC}")
    A(f"buffer_load_dword v{KR}, v{AR}, {s(SKV,4)}, 0 offen offset:2240{SC}")
assert not KSPLIT and not MERGEB
nkv = 0
for n in range(AHEAD): q_reads(n)
last = AHEAD - 1
for n in range(36):
    if ESYNC:
        nx = n + AHEAD
        if nx == 12: syncB()
        if nx == 24: syncC()
        if nx < 36:
            q_reads(nx); last = nx
            if nx == 24:
                dma_kv(); dma_kv(); nkv += 2
    else:
        if n in (12, 24):
            (syncB if n == 12 else syncC)()
            for m in range(n, n + AHEAD): q_reads(m)
            last = n + AHEAD - 1
            if n == 24:
                dma_kv(); dma_kv(); nkv += 2
        if (n % 12) + AHEAD < 12:
            q_reads(n + AHEAD); last = n + AHEAD
    W(NRD * (last - n))
    b = FB + FSZ * (n % NBUF)
    A(f"v_mfma_f32_32x32x16_bf16 {v(DD,16)}, {v(b,4)}, {v(b+4,4)}, {'0' if n == 0 else v(DD,16)}")
    if 0 < nkv < NPRE and (n % opt('kvgap', 2)) == opt('kvgap', 2) - 1:
        dma_kv(); nkv += 1
    if G2I and n < 4:
        wq_mask(1); dma_wq(64 + n); wq_mask(0)
    if n == FLAGAT:
        A(f"s_cmp_lg_u32 s{sW}, 0")
        A("s_cbranch_scc1 L_noflag")
        flag_code(4)
        A("L_noflag:")
    if n == 12 + POLLAT:
        A(f"s_cmp_lg_u32 s{sW}, 0")
        A("s_cbranch_scc1 L_nopoll")
        poll_loads()
        A("L_nopoll:")
assert nkv == NPRE
stamp('qproj')
def fK(t): return KFb if t & 1 else KF
def fR(t): return KRb if t & 1 else KR
def fV(t, m): return ((VF0b, VF1b) if t & 1 else (VF0, VF1))[m]
def rdK(t): A(f"ds_read_b128 {v(fK(t),4)}, v{AK} offset:{t*TILE_B}")
def rdR(t): A(f"ds_read_b32 v{fR(t)}, v{AR} offset:{t*TILE_B+2240}")
def rdV(t, m): A(f"ds_read_b128 {v(fV(t,m),4)}, v{AV} offset:{t*TILE_B+1024+608*m}")
def M16(sd): A(f"v_mfma_f32_32x32x16_bf16 {v(sd,16)}, {v(KF,4)}, {v(QM[0],4)}, 0")
def M8(sd): A(f"v_mfma_f32_32x32x8_bf16 {v(sd,16)}, {v(KR,2)}, {v(QR,2)}, {v(sd,16)}")
def M2B(sd, t): A(f"v_mfma_f32_32x32x4_2b_bf16 {v(sd,32)}, {v(fR(t),2)}, {v(QX2,2)}, 0")
def M16A(q, sd, t): A(f"v_mfma_f32_32x32x16_bf16 {v(sd,16)}, {v(fK(t),4)}, {v(QM[q],4)}, {v(sd,16)}")
def PV(q, m, sd, t=0): A(f"v_smfmac_f32_32x32x32_bf16 {v(OO[q],16)}, {v(fV(t,m),4)}, {v(sd+8*m,8)}, v{IDX}")
def EX(sd, a, b):
    for i in range(a, b): A(f"v_exp_f32 v{sd+i}, v{sd+i}")
def rowmax(sd, dst, tmp):
    A(f"v_max3_f32 v{dst}, v{sd}, v{sd+1}, v{sd+2}")
    for i in range(3, 15, 2): A(f"v_max3_f32 v{dst}, v{dst}, v{sd+i}, v{sd+i+1}")
    A(f"v_max_f32 v{dst}, v{dst}, v{sd+15}")
    A(f"v_mov_b32 v{tmp}, v{dst}")
    A("s_nop 1")
    A(f"v_permlane32_swap_b32 v{dst}, v{tmp}")
    A("s_nop 0")
    A(f"v_max_f32 v{dst}, v{dst}, v{tmp}")
def pair_wait(tag, flagoff, addr, dst):
    A(f"L_{tag}:")
    A(f"ds_read_b32 v2, v{vFP} offset:{flagoff}")
    for i in range(3): A(f"ds_read_b128 {v(dst+4*i,4)}, v{addr} offset:{1024*i}")
    A(f"s_add_u32 s{sCNT}, s{sCNT}, 1")
    W(3)
    A(f"v_readfirstlane_b32 s{t2}, v2")
    A(f"s_cmp_gt_u32 s{sCNT}, {SPIN * 16}")
    A(f"s_cbranch_scc1 L_{tag}ok")
    A(f"s_cmp_eq_u32 s{t2}, 1")
    A(f"s_cbranch_scc1 L_{tag}ok")
    W(0)
    A("s_sleep 1")
    A(f"s_branch L_{tag}")
    A(f"L_{tag}ok:")
A.c("Q epilogue: scale by log2(e)/sqrt(18), round, row maximum over key tile 0 (stand-in maximum), LDS exchange")
A("v_mov_b32 v36, 0")
A("v_mov_b32 v37, 0")
A(f"s_cmp_eq_u32 s{sPAR}, 1")
A("s_nop 8")
A("s_cbranch_scc1 L_qodd")
for par in range(2):
    if par == 1: A("L_qodd:")
    b = 2 * par
    r = 8 if par == 0 else 14
    if KSPLIT:
        A(f"ds_write_b128 v{vPW}, {v(DE+b,4)}")
        A(f"ds_write_b128 v{vPW}, {v(DE+b+4,4)} offset:1024")
        A("s_mov_b32 exec_hi, 0")
        A(f"ds_write_b128 v{vPW}, {v(DE+(r & ~3),4)} offset:2048")
        A("s_mov_b32 exec_hi, -1")
        W(0)
        A(f"ds_write_b32 v{vFO}, v2 offset:32")
        pair_wait(f"px{par}", 32, vPR, 48)
        W(1)
        for i in range(4): A(f"v_pk_add_f32 {v(DD+b+2*i,2)}, {v(DD+b+2*i,2)}, {v(48+2*i,2)}")
        W(0)
        A(f"v_pk_add_f32 {v(DD+r,2)}, {v(DD+r,2)}, {v(56+(r & 3),2)}")
    for i in range(4): A(f"v_pk_mul_f32 {v(DD+b+2*i,2)}, {v(DD+b+2*i,2)}, s[{sSC}:{sSC+1}]")
    A(f"v_pk_mul_f32 {v(DD+r,2)}, {v(DD+r,2)}, s[{sSC}:{sSC+1}]")
    for i in range(4): A(f"v_cvt_pk_bf16_f32 v{32+i}, v{DD+b+2*i}, v{DD+b+2*i+1}")
    A("s_mov_b32 exec_hi, 0")
    A(f"v_cvt_pk_bf16_f32 v36, v{DD+r}, v{DD+r+1}")
    if par == 0: A("s_branch L_qdone")
A("L_qdone:")
A("s_mov_b32 exec_hi, -1")
A(f"s_waitcnt vmcnt({NPRE})")
M16(SS[1]); M8(SS[1])
A(f"ds_write_b128 v{vQW}, v[32:35]")
for r in (AK, AV, AR): A(f"v_add_u32 v{r}, s{sHALF}, v{r}")
for i in range(8): A(f"v_mov_b32 v{SS[3]+8+i}, 0")
rowmax(SS[1], T0, T1)
A("s_mov_b32 exec_hi, 0")
A(f"v_cvt_pk_bf16_f32 v37, -v{T0}, 0")
A(f"ds_write_b64 v{vQWr}, v[36:37] offset:1024")
A("s_mov_b32 exec_hi, -1")
A(f"s_mov_b32 s{sCNT}, 0")
A(f"s_waitcnt vmcnt(0) lgkmcnt(0)")
A("s_barrier")
stamp('barD')
rdR(0)
A(f"ds_read_b64 {v(QX2,2)}, v{vQRr} offset:1024")
rdK(0)
A(f"ds_read_b128 {v(QM[0],4)}, v{vQR}")
A(f"ds_read_b128 {v(QM[1],4)}, v{vQR} offset:1280")
A(f"ds_read_b96 v[4:6], v{vFA}")
rdR(1); rdV(0, 0); rdV(0, 1); rdK(1); rdV(1, 0)
W(9)
M2B(SS[0], 0)
W(3)
A(f"v_readfirstlane_b32 s{sFAST}, v4")
A(f"v_readfirstlane_b32 s{sNL}, v5")
A(f"v_readfirstlane_b32 s{sNH}, v6")
A("s_nop 13")
M16A(0, SS[0], 0); M16A(1, SS[1], 0)
A("s_nop 8")
stamp('loop0')
A.c("==================== attention ====================")
def dma_wo(j):
    A(f"s_add_u32 m0, s{sWOM}, {(j % 6) * 7680 + (j // 6) * HALF_B}")
    A(f"s_add_u32 s{t4}, s{sWOS}, {j * 8 * 6912}")
    A(f"buffer_load_dwordx4 v{vWO}, {s(SWO,4)}, s{t4} offen lds")
def ostores(lo, hi, sc):
    A(f"buffer_store_dwordx4 {v(lo,4)}, v{vL16}, {s(SOI,4)}, s{sOW} offen{sc}")
    A("s_mov_b32 exec_hi, 0")
    A(f"buffer_store_dword v{hi}, v{vL16}, {s(SOI,4)}, s{sOR} offen{sc}")
    A("s_mov_b32 exec_hi, -1")
FAIR = [int(c, 16) for c in OPT.get('fair', '15')]
FH = opt('fh', 0)
if FH: FAIR = [int(c, 16) for c in OPT.get('fair', '15')]
PCNT = [0]
def oldprio(p):
    PCNT[0] += 1
    A(f"s_cbranch_vccz L_pr{PCNT[0]}")
    A(f"s_setprio {p}")
    A(f"L_pr{PCNT[0]}:")
def fair_at(h):
    low = (lambda x: x % 16 in FAIR) if FH else (lambda x: (x % 16) // 2 in FAIR)
    if FAIR and low(h) != low(h - 1): oldprio(0 if low(h) else 2)
def body(kind):
    for t in range(8):
        if kind == 'mid' and t == 2:
            A(f"s_cmp_lg_u32 s{sCNT}, 0")
            A("s_cbranch_scc1 L_nobar")
            A("s_waitcnt vmcnt(0)")
            A("s_barrier")
            A(f"s_cmp_lg_u32 s{sW}, 0")
            A("s_cbranch_scc1 L_nobar")
            A(f"v_mov_b32 v4, s{sNL}")
            A(f"v_mov_b32 v5, s{sNH}")
            A(f"s_lshl_b32 s{t0}, s{sHG}, 3")
            A(f"v_mov_b32 v6, s{t0}")
            A("s_mov_b64 exec, 1")
            A(f"buffer_store_dwordx2 v[4:5], v6, {s(SKV,4)}, s{sF2} offen{SC}")
            A("s_mov_b64 exec, -1")
            A("L_nobar:")
        kv = kind == 'kv' and t < 6
        wo = kind == 'wo' and t < 6
        def kvslot(f):
            if kv: A("s_add_u32 m0, m0, 4096")
            f()
            if kv: A(f"buffer_load_dwordx4 v{vL16}, {s(SKV,4)}, m0 offen{SC} lds")
        a0, b0 = SS[2*(t&1)], SS[2*(t&1)+1]
        a1, b1 = SS[2*(1-(t&1))], SS[2*(1-(t&1))+1]
        PV(1, 1, b1, t - 1); fair_at(2*t); EX(a0, 0, 4)
        kvslot(lambda: M2B(a1, t + 1))
        rdR(t + 2)
        if wo: dma_wo(2*t)
        if kind == 'kv' and t == 6: ostores(vPO, vPO, SC)
        EX(a0, 4, 12)
        PV(0, 0, a0, t); EX(a0, 12, 16)
        W(0); rdV(t + 1, 1)
        PV(0, 1, a0, t); fair_at(2*t + 1); EX(b0, 0, 4)
        kvslot(lambda: M16A(0, a1, t + 1))
        if wo: dma_wo(2*t + 1)
        EX(b0, 4, 8)
        M16A(1, b1, t + 1); EX(b0, 8, 12)
        PV(1, 0, b0, t); EX(b0, 12, 16)
        rdK(t + 2); rdV(t + 2, 0)
def bump():
    for r in (AK, AV, AR): A(f"v_add_u32 v{r}, {8*TILE_B}, v{r}")
if FAIR:
    A(f"s_cmp_lt_u32 s{sW}, 4")
    A("s_cselect_b64 vcc, -1, 0")
    A("s_setprio 1")
    oldprio(0 if (15 in FAIR if FH else 7 in FAIR) else 2)
A(f"s_sub_u32 m0, s{sKVO}, 4096")
body('kv')
bump()
A(".p2align 6")
A("L_loop:")
body('mid')
bump()
A(f"s_add_u32 s{sCNT}, s{sCNT}, 1")
A(f"s_cmp_lt_u32 s{sCNT}, 2")
A("s_cbranch_scc1 L_loop")
A("s_waitcnt vmcnt(0)")
A("s_barrier")
A(f"buffer_load_dwordx2 {v(vF2D,2)}, v{vF2}, {s(SKV,4)}, s{sF2} offen{SC}")
body('wo')
PV(1, 1, SS[3], 7)
stamp('loop1')
if FAIR: A("s_setprio 0")
A.c("combine the two key halves: wave kh keeps q-block kh and sends the other one")
O0 = OO[0]
A(f"s_mov_b32 s{t0}, {f32bits(2.0**-32):#x}")
A(f"s_mov_b32 s{t1}, {f32bits(2.0**64):#x}")
A(f"s_mov_b32 s{t4}, 0x7f800000")
A(f"s_mov_b32 s{sCNT}, 0")
A("s_nop 0")
A(f"s_cmp_eq_u32 s{sP}, 1")
A("s_cbranch_scc1 L_send0")
OB = 24; DO = 60
TORD = [0, 2, 4, 6, 1, 3, 5, 7, 8]
PACE = opt('pace', 3)
PRE0 = opt('pre0', 2)
SLOTS = (list(range(80, 120, 4)) + list(range(220, 256, 4)) + list(range(148, 176, 4)) + list(range(180, 212, 4)))[:opt('ns', 30) + 1]
seq = [(t, c) for t in TORD for c in range(5)]
def o_read(n):
    t, c = seq[n]
    b = SLOTS[n % len(SLOTS)]
    a0, a1, off = (WA[0], WA[1], t * 36 * 160) if t < 8 else (WA[2], WA[3], 0)
    A(f"ds_read_b64_tr_b16 {v(b,2)}, v{a0} offset:{off + 32*c}")
    A(f"ds_read_b64_tr_b16 {v(b+2,2)}, v{a1} offset:{off + 32*c}")
def oload(t):
    if t < 8:
        A(f"s_add_u32 s{t1}, s{sOLM}, {2048*t}")
        A(f"buffer_load_dwordx4 {v(OB+4*t,4)}, v{vOM}, {s(SOI,4)}, s{t1} offen{SC}")
    else:
        A(f"buffer_load_dwordx4 {v(OB+32,4)}, v{vOR}, {s(SOI,4)}, s{sOLR} offen{SC}")
def send(q):
    A(f"ds_write_b128 v{vCO}, {v(OO[q],4)}")
    A(f"ds_write_b128 v{vCO}, {v(OO[q]+4,4)} offset:1024")
    A("s_mov_b32 exec_hi, 0")
    A(f"ds_write_b128 v{vCO}, {v(OO[q]+8,4)} offset:2048")
    A("s_mov_b32 exec_hi, -1")
def normalise(o):
    A(f"v_rcp_f32 v{T0}, v{T0}")
    A("s_nop 0")
    A(f"v_mov_b32 v{T1}, v{T0}")
    for i in range(0, 10, 2): A(f"v_pk_mul_f32 {v(o+i,2)}, {v(o+i,2)}, {v(T0,2)}")
    for i in range(5): A(f"v_cvt_pk_bf16_f32 v{16+i}, v{o+2*i}, v{o+2*i+1}")
for kh in range(2):
    o = OO[kh]
    if kh == 0: A("s_nop 4")
    else: A("L_send0:")
    send(1 - kh)
    A("s_waitcnt vmcnt(0)")
    A.c("all eight workgroups of this token block must have poisoned their part before anything is read")
    A(f"L_f2{kh}:")
    A(f"v_xor_b32 v{vF2D}, s{sNL}, v{vF2D}")
    A(f"v_xor_b32 v{vF2D+1}, s{sNH}, v{vF2D+1}")
    A(f"v_or_b32 v2, v{vF2D}, v{vF2D+1}")
    A("v_cmp_ne_u32 vcc, 0, v2")
    A(f"s_cbranch_vccnz L_f2retry{kh}")
    A(f"L_f2ok{kh}:")
    A(f"s_mov_b32 s{sCNT}, 0")
    W(0)
    A("s_barrier")
    stamp('comb')
    for i in range(3): A(f"ds_read_b128 {v(48+4*i,4)}, v{vCP} offset:{1024*i}")
    for n in range(PRE0): o_read(n)
    W(2 * PRE0 + 1)
    for i in range(0, 8, 2): A(f"v_pk_add_f32 {v(o+i,2)}, {v(o+i,2)}, {v(48+i,2)}")
    W(2 * PRE0)
    A("s_mov_b32 exec_hi, 0")
    for i in range(8, 12, 2): A(f"v_pk_add_f32 {v(o+i,2)}, {v(o+i,2)}, {v(48+i,2)}")
    A("s_mov_b32 exec_hi, -1")
    A.c("safety check of the stand-in maximum: 2^-32 <= l <= 2^64 and all O finite")
    A(f"v_mov_b32 v{T0}, v{o+10}")
    A(f"v_mov_b32 v{T1}, v{o+10}")
    A(f"v_maximum3_f32 v{T2}, |v{o}|, |v{o+1}|, |v{o+2}|")
    A(f"v_maximum3_f32 v{T3}, |v{o+3}|, |v{o+4}|, |v{o+5}|")
    A(f"v_permlane32_swap_b32 v{T0}, v{T1}")
    A(f"v_maximum3_f32 v{T2}, v{T2}, |v{o+6}|, |v{o+7}|")
    A(f"v_maximum3_f32 v{T3}, v{T3}, |v{o+8}|, |v{o+9}|")
    A(f"v_cmp_nle_f32 vcc, s{t0}, v{T0}")
    A(f"v_cmp_nge_f32 s[{sM}:{sM+1}], s{t1}, v{T0}")
    A(f"v_maximum3_f32 v{T2}, v{T2}, v{T3}, v{T3}")
    A(f"s_or_b64 vcc, vcc, s[{sM}:{sM+1}]")
    A(f"v_cmp_ngt_f32 s[{sM}:{sM+1}], s{t4}, v{T2}")
    A(f"s_or_b64 vcc, vcc, s[{sM}:{sM+1}]")
    A(f"s_cbranch_vccnz L_slow{kh}")
    normalise(o)
    if kh == 0: A("s_branch L_fin")
A("L_fin:")
if opt('fast', 1):
    A(f"s_cmp_eq_u32 s{sFAST}, 15")
    A("s_cbranch_scc1 L_ofast")
    ostores(16, 20, SC)
    A("s_branch L_odone")
    A("L_ofast:")
    ostores(16, 20, "")
    A("L_odone:")
else:
    ostores(16, 20, SC)
stamp('ostore')
A.c("==================== output projection ====================")
DELAY = opt('odelay', 6)
for n in range(PRE0, PRE0 + DELAY): o_read(n)
if opt('bare', 0): A("s_barrier")
for t in TORD[:PACE]: oload(t)
stamp('barE')
PRE = len(SLOTS) - 1
for n in range(PRE0 + DELAY, PRE): o_read(n)
issued = PRE
for n, (t, c) in enumerate(seq):
    k = n // 5
    if c == 0:
        A(f"L_ochk{k}:")
        A(f"s_waitcnt vmcnt({min(PACE - 1, 8 - k)})")
        A(f"v_max3_u32 v2, v{OB+4*t}, v{OB+4*t+1}, v{OB+4*t+2}")
        A(f"v_max_u32 v2, v2, v{OB+4*t+3}")
        A("v_cmp_eq_u32 vcc, -1, v2")
        A(f"s_cbranch_vccnz L_oretry{k}")
        A(f"L_ook{k}:")
        if k == 0: stamp('oready')
        if k + PACE < 9: oload(TORD[k + PACE])
        if opt('wb', 0) and k == opt('wbk', 6):
            A(f"s_cmp_lg_u32 s{sW}, 7")
            A("s_cbranch_scc1 L_nowb")
            A(f"s_cmp_ge_u32 s2, {opt('wb', 0)}")
            A("s_cbranch_scc1 L_nowb")
            A("buffer_wbl2 sc1")
            A("L_nowb:")
    left = issued - 1 - n
    if n == 0 and PRE > 7: W(0)
    elif n >= PRE or PRE <= 7: W(min(2 * left, 15))
    cc = "0" if k == 0 else v(DO+4*c, 4)
    A(f"v_mfma_f32_16x16x32_bf16 {v(DO+4*c,4)}, {v(SLOTS[n % len(SLOTS)],4)}, {v(OB+4*t,4)}, {cc}")
    if issued < len(seq): o_read(issued); issued += 1
stamp('omfma')
A(f"s_cmp_eq_u32 s{sKH}, 0")
A("s_cbranch_scc0 L_ofin1")
for kh in range(2):
    keep, give = ((0, 1, 4), (2, 3)) if kh == 0 else ((2, 3), (0, 1, 4))
    if kh == 1: A("L_ofin1:")
    A("s_nop 5")
    for c in give: A(f"ds_write_b128 v{vRD}, {v(DO+4*c,4)} offset:{1024*c}")
    W(0)
    A("s_barrier")
    for c in keep: A(f"ds_read_b128 {v(80+4*c,4)}, v{vRD} offset:{1024*c}")
    if opt('wide', 1):
        c0 = keep[0]
        for n, c in enumerate(keep):
            W(len(keep)-1-n)
            for i in (0, 2): A(f"v_pk_add_f32 {v(DO+4*c+i,2)}, {v(DO+4*c+i,2)}, {v(80+4*c+i,2)}")
            A(f"v_cvt_pk_bf16_f32 v{16+2*n}, v{DO+4*c}, v{DO+4*c+1}")
            A(f"v_cvt_pk_bf16_f32 v{17+2*n}, v{DO+4*c+2}, v{DO+4*c+3}")
            if n == 1 and len(keep) == 2: A("s_nop 1")
            if n == len(keep) - 1:
                A("v_permlane16_swap_b32 v16, v18")
                A("v_permlane16_swap_b32 v17, v19")
                A(f"buffer_store_dwordx4 v[16:19], v{vOB}, {s(SOUT,4)}, s{sOUT} offen offset:{32*c0}{OSC}")
                if c == 4:
                    A("s_mov_b32 exec_hi, 0")
                    A(f"buffer_store_dwordx2 v[20:21], v{vOA}, {s(SOUT,4)}, s{sOUT} offen offset:128{OSC}")
    else:
        for n, c in enumerate(keep):
            W(len(keep)-1-n)
            for i in (0, 2): A(f"v_pk_add_f32 {v(DO+4*c+i,2)}, {v(DO+4*c+i,2)}, {v(80+4*c+i,2)}")
            A(f"v_cvt_pk_bf16_f32 v{DO+4*c}, v{DO+4*c}, v{DO+4*c+1}")
            A(f"v_cvt_pk_bf16_f32 v{DO+4*c+1}, v{DO+4*c+2}, v{DO+4*c+3}")
            if c == 4: A("s_mov_b32 exec_hi, 0")
            A(f"buffer_store_dwordx2 {v(DO+4*c,2)}, v{vOA}, {s(SOUT,4)}, s{sOUT} offen offset:{32*c}")
    if kh == 0: A("s_branch L_flush" if DIAG or ECHO else "s_endpgm")
if ECHO:
    a, b = ECHO.split(':')
    A("L_flush:")
    A("s_waitcnt vmcnt(0)")
    A("s_memrealtime s[80:81]")
    A("s_waitcnt lgkmcnt(0)")
    if b == 'end': A(f"s_sub_u32 s82, s80, s{ECHOREG[a]}")
    elif a == b: A("s_mov_b32 s82, 0")
    else: A(f"s_sub_u32 s82, s{ECHOREG[b]}, s{ECHOREG[a]}")
    A("s_min_u32 s82, s82, 20000")
    A("s_mov_b32 s83, s80")
    A("L_echo:")
    A("s_memrealtime s[80:81]")
    A("s_waitcnt lgkmcnt(0)")
    A("s_sub_u32 s81, s80, s83")
    A("s_cmp_lt_u32 s81, s82")
    A("s_cbranch_scc1 L_echo")
if DIAG:
    A("L_flush:")
    A("s_mov_b64 exec, -1")
    stamp('stored')
    A("s_waitcnt vmcnt(0)")
    A("s_memtime s[80:81]")
    A("s_memrealtime s[82:83]")
    A("s_waitcnt lgkmcnt(0)")
    A(f"v_writelane_b32 v{VST}, s80, 30")
    A(f"v_writelane_b32 v{VST}, s82, 31")
    A(f"v_writelane_b32 v{VST}, s{sCNT}, 29")
    A(f"v_writelane_b32 v{VST}, s69, 28")
    A(f"v_writelane_b32 v{VST}, s{sFAST}, 27")
    A(f"s_add_u32 s96, s18, 0x400000")
    A(f"s_addc_u32 s97, s19, 0")
    A("s_mov_b32 s98, 0x80000")
    A("s_mov_b32 s99, 0x00020000")
    A(f"s_lshl_b32 s{t0}, s2, 3")
    A(f"s_add_u32 s{t0}, s{t0}, s{sW}")
    A(f"s_lshl_b32 s{t0}, s{t0}, 7")
    A("s_mov_b32 exec_hi, 0")
    A("v_lshlrev_b32 v2, 2, v1")
    A(f"buffer_store_dword v{VST}, v2, s[96:99], s{t0} offen")
A("L_end:")
A("s_endpgm")
A.c("some O fragment still holds the poison: fetch it and the ones behind it again")
for k in range(9):
    A(f"L_oretry{k}:")
    A(f"s_add_u32 s{sCNT}, s{sCNT}, 1")
    A(f"s_cmp_gt_u32 s{sCNT}, {SPIN}")
    A(f"s_cbranch_scc1 L_ook{k}")
    A("s_waitcnt vmcnt(0)")
    for u in TORD[k:k + PACE]: oload(u)
    A(f"s_branch L_ochk{k}")
for kh in range(2):
    A(f"L_f2retry{kh}:")
    A(f"s_add_u32 s{sCNT}, s{sCNT}, 1")
    A(f"s_cmp_gt_u32 s{sCNT}, {SPIN}")
    A(f"s_cbranch_scc1 L_f2ok{kh}")
    A("s_sleep 2")
    A(f"buffer_load_dwordx2 {v(vF2D,2)}, v{vF2}, {s(SKV,4)}, s{sF2} offen{SC}")
    A("s_waitcnt vmcnt(0)")
    A(f"s_branch L_f2{kh}")
A.c("fallback: online softmax with the true running maximum, K/V fragments straight from memory")
A("L_slow1:")
for i in range(4): A(f"v_mov_b32 v{QM[0]+i}, v{QM[1]+i}")
A("L_slow0:")
W(0)
MM = 9
A(f"s_add_u32 s{t0}, s{sHALF}, {24*TILE_B}")
for r in (AK, AV, AR): A(f"v_subrev_u32 v{r}, s{t0}, v{r}")
A(f"v_mov_b32 v{QR}, v{QX2}")
A(f"v_mov_b32 v{QR+1}, 0")
A(f"s_cmp_eq_u32 s{sP}, 1")
A(f"s_cselect_b64 vcc, -1, 0")
A(f"v_permlane32_swap_b32 v{QR}, v{QX2}")
A("s_nop 1")
A(f"v_cndmask_b32 v{QR}, v{QR}, v{QX2}, vcc")
A("s_mov_b32 exec_lo, 0")
A(f"v_mov_b32 v{QR}, 0")
A("s_mov_b32 exec_lo, -1")
A(f"v_mov_b32 v{MM}, 0xff800000")
for i in range(16): A(f"v_mov_b32 v{O0+i}, 0")
A(f"s_mov_b32 s{t1}, 0")
A("L_sloop:")
A(f"buffer_load_dwordx4 {v(KF,4)}, v{AK}, {s(SKV,4)}, s{t1} offen{SC}")
A(f"buffer_load_dword v{KR}, v{AR}, {s(SKV,4)}, s{t1} offen offset:2240{SC}")
A(f"buffer_load_dwordx4 {v(VF0,4)}, v{AV}, {s(SKV,4)}, s{t1} offen offset:1024{SC}")
A(f"buffer_load_dwordx4 {v(VF1,4)}, v{AV}, {s(SKV,4)}, s{t1} offen offset:1632{SC}")
A("s_waitcnt vmcnt(0)")
M16(SS[0]); M8(SS[0])
A("s_nop 11")
rowmax(SS[0], T0, T1)
A(f"v_max_f32 v{T0}, v{T0}, v{MM}")
A(f"v_sub_f32 v{T1}, v{MM}, v{T0}")
A(f"v_exp_f32 v{T1}, v{T1}")
A(f"v_mov_b32 v{MM}, v{T0}")
for i in range(16): A(f"v_mul_f32 v{O0+i}, v{O0+i}, v{T1}")
for i in range(16): A(f"v_sub_f32 v{SS[0]+i}, v{SS[0]+i}, v{T0}")
EX(SS[0], 0, 16)
A("s_nop 1")
PV(0, 0, SS[0]); PV(0, 1, SS[0])
A(f"s_add_u32 s{t1}, s{t1}, {TILE_B}")
A(f"s_cmp_lt_u32 s{t1}, {KV_B}")
A("s_cbranch_scc1 L_sloop")
A("s_nop 11")
A(f"v_mov_b32 v{T0}, v{O0+10}")
A(f"v_mov_b32 v{T1}, v{O0+10}")
A("s_nop 1")
A(f"v_permlane32_swap_b32 v{T0}, v{T1}")
A(f"s_mov_b32 s{t0}, 0xfffffffe")
normalise(O0)
for i in range(5): A(f"v_min_u32 v{16+i}, s{t0}, v{16+i}")
A("s_branch L_fin")
A("L_codeend:")
kernel_desc(A, NAME, NVGPR, 102)

DOC = '''
; Fused multi-query attention in one launch: 256 workgroups (one per CU) x 8 waves.
;   workgroup (tb, hg) = 64 tokens x 4 heads; it also projects K or V of 16 of its tokens.
;      flag tagged with a per-launch value that workgroup 0 puts in d_debug); waves 1-7 stage x and wq in LDS.
;      f32 P registers directly); a ones row of V^T gives the row sum.  Two waves share each 64 queries, one key
;   4. O is exchanged between the 8 workgroups of a token block through d_ws (poisoned first, re-read until
;      the poison is gone) and multiplied by wo (16x16x32 MFMA).
'''
HEADER = open('standalone__grouped_kv_mqa__prompt.s.ref').read().split('\n')
hdr = [l for l in HEADER if l.startswith(';') and '@launch' not in l]
out = "\n".join(hdr) + "\n; @launch grid=(256,1,1) block=(512,1,1) lds=163840" + DOC + A.text()
path = [a for a in sys.argv[1:] if a.endswith('.s')]
path = path[0] if path else 'standalone__grouped_kv_mqa__prompt.s'
open(path, 'w').write(out)
if DIAG: open(path + '.stamps', 'w').write(' '.join(STAMPS))
print("wrote", path, len(out))
```

```python
import sys, struct, math
sys.path.insert(0, 'work')
from gen_common import *

OPT = dict(a.split('=') for a in sys.argv[1:] if '=' in a)
def opt(k, d): return type(d)(OPT.get(k, d))
S_, D_, H_, DH = 2048, 576, 32, 18
ROWB = D_ * 2
TILE_B = 2368
KV_B = 64 * TILE_B
HALF_B = 32 * TILE_B
FLAG_OFF, FLAG2_OFF, OIMG_OFF = 0x30000, 0x28000, 0x40000
REPL = None
OHALF_B = 36864
OIMG_B = 64 * OHALF_B
CSCALE = (DH ** -0.5) * math.log2(math.e)
def f32bits(x): return struct.unpack('<I', struct.pack('<f', x))[0]
def nib(tab): return sum(t << (4 * i) for i, t in enumerate(tab))
DIAG = 'diag' in sys.argv
ECHO = OPT.get('echo')
SC = " sc1"
NAME = "standalone__grouped_kv_mqa__prompt_kernel"
SPIN = 0x20000
OSC = (' ' + OPT['osc'].replace('+', ' ')) if 'osc' in OPT else ''
REPL = opt('repl', 1)

A = Asm()
VST = 120
STAMPS = []
ECHOREG = {}
if ECHO:
    ea, eb = ECHO.split(':')
    ECHOREG = {ea: 69, eb: 93} if ea != eb else {ea: 69}
def stamp(name, real=False):
    if ECHO and name in ECHOREG:
        A("s_memrealtime s[80:81]")
        A("s_waitcnt lgkmcnt(0)")
        A(f"s_mov_b32 s{ECHOREG[name]}, s80")
        if ECHOREG[name] == 69: A("s_mov_b32 s93, s80")
    if DIAG:
        if name in STAMPS: i = STAMPS.index(name)
        else: i = len(STAMPS); STAMPS.append(name)
        assert i < 27
        A(f"s_mem{'real' if real else ''}time s[80:81]")
        A("s_waitcnt lgkmcnt(0)")
        A(f"v_writelane_b32 v{VST}, s80, {i}")

SX, SWQ, SWKV, SKV, SOI, SWO, SOUT, SDBG = 20, 24, 28, 32, 36, 40, 44, 48
sW, sTB, sHG, sQT, sKIND, sHL, sP = 52, 53, 54, 55, 56, 57, 58
t0, t1, t2, t3, t4, t5 = 59, 60, 61, 62, 63, 64
sKVO, sCNT, sOW, sOR = 65, 66, 67, 68
sXM, sXS, sNL, sNH, sFAST, sPAR = 70, 71, 72, 73, 74, 75
sM = 76
sMK = 82
sF2, sWOM, sWOS, sHALF, sOLM, sOLR, sOUT, sKH, sW1 = 84, 85, 86, 87, 88, 89, 90, 91, 92
sSC = 94
sGW, sGX = [96, 97, 98], [99, 100, 101]
WKVB, XB, QXB = 29184, 87552, 153088
GPOS = [0, 58368, 29184]
PXB = 104448
FASTB = QXB + 10240
PFLG = FASTB + 32
CMB = 46336
def slot(sg): return (sg + 8) % 9
NPRE = 7
vXO, vWQ, vWK, vL16 = 3, 7, 9, 15
vN, PF = 118, 112
AK, AV, AR, IDX, vWO = 124, 125, 126, 127, 128
vQW, vQWr, vQR, vQRr, vFA, vCO, vCP = 129, 130, 131, 132, 133, 134, 135
WA = [136, 137, 138, 139]
vRD, vOA, vOM, vOR, vPA, vFO, vFP, vPW = 140, 141, 142, 143, 144, 145, 146, 147
VF1, VF0, KF, KR = 148, 152, 156, 160
VF1b, VF0b, KFb, KRb = 164, 168, 172, 176
vF2, vT = 178, 179
QM = [32, 40]; QR = 36; QX2 = 46
SS = [48, 64, 80, 96]
OO = [180, 196]
vPO, vF2D, vPR, vOB = 212, 216, 218, 219
NVGPR = 256
T0, T1, T2, T3 = 4, 5, 6, 8
KSPLIT = opt('ksplit', 0)
MERGEB = opt('mergeb', 0)
X2L = opt('x2l', 0)
FLAGAT = opt('flagat', -1)

def W(n): A(f"s_waitcnt lgkmcnt({n})")
def cpf():
    A.c("pull the kernel's own code into L2: one dword per 128-B line")
    A("s_getpc_b64 s[78:79]")
    A("L_pc:")
    A(f"s_sub_u32 s78, s78, L_pc-{NAME}")
    A("s_subb_u32 s79, s79, 0")
    A("v_lshlrev_b32 v4, 7, v1")
    A("v_mov_b32 v5, s79")
    A("v_add_co_u32 v4, vcc, s78, v4")
    A("s_nop 1")
    A("v_addc_co_u32 v5, vcc, 0, v5, vcc")
    for k in range(3):
        A(f"v_cmp_gt_u32 vcc, (L_codeend-{NAME}-{8192*k}+127)/128, v1")
        A("s_and_b64 exec, exec, vcc")
        A(f"global_load_dword v{16+k}, v[4:5], off")
        A("s_mov_b64 exec, -1")
        if k < 2:
            A("v_add_co_u32 v4, vcc, 0x2000, v4")
            A("s_nop 1")
            A("v_addc_co_u32 v5, vcc, 0, v5, vcc")
def dma_x(sg, vreg, extra=0, sreg=None):
    A(f"s_add_u32 m0, s{sXM}, {slot(sg) * 8192 - (sg % 3) * 128 + extra}")
    A(f"s_add_u32 s{t0}, s{sXS if sreg is None else sreg}, s{sGX[sg // 3]}")
    A(f"buffer_load_dwordx4 v{vreg}, {s(SX,4)}, s{t0} offen offset:{(sg % 3)*128} lds")
def wq_group(q): A(f"s_add_u32 s{t5}, s{t3}, s{sGW[q]}")
def dma_wq(i):
    A(f"s_add_u32 m0, s{t2}, {GPOS[i // 32] + (i % 32) * 912}")
    A(f"s_add_u32 s{t0}, s{t5}, {(i % 32) * 6912}")
    A(f"buffer_load_dwordx4 v{vWQ}, {s(SWQ,4)}, s{t0} offen lds")
def wq_mask(on): A(f"s_mov_b32 exec_hi, {(1 << 25) - 1:#x}" if on else "s_mov_b32 exec_hi, -1")

def setup():
    A(f"s_lshr_b32 s{sKH}, s{sW}, 2")
    A(f"s_and_b32 s{sPAR}, s{sHL}, 1")
    A(f"s_mul_i32 s{sHALF}, s{sP}, {HALF_B}")
    A.c("fragment addresses for the Q projection: v10..13 x, v14 / v8 wq")
    A("v_and_b32 v4, 31, v1")
    A("v_lshrrev_b32 v5, 1, v4")
    A("v_and_b32 v5, 7, v5")
    A("v_lshrrev_b32 v6, 5, v1")
    if KSPLIT:
        A(f"s_lshl_b32 s{t0}, s{sP}, 1")
        A(f"v_add_u32 v6, s{t0}, v6")
        A("v_xor_b32 v8, v6, v5")
        A("v_lshlrev_b32 v8, 4, v8")
        A("v_lshl_add_u32 v8, v4, 7, v8")
        A(f"s_lshl_b32 s{t0}, s{sP}, 12")
        A(f"s_add_u32 s{t0}, s{t0}, {XB + 65536}")
        A(f"v_add_u32 v10, s{t0}, v8")
        A("v_xor_b32 v11, 64, v10")
        A(f"s_lshl_b32 s{t0}, s{sP}, 13")
        A(f"s_sub_u32 s{t0}, 0x1000, s{t0}")
        A(f"v_add_u32 v12, s{t0}, v10")
        A(f"v_add_u32 v13, s{t0}, v11")
        A("v_lshrrev_b32 v6, 5, v1")
    else:
        A(f"s_lshl_b32 s{t0}, s{sP}, 5")
        A(f"v_add_u32 v4, s{t0}, v4")
        for u in range(4):
            A(f"v_add_u32 v8, {2*u}, v6")
            A("v_xor_b32 v8, v8, v5")
            A("v_lshlrev_b32 v8, 4, v8")
            A(f"v_lshl_add_u32 v{10+u}, v4, 7, v8")
            A(f"v_add_u32 v{10+u}, {XB + 65536}, v{10+u}")
    A("v_mul_u32_u24 v4, 1216, v6")
    A("v_bfe_u32 v5, v1, 3, 1")
    A("v_mul_u32_u24 v5, 304, v5")
    A("v_add_u32 v4, v4, v5")
    A("v_bfe_u32 v5, v1, 2, 1")
    A("v_mul_u32_u24 v5, 144, v5")
    A("v_add_u32 v4, v4, v5")
    A("v_and_b32 v5, 3, v1")
    A("v_bfe_u32 v8, v1, 4, 1")
    A("v_lshl_add_u32 v5, v8, 2, v5")
    A("v_lshlrev_b32 v5, 2, v5")
    A(f"s_mov_b32 s{t0}, {nib([0,2,1,3,4,0,0,0]):#x}")
    A(f"s_mov_b32 s{t1}, {nib([0,2,1,3,2,4,4,0]):#x}")
    A(f"s_cmp_eq_u32 s{sPAR}, 1")
    A(f"s_cselect_b32 s{t0}, s{t1}, s{t0}")
    A(f"s_mul_i32 s{t1}, s{sHL}, 36")
    A(f"s_and_b32 s{t1}, s{t1}, 0xf8")
    if KSPLIT:
        A(f"s_mul_i32 s{t4}, s{sP}, 2432")
        A(f"s_add_u32 s{t1}, s{t1}, s{t4}")
    A(f"v_lshrrev_b32 v5, v5, s{t0}")
    A("v_and_b32 v5, 15, v5")
    A("v_lshl_add_u32 v14, v5, 3, v4")
    A(f"v_add_u32 v14, s{t1}, v14")
    A(f"v_add_u32 v8, 0x8000, v14")
    A.c("K/V stream")
    A(f"s_mul_i32 s{sKVO}, s{sP}, 74")
    A(f"s_add_u32 s{sKVO}, s{sKVO}, s{sHL}")
    A(f"s_lshl_b32 s{sKVO}, s{sKVO}, 10")
    A(f"s_mov_b32 s{sSC}, {f32bits(CSCALE):#x}")
    A(f"s_mov_b32 s{sSC+1}, {f32bits(CSCALE):#x}")
    A("v_lshrrev_b32 v4, 1, v1")
    A("v_lshlrev_b32 v4, 7, v4")
    A("v_and_b32 v5, 1, v1")
    A(f"v_lshl_add_u32 v{vPA}, v5, 4, v4")
    A(f"v_add_u32 v{vPA}, {FLAG_OFF}, v{vPA}")
    A.c("main-loop LDS addresses")
    A("v_and_b32 v4, 31, v1")
    A(f"v_lshlrev_b32 v{AR}, 2, v4")
    A("v_lshrrev_b32 v5, 2, v4")
    A("v_lshlrev_b32 v5, 2, v5")
    A(f"s_mov_b32 s{t0}, {nib([0,3,1,2,4,0,0,0]):#x}")
    A(f"v_lshrrev_b32 v5, v5, s{t0}")
    A("v_and_b32 v5, 15, v5")
    A("v_and_b32 v6, 3, v4")
    A("v_lshl_add_u32 v5, v5, 2, v6")
    A("v_lshrrev_b32 v6, 5, v1")
    A("v_mul_u32_u24 v2, 304, v6")
    A(f"v_lshl_add_u32 v{AV}, v5, 4, v2")
    A("v_mov_b32 v2, 0x80000")
    A("v_cmp_gt_u32 vcc, 19, v4")
    A(f"v_mov_b32 v{IDX}, 0xdddd")
    A(f"v_mov_b32 v{AK}, v{vL16}")
    A(f"v_cndmask_b32 v{AV}, v2, v{AV}, vcc")
    A(f"v_mov_b32 v{KR+1}, 0x3f803f80")
    A(f"v_mov_b32 v{KRb+1}, 0x3f803f80")
    A("v_mov_b32 v4, 0")
    A("v_mov_b32 v5, 0")
    for i in range(0, 4, 2): A(f"v_pk_mov_b32 {v(VF1b+i,2)}, v[4:5], v[4:5]")
    for i in range(0, 32, 2): A(f"v_pk_mov_b32 {v(OO[0]+i,2)}, v[4:5], v[4:5]")
    A.c("Q exchange, flags")
    A(f"s_mul_i32 s{t1}, s{sW}, 1280")
    A(f"s_add_u32 s{t1}, s{t1}, {QXB}")
    A(f"v_add_u32 v{vQW}, s{t1}, v{vL16}")
    A(f"v_lshl_add_u32 v{vQWr}, v1, 3, s{t1}")
    A(f"s_and_b32 s{t1}, s{sW}, 6")
    A(f"s_mul_i32 s{t1}, s{t1}, 1280")
    A(f"s_add_u32 s{t1}, s{t1}, {QXB}")
    A(f"v_add_u32 v{vQR}, s{t1}, v{vL16}")
    A(f"v_lshl_add_u32 v{vQRr}, v1, 3, s{t1}")
    A(f"v_lshl_add_u32 v{vQRr}, v6, 10, v{vQRr}")
    A(f"v_mov_b32 v{vFA}, {FASTB}")
    A.c("O image, wo stream")
    A(f"s_lshl_b32 s{t0}, s{sTB}, 1")
    A(f"s_add_u32 s{t0}, s{t0}, s{sP}")
    A(f"s_mul_i32 s{t0}, s{t0}, {OHALF_B}")
    A(f"s_lshl_b32 s{t1}, s{sHG}, 2")
    A(f"s_add_u32 s{t1}, s{t1}, s{sHL}")
    A(f"s_lshl_b32 s{t1}, s{t1}, 10")
    A(f"s_add_u32 s{sOW}, s{t0}, s{t1}")
    A(f"s_and_b32 s{t1}, s{sHG}, 1")
    A(f"s_lshl_b32 s{t1}, s{t1}, 1")
    A(f"s_xor_b32 s{t1}, s{t1}, s{sHL}")
    A(f"s_lshl_b32 s{t1}, s{t1}, 2")
    A(f"s_lshl_b32 s{t4}, s{sHG}, 9")
    A(f"s_add_u32 s{t1}, s{t1}, s{t4}")
    A(f"s_add_u32 s{t1}, s{t1}, s{t0}")
    A(f"s_add_u32 s{sOR}, s{t1}, 32768")
    A(f"s_and_b32 s{t4}, s{sW}, 3")
    A(f"s_mul_i32 s{sWOM}, s{sW}, 960")
    A(f"s_mul_i32 s{sWOS}, s{sW}, 6912")
    for i in range(4): A(f"v_mov_b32 v{vPO+i}, -1")
    A(f"v_and_b32 v{vF2}, 7, v1")
    A(f"v_lshlrev_b32 v{vF2}, 3, v{vF2}")
    A(f"s_lshl_b32 s{sF2}, s{sTB}, 7")
    A(f"s_add_u32 s{sF2}, s{sF2}, {FLAG2_OFF}")
    mul, sh = magic_div(10, 64)
    A(f"v_mul_u32_u24 v4, {mul}, v1")
    A(f"v_lshrrev_b32 v4, {sh}, v4")
    A("v_mul_u32_u24 v5, 10, v4")
    A("v_sub_u32 v5, v1, v5")
    A("v_min_u32 v5, 8, v5")
    A(f"v_mul_u32_u24 v{vWO}, {ROWB}, v4")
    A(f"v_lshl_add_u32 v{vWO}, v5, 4, v{vWO}")
    A(f"v_add_u32 v{vWO}, s{sOUT}, v{vWO}")
    A(f"s_mul_i32 s{t0}, s{sHL}, 2560")
    A(f"s_add_u32 s{t0}, s{t0}, {CMB}")
    A(f"s_add_u32 s{t1}, s{sHALF}, s{t0}")
    A(f"v_add_u32 v{vCO}, s{t1}, v{vL16}")
    A(f"s_sub_u32 s{t1}, {HALF_B}, s{sHALF}")
    A(f"s_add_u32 s{t1}, s{t1}, s{t0}")
    A(f"v_add_u32 v{vCP}, s{t1}, v{vL16}")
    A.c("output projection (tt = w&3, kh = w>>2)")
    A("v_and_b32 v6, 15, v1")
    A("v_lshrrev_b32 v5, 4, v1")
    A(f"s_lshl_b32 s{t0}, s{sP}, 4")
    A(f"v_add_u32 v2, s{t0}, v6")
    A("v_lshlrev_b32 v2, 4, v2")
    A(f"v_lshl_add_u32 v{vOR}, v5, 9, v2")
    A(f"v_lshrrev_b32 v{vT}, 5, v1")
    A("v_bfe_u32 v4, v1, 4, 1")
    A(f"v_lshl_add_u32 v{vOM}, v{vT}, 10, v2")
    A(f"v_lshl_add_u32 v{vOM}, v4, 9, v{vOM}")
    A(f"s_lshl_b32 s{t0}, s{sTB}, 1")
    A(f"s_add_u32 s{t0}, s{t0}, s{sPAR}")
    A(f"s_mul_i32 s{t0}, s{t0}, {OHALF_B}")
    A(f"s_lshl_b32 s{t1}, s{sKH}, 14")
    A(f"s_add_u32 s{sOLM}, s{t0}, s{t1}")
    A(f"s_lshl_b32 s{t1}, s{sKH}, 11")
    A(f"s_add_u32 s{sOLR}, s{t0}, s{t1}")
    A(f"s_add_u32 s{sOLR}, s{sOLR}, 32768")
    A(f"s_lshl_b32 s{t0}, s{sTB}, 6")
    A(f"s_lshl_b32 s{t1}, s{t4}, 4")
    A(f"s_add_u32 s{t0}, s{t0}, s{t1}")
    A(f"v_add_u32 v6, s{t0}, v6")
    A(f"v_mul_u32_u24 v6, {ROWB}, v6")
    A(f"v_lshl_add_u32 v{vOA}, v5, 3, v6")
    A(f"v_lshl_add_u32 v{vOB}, v4, 5, v6")
    A(f"v_lshl_add_u32 v{vOB}, v{vT}, 4, v{vOB}")
    A(f"s_mul_i32 s{t0}, s{sPAR}, {HALF_B}")
    A(f"s_mul_i32 s{t1}, s{sP}, 5120")
    A(f"s_add_u32 s{t0}, s{t0}, s{t1}")
    A(f"s_add_u32 s{t0}, s{t0}, {24*TILE_B}")
    A(f"v_add_u32 v{vRD}, s{t0}, v{vL16}")
    A("v_bfe_u32 v2, v1, 2, 2")
    A(f"v_mul_u32_u24 v6, 18, v{vT}")
    A("v_add_u32 v6, v6, v2")
    A(f"v_mul_u32_u24 v{WA[0]}, 12, v4")
    A(f"v_lshl_add_u32 v{WA[1]}, v4, 2, 4")
    A(f"v_add_u32 v{WA[0]}, v6, v{WA[0]}")
    A(f"v_add_u32 v{WA[1]}, v6, v{WA[1]}")
    A("v_mul_u32_u24 v6, 72, v5")
    A(f"v_and_b32 v{vT}, 1, v2")
    A(f"v_add3_u32 v6, v6, v{vT}, 16")
    A("v_lshrrev_b32 v2, 1, v2")
    A("v_lshl_add_u32 v2, v4, 1, v2")
    A(f"v_xor_b32 v{vT}, 2, v2")
    A(f"v_mad_u32_u24 v{WA[2]}, v2, 18, v6")
    A(f"v_mad_u32_u24 v{WA[3]}, v{vT}, 18, v6")
    A("v_and_b32 v2, 3, v1")
    A("v_lshlrev_b32 v2, 3, v2")
    A(f"s_mul_i32 s{t0}, s{sKH}, {HALF_B}")
    A(f"v_add_u32 v2, s{t0}, v2")
    A(f"s_movk_i32 s{t0}, 160")
    for i in range(4): A(f"v_mad_u32_u24 v{WA[i]}, v{WA[i]}, s{t0}, v2")

A('.amdgcn_target "amdgcn-amd-amdhsa--gfx950"')
kernel_begin(A, NAME)
A("s_cmp_ge_u32 s2, 256")
A("s_cbranch_scc1 L_end")
if DIAG: A(f"v_mov_b32 v{VST}, 0")
stamp('entry'); stamp('rt0', True)
A("s_load_dwordx16 s[4:19], s[0:1], 0")
A("v_and_b32 v1, 63, v0")
A("v_lshrrev_b32 v2, 6, v0")
A(f"s_and_b32 s{sTB}, s2, 7")
A(f"v_readfirstlane_b32 s{sW}, v2")
A(f"s_lshr_b32 s{t1}, s2, 6")
A(f"s_lshl_b32 s{t0}, s{t1}, 3")
A(f"s_cmp_lg_u32 s{sW}, {opt('cpfw', 7)}")
A("s_cbranch_scc1 L_nocpf")
cpf()
A("L_nocpf:")
A(f"s_add_u32 s{sTB}, s{sTB}, s{t0}")
A(f"s_lshr_b32 s{sHG}, s2, 3")
A(f"s_and_b32 s{sHG}, s{sHG}, 7")
A(f"s_and_b32 s{sQT}, s{sHG}, 3")
A(f"s_lshr_b32 s{sKIND}, s{sHG}, 2")
A.c("k-group rotation: workgroups that share lines start on different groups")
A(f"s_add_u32 s{t1}, s{t1}, s{sHG}")
A(f"s_mul_i32 s{t2}, s{t1}, 11")
A(f"s_lshr_b32 s{t2}, s{t2}, 5")
A(f"s_mul_i32 s{t2}, s{t2}, 3")
A(f"s_sub_u32 s{t1}, s{t1}, s{t2}")
assert all((n * 11 >> 5) == n // 3 for n in range(11))
for q in range(3):
    A(f"s_mul_i32 s{sGW[q]}, s{t1}, {192*ROWB}")
    A(f"s_mul_i32 s{sGX[q]}, s{t1}, 384")
    if q < 2:
        A(f"s_add_u32 s{t1}, s{t1}, 1")
        A(f"s_cmp_eq_u32 s{t1}, 3")
        A(f"s_cselect_b32 s{t1}, 0, s{t1}")
A("v_lshrrev_b32 v4, 3, v1")
A("v_lshrrev_b32 v5, 4, v1")
A("v_and_b32 v6, 7, v1")
A("v_xor_b32 v5, v5, v6")
A("v_lshlrev_b32 v5, 4, v5")
A(f"s_lshl_b32 s{t0}, s{sTB}, 6")
A(f"v_add_u32 v4, s{t0}, v4")
A(f"v_mul_u32_u24 v{vXO}, {ROWB}, v4")
A(f"v_add_u32 v{vXO}, v{vXO}, v5")
A(f"v_lshlrev_b32 v{vL16}, 4, v1")
A(f"s_lshr_b32 s{sHL}, s{sW}, 1")
A(f"s_and_b32 s{sP}, s{sW}, 1")
A(f"s_sub_u32 s{sW1}, s{sW}, 1")
A(f"s_cmp_eq_u32 s{sW}, 0")
def late_common():
    mul, sh = magic_div(19, 64)
    A(f"v_mul_u32_u24 v4, {mul}, v1")
    A(f"v_lshrrev_b32 v4, {sh}, v4")
    A("v_mul_u32_u24 v5, 19, v4")
    A("v_sub_u32 v5, v1, v5")
    A("v_min_u32 v5, 17, v5")
    A("v_cmp_le_u32 vcc, 9, v5")
    A("v_lshlrev_b32 v4, 1, v4")
    A("v_subrev_u32 v6, 9, v5")
    A("v_cndmask_b32 v5, v5, v6, vcc")
    A("v_addc_co_u32 v4, vcc, 0, v4, vcc")
    A(f"v_mul_u32_u24 v{vWQ}, {ROWB}, v4")
    A(f"v_lshl_add_u32 v{vWQ}, v5, 4, v{vWQ}")
    A(f"s_mul_i32 s{sOUT}, s{sHG}, 144")
    A(f"v_add_u32 v{vWQ}, s{sOUT}, v{vWQ}")
def late_srds():
    srd(A, SWQ, 6, D_ * ROWB)
    srd(A, SKV, 18, 0x40000)
    A(f"s_add_u32 s{SOI}, s18, {OIMG_OFF}")
    A(f"s_addc_u32 s{SOI+1}, s19, 0")
    A(f"s_mov_b32 s{SOI+2}, {OIMG_B}")
    A(f"s_mov_b32 s{SOI+3}, 0x00020000")
    srd(A, SWO, 12, D_ * ROWB)
    srd(A, SOUT, 14, S_ * ROWB)
W0FIRST = opt('w0first', 1)
def emit_bulk():
    A("L_bulk:")
    A(f"s_lshl_b32 s{t0}, s{sQT}, 1")
    A(f"s_add_u32 s{t0}, s{t0}, s{sW}")
    A(f"s_add_u32 s{t0}, s{t0}, 1")
    A(f"s_and_b32 s{t0}, s{t0}, 7")
    A(f"s_lshl_b32 s{sXM}, s{t0}, 10")
    A(f"s_add_u32 s{sXM}, s{sXM}, {XB}")
    A(f"s_mul_i32 s{sXS}, s{t0}, 9216")
    A(f"s_and_b32 s{t0}, s{t0}, 1")
    A(f"s_lshl_b32 s{t0}, s{t0}, 6")
    A(f"v_xor_b32 v{vXO}, s{t0}, v{vXO}")
    late_common()
    A(f"v_mov_b32 v{vN}, 0")
    A(f"v_mov_b32 v{vN+1}, 0")
    A(f"s_mul_i32 s{t2}, s{sW1}, {4*912}")
    A(f"s_mul_i32 s{t3}, s{sW1}, {4*6912}")
    A("s_waitcnt lgkmcnt(0)")
    srd(A, SX, 4, S_ * ROWB)
    srd(A, SDBG, 16, 256)
    late_srds()
    A("L_setup:")
    setup()
    stamp('setup')
    A(f"s_cmp_eq_u32 s{sW}, 0")
    A("s_cbranch_scc1 L_flag")
    A.c("==================== waves 1..7: bulk staging of x and wq ====================")
    A("L_issue:")
    for q in range(2):
        if opt('gprio', 1): A(f"s_setprio {2 if q == 0 else 0}")
        wq_group(q)
        A(f"s_cmp_eq_u32 s{sW}, 7")
        A(f"s_cbranch_scc1 L_b7_{q}")
        for sg in range(3*q, 3*q + 3): dma_x(sg, vXO)
        wq_mask(1)
        A(f"s_branch L_bc_{q}")
        A(f"L_b7_{q}:")
        wq_mask(1)
        for j in range(4, 8): dma_wq(32*q + j)
        A(f"L_bc_{q}:")
        for j in range(4): dma_wq(32*q + j)
        wq_mask(0)
    if not X2L:
        A(f"s_cmp_eq_u32 s{sW}, 7")
        A("s_cbranch_scc1 L_nox2")
        for sg in range(6, 9): dma_x(sg, vXO)
        A("L_nox2:")
    stamp('issued')
    A("L_wait:")
    A(f"s_cmp_eq_u32 s{sW}, 7")
    A("s_cbranch_scc1 L_x2w8")
    A(f"s_waitcnt vmcnt({7 if X2L else 10})")
    A("s_branch L_join")
    A("L_x2w8:")
    A(f"s_waitcnt vmcnt(8)")
    A("s_branch L_join")
def emit_w0():
    A.c("==================== wave 0: K/V projection of 16 tokens ====================")
    A("L_w0:")
    A("s_setprio 3")
    A("s_memrealtime s[78:79]")
    mul, sh = magic_div(3, 64)
    A(f"v_mul_u32_u24 v4, {mul}, v1")
    A(f"v_lshrrev_b32 v4, {sh}, v4")
    A("v_mul_u32_u24 v5, 3, v4")
    A("v_sub_u32 v5, v1, v5")
    A(f"v_mul_u32_u24 v{vWK}, 36, v4")
    A(f"v_lshl_add_u32 v{vWK}, v5, 4, v{vWK}")
    A(f"v_xor_b32 v8, 64, v{vXO}")
    A(f"s_lshl_b32 s{sXM}, s{sQT}, 11")
    A(f"s_add_u32 s{sXM}, s{sXM}, {XB}")
    A(f"s_mul_i32 s{sXS}, s{sQT}, {2*9216}")
    A(f"s_add_u32 s{t1}, s{sXS}, 9216")
    A("v_mov_b32 v6, 0")
    A("s_waitcnt lgkmcnt(0)")
    stamp('karg')
    A(f"s_cmp_eq_u32 s{sKIND}, 1")
    A(f"s_cselect_b32 s{SWKV}, s10, s8")
    A(f"s_cselect_b32 s{SWKV+1}, s11, s9")
    A(f"s_mov_b32 s{SWKV+2}, {D_*36}")
    A(f"s_mov_b32 s{SWKV+3}, 0x00020000")
    srd(A, SX, 4, S_ * ROWB)
    srd(A, SDBG, 16, 256)
    A("s_cmp_lg_u32 s2, 0")
    A("s_cbranch_scc1 L_nononce")
    A("s_or_b32 s78, s78, 1")
    A("v_mov_b32 v4, s78")
    A("v_mov_b32 v5, s79")
    A("s_mov_b64 exec, 1")
    A(f"buffer_store_dwordx2 v[4:5], v6, {s(SDBG,4)}, 0 offen{SC}")
    A("s_mov_b64 exec, -1")
    A("L_nononce:")
    for wi in range(28):
        A(f"s_mov_b32 m0, {WKVB + 1008 * wi}")
        A(f"s_mov_b32 s{t0}, {756 * wi}")
        A(f"buffer_load_dwordx4 v{vWK}, {s(SWKV,4)}, s{t0} offen lds")
        if wi == 13:
            for sg in range(3): dma_x(sg, vXO); dma_x(sg, 8, 1024, t1)
    for sg in range(3, 9):
        dma_x(sg, vXO); dma_x(sg, 8, 1024, t1)
    A(f"buffer_load_dwordx2 v[{vN}:{vN+1}], v6, {s(SDBG,4)}, 0 offen{SC}")
    stamp('call')
    late_srds()
    late_common()
    A("v_and_b32 v4, 15, v1")
    A(f"s_lshl_b32 s{t0}, s{sQT}, 4")
    A(f"v_add_u32 v4, s{t0}, v4")
    A("v_lshrrev_b32 v5, 1, v4")
    A("v_and_b32 v5, 7, v5")
    A("v_lshrrev_b32 v6, 4, v1")
    A("v_xor_b32 v8, v6, v5")
    A("v_lshlrev_b32 v8, 4, v8")
    A("v_lshl_add_u32 v10, v4, 7, v8")
    A(f"v_add_u32 v10, {XB}, v10")
    A("v_xor_b32 v11, 64, v10")
    A("v_bfe_u32 v4, v1, 2, 2")
    A("v_lshl_add_u32 v4, v6, 3, v4")
    A("v_mul_u32_u24 v4, 48, v4")
    A("v_and_b32 v5, 3, v1")
    A("v_lshl_add_u32 v12, v5, 3, v4")
    A(f"v_add_u32 v12, {WKVB}, v12")
    for q in range(3):
        A(f"s_mul_i32 s{t0}, s{sGX[q]}, 24")
        A(f"v_add_u32 v{121+q}, s{t0}, v12")
    A("v_add_u32 v13, 0x10000, v10")
    A("v_add_u32 v14, 0x10000, v11")
    A(f"s_lshl_b32 s{t0}, s{sTB}, 1")
    A(f"s_lshr_b32 s{t1}, s{sQT}, 1")
    A(f"s_add_u32 s{t0}, s{t0}, s{t1}")
    A(f"s_mul_i32 s{t0}, s{t0}, {TILE_B}")
    A(f"s_and_b32 s{t1}, s{sQT}, 1")
    A("v_and_b32 v4, 15, v1")
    A("v_lshrrev_b32 v5, 5, v1")
    A("v_bfe_u32 v6, v1, 4, 1")
    KD = [20, 24]; KFB = 32
    def kv_reads(t):
        b = KFB + 12 * (t % 3)
        sg = t >> 1
        if t % 2 == 0 and (sg == 0 or sg >= 3): A(f"s_waitcnt vmcnt({13 if sg == 0 else 17 - 2*sg})")
        if sg == 0: A(f"ds_read_b128 {v(b,4)}, v{13 + (t & 1)}")
        else: A(f"ds_read_b128 {v(b,4)}, v{10 + (t & 1)} offset:{(sg - 1) * 8192}")
        for ct in range(2):
            for p in range(2):
                A(f"ds_read_b64_tr_b16 {v(b+4+4*ct+2*p,2)}, v{121 + t // 6} offset:{(t % 6)*1536 + p*192 + ct*32}")
    A(f"s_cmp_eq_u32 s{sKIND}, 1")
    A("s_cbranch_scc1 L_vproj")
    for which in ("k", "v"):
        if which == "v": A("L_vproj:")
        if which == "k":
            A(f"s_lshl_b32 s{t2}, s{t1}, 8")
            A(f"s_add_u32 s{t2}, s{t2}, s{t0}")
            A(f"s_lshl_b32 s{t4}, s{t1}, 6")
            A(f"s_add_u32 s{t4}, s{t4}, s{t0}")
            A("v_lshlrev_b32 v5, 9, v5")
            A("v_lshl_add_u32 v5, v4, 4, v5")
            A("v_lshl_add_u32 v16, v6, 3, v5")
            A("v_lshlrev_b32 v17, 2, v4")
        else:
            A(f"s_mul_i32 s{t2}, s{t1}, 608")
            A(f"s_add_u32 s{t2}, s{t2}, s{t0}")
            A("v_mul_u32_u24 v5, 304, v5")
            A("v_lshl_add_u32 v5, v4, 4, v5")
            A("v_lshl_add_u32 v16, v6, 3, v5")
            A("v_cmp_eq_u32 vcc, 2, v4")
            A(f"v_cmp_gt_u32 s[{sM}:{sM+1}], 3, v4")
            A("v_mov_b32 v2, 0x3f803f80")
        kv_reads(0); kv_reads(1)
        for t in range(18):
            if t + 2 < 18:
                kv_reads(t + 2)
                W(10)
            else:
                W(5 * (17 - t))
            b = KFB + 12 * (t % 3)
            for ct in range(2):
                cc = "0" if t == 0 else v(KD[ct], 4)
                if which == "k": A(f"v_mfma_f32_16x16x32_bf16 {v(KD[ct],4)}, {v(b+4+4*ct,4)}, {v(b,4)}, {cc}")
                else: A(f"v_mfma_f32_16x16x32_bf16 {v(KD[ct],4)}, {v(b,4)}, {v(b+4+4*ct,4)}, {cc}")
        A("s_nop 6")
        A(f"v_cvt_pk_bf16_f32 v28, v{KD[0]}, v{KD[0]+1}")
        A(f"v_cvt_pk_bf16_f32 v29, v{KD[0]+2}, v{KD[0]+3}")
        A(f"v_cvt_pk_bf16_f32 v30, v{KD[1]}, v{KD[1]+1}")
        if which == "k":
            A(f"buffer_store_dwordx2 v[28:29], v16, {s(SKV,4)}, s{t2} offen{SC}")
            A("s_mov_b64 exec, 0xffff")
            A(f"buffer_store_dword v30, v17, {s(SKV,4)}, s{t4} offen offset:2240{SC}")
        else:
            A(f"v_cvt_pk_bf16_f32 v31, v{KD[1]+2}, v{KD[1]+3}")
            A(f"buffer_store_dwordx2 v[28:29], v16, {s(SKV,4)}, s{t2} offen offset:1024{SC}")
            A("v_cndmask_b32 v30, v30, v2, vcc")
            A("v_cndmask_b32 v31, v31, v2, vcc")
            A(f"s_mov_b64 exec, s[{sM}:{sM+1}]")
            A(f"buffer_store_dwordx2 v[30:31], v16, {s(SKV,4)}, s{t2} offen offset:{1024+256}{SC}")
        A("s_mov_b64 exec, -1")
        stamp('kvst')
        A("s_branch L_setup")
if W0FIRST:
    A("s_cbranch_scc0 L_bulk")
    emit_w0(); emit_bulk()
else:
    A("s_cbranch_scc1 L_w0")
    emit_bulk(); emit_w0()
def flag_code(first):
    A(f"s_getreg_b32 s{t0}, hwreg(HW_REG_XCC_ID, 0, 4)")
    A(f"s_mov_b32 s{sCNT}, 0")
    A("v_mov_b32 v6, 0")
    A(f"s_waitcnt vmcnt({first})")
    A("L_nonce:")
    A(f"v_readfirstlane_b32 s{sNL}, v{vN}")
    A(f"v_readfirstlane_b32 s{sNH}, v{vN+1}")
    A(f"s_add_u32 s{sCNT}, s{sCNT}, 1")
    A(f"s_cmp_gt_u32 s{sCNT}, {SPIN}")
    A("s_cbranch_scc1 L_gotnonce")
    A(f"s_cmp_lg_u32 s{sNL}, 0")
    A("s_cbranch_scc1 L_gotnonce")
    A(f"buffer_load_dwordx2 v[{vN}:{vN+1}], v6, {s(SDBG,4)}, 0 offen{SC}")
    A("s_waitcnt vmcnt(0)")
    A("s_branch L_nonce")
    A("L_gotnonce:")
    A(f"s_and_b32 s{sNH}, s{sNH}, 0x0fffffff")
    if REPL:
        A(f"s_and_b32 s{t1}, s{t0}, 7")
        A(f"s_lshl_b32 s{t1}, s{t1}, 13")
        A(f"v_add_u32 v{vPA}, s{t1}, v{vPA}")
        A("v_lshlrev_b32 v6, 13, v1")
    A(f"s_lshl_b32 s{t0}, s{t0}, 28")
    A(f"s_or_b32 s{sFAST}, s{sNH}, s{t0}")
    A(f"s_lshl_b32 s{t0}, s{sTB}, 8")
    A(f"s_lshl_b32 s{t1}, s{sKIND}, 7")
    A(f"s_add_u32 s{t0}, s{t0}, s{t1}")
    A(f"s_lshl_b32 s{t1}, s{sQT}, 3")
    A(f"s_add_u32 s{t0}, s{t0}, s{t1}")
    A(f"s_add_u32 s{t0}, s{t0}, {FLAG_OFF}")
    A(f"v_mov_b32 v4, s{sNL}")
    A(f"v_mov_b32 v5, s{sFAST}")
    A("s_mov_b64 exec, 0xff" if REPL else "s_mov_b64 exec, 1")
    A(f"buffer_store_dwordx2 v[4:5], v6, {s(SKV,4)}, s{t0} offen{SC}")
    A("s_mov_b64 exec, -1")
    stamp('flag')
A("L_flag:")
if FLAGAT < 0: flag_code(0)
A("s_setprio 0")
A.c("==================== Q projection ====================")
A("L_join:")
A(f"s_mul_i32 s{t2}, s{sW}, {4*912}")
A(f"s_mul_i32 s{t3}, s{sW}, {4*6912}")
wq_group(2)
A("s_barrier")
stamp('barA')
G2I = opt('g2i', 1)
if not G2I:
    wq_mask(1)
    for j in range(4): dma_wq(64 + j)
    wq_mask(0)
if X2L:
    A(f"s_cmp_lt_u32 s{sW1}, 6")
    A("s_cbranch_scc0 L_nox2")
    for sg in range(6, 9): dma_x(sg, vXO)
    A("L_nox2:")
def poll_loads():
    A(f"buffer_load_dwordx4 {v(PF,4)}, v{vPA}, {s(SKV,4)}, 0 offen{SC}")
    A(f"s_movk_i32 s{t1}, 0x1000")
    A(f"buffer_load_dwordx4 {v(PF2,4)}, v{vPA}, {s(SKV,4)}, s{t1} offen{SC}")
PF, PF2, vT2 = 104, 108, 112
def dma_kv():
    A(f"s_mov_b32 m0, s{sKVO}")
    A(f"s_add_u32 s{sKVO}, s{sKVO}, 4096")
    A(f"buffer_load_dwordx4 v{vL16}, {s(SKV,4)}, m0 offen{SC} lds")
DD, DE, FB = 16, 80, 32
NST = 6 if KSPLIT else 12
NRD = 4 if KSPLIT else 3
NBUF, FSZ = opt('ahead', 3) + 1, 8
def q_reads(n):
    q, i = divmod(n, NST)
    b = FB + FSZ * (n % NBUF)
    t = 12 * q + (2 * i if KSPLIT else i)
    sg = t >> 2
    if t == 4:
        for u in range(4): A(f"v_subrev_u32 v{10+u}, 0x10000, v{10+u}")
    xo = 0 if sg == 0 else (sg - 1) * 8192
    off = GPOS[q] + (t % 12) * 2432
    wa = 14
    if off >= 32768: wa, off = 8, off - 32768
    A(f"ds_read_b64_tr_b16 {v(b,2)}, v{wa} offset:{off}")
    A(f"ds_read_b64_tr_b16 {v(b+2,2)}, v{wa} offset:{off+608}")
    if KSPLIT:
        A(f"ds_read_b128 {v(b+4,4)}, v{10 + (i & 1)} offset:{xo}")
        A(f"ds_read_b128 {v(b+8,4)}, v{12 + (i & 1)} offset:{xo}")
    else:
        A(f"ds_read_b128 {v(b+4,4)}, v{10 + (t & 3)} offset:{xo}")
POLLAT = opt('pollat', 7)
AHEAD = opt('ahead', 3)
ESYNC = opt('esync', 1)
def syncB():
    stamp('g0done')
    A(f"s_cmp_lt_u32 s{sW1}, 6")
    A("s_cbranch_scc1 L_w7")
    A("s_waitcnt vmcnt(4)")
    A("s_branch L_w4")
    A("L_w7:")
    A("s_waitcnt vmcnt(7)")
    A("L_w4:")
    A("s_barrier")
def poll_eval():
    A("s_waitcnt vmcnt(0)")
    A(f"v_xor_b32 v4, s{sNL}, v{PF}")
    A(f"v_xor_b32 v5, s{sNL}, v{PF+2}")
    A(f"v_xor_b32 v6, s{sNL}, v{PF+4}")
    A(f"v_or3_b32 v4, v4, v5, v6")
    A(f"v_xor_b32 v2, s{sNL}, v{PF+6}")
    A(f"v_xor_b32 v5, s{sFAST}, v{PF+1}")
    A(f"v_xor_b32 v6, s{sFAST}, v{PF+3}")
    A(f"v_or_b32 v{vT2}, v5, v6")
    A(f"v_xor_b32 v5, s{sFAST}, v{PF+5}")
    A(f"v_xor_b32 v6, s{sFAST}, v{PF+7}")
    A(f"v_or_b32 v{vT2+1}, v5, v6")
    A(f"v_or_b32 v5, v{vT2}, v{vT2+1}")
    A(f"v_and_b32 v5, 0x0fffffff, v5")
    A(f"v_or3_b32 v4, v4, v2, v5")
    A(f"s_add_u32 s{sCNT}, s{sCNT}, 1")
    A(f"v_cmp_ne_u32 vcc, 0, v4")
def poll_publish():
    A.c("all eight workgroups of this token block on this XCD?")
    A(f"v_cmp_eq_u32 vcc, 0, v{vT2}")
    A(f"v_cmp_eq_u32 s[{sM}:{sM+1}], 0, v{vT2+1}")
    A(f"s_cmp_ge_u32 s{sTB}, 16")
    A(f"s_cselect_b64 s[{sM}:{sM+1}], s[{sM}:{sM+1}], vcc")
    A(f"s_and_b32 s{t0}, s{sTB}, 15")
    A(f"s_lshl_b32 s{t0}, s{t0}, 2")
    A(f"s_lshr_b64 s[{sM}:{sM+1}], s[{sM}:{sM+1}], s{t0}")
    A(f"s_and_b32 s{t0}, s{sM}, 15")
    A(f"v_mov_b32 v4, s{t0}")
    A(f"v_mov_b32 v5, s{sNL}")
    A(f"v_mov_b32 v6, s{sNH}")
    A(f"ds_write_b96 v{vFA}, v[4:6]")
    if DIAG: A(f"s_mov_b32 s69, s{sCNT}")
def syncC():
    stamp('g1done')
    A(f"s_cmp_lg_u32 s{sW}, 0")
    A("s_cbranch_scc1 L_polled")
    A.c("wave 0 looks at every workgroup's flag once; if some are missing the Q projection is finished first")
    A(f"s_mov_b32 s{sCNT}, 0")
    poll_eval()
    A(f"s_mov_b64 s[{sMK}:{sMK+1}], vcc")
    A("v_mov_b32 v2, 0")
    A("s_cbranch_vccnz L_notyet")
    poll_publish()
    A("v_mov_b32 v2, 1")
    A("L_notyet:")
    A(f"ds_write_b32 v{vFA}, v2 offset:16")
    A("L_polled:")
    A("s_waitcnt vmcnt(0) lgkmcnt(0)")
    stamp('g2landed')
    A("s_barrier")
    stamp('barC')
    A(f"ds_read_b32 v2, v{vFA} offset:16")
def k0_loads():
    A(f"buffer_load_dwordx4 {v(KF,4)}, v{AK}, {s(SKV,4)}, 0 offen{SC}")
    A(f"buffer_load_dword v{KR}, v{AR}, {s(SKV,4)}, 0 offen offset:2240{SC}")
def qstep(n, extra=0):
    nx = n + AHEAD
    if nx == 12: syncB()
    if nx == 24: syncC()
    if nx < 36: q_reads(nx)
    W(NRD * (min(nx, 35) - n) + extra)
    b = FB + FSZ * (n % NBUF)
    A(f"v_mfma_f32_32x32x16_bf16 {v(DD,16)}, {v(b,4)}, {v(b+4,4)}, {'0' if n == 0 else v(DD,16)}")
NS0 = 24 - AHEAD
for n in range(AHEAD): q_reads(n)
for n in range(NS0 + 2):
    qstep(n)
    if n < 4:
        wq_mask(1); dma_wq(64 + n); wq_mask(0)
    if n == 12 + POLLAT:
        A(f"s_cmp_lg_u32 s{sW}, 0")
        A("s_cbranch_scc1 L_nopoll")
        poll_loads()
        A("L_nopoll:")
W(2 * NRD)
A(f"v_readfirstlane_b32 s{t0}, v2")
A(f"s_cmp_eq_u32 s{t0}, 1")
A("s_cbranch_scc0 L_late")
k0_loads()
dma_kv(); dma_kv()
nkv = 2
for n in range(NS0 + 2, 36):
    qstep(n)
    if nkv < NPRE and n % 2 == 1:
        dma_kv(); nkv += 1
assert nkv == NPRE
A("s_branch L_qend")
A("L_late:")
for n in range(NS0 + 2, 36): qstep(n)
A(f"s_cmp_lg_u32 s{sW}, 0")
A("s_cbranch_scc1 L_polled2")
A(f"s_mov_b64 vcc, s[{sMK}:{sMK+1}]")
A("L_poll:")
A("s_mov_b64 exec, vcc")
poll_loads()
poll_eval()
A(f"s_cmp_gt_u32 s{sCNT}, {SPIN}")
A("s_cbranch_scc1 L_pollok")
A("s_cbranch_vccz L_pollok")
A(f"s_sleep {opt('psleep', 2)}")
A("s_branch L_poll")
A("L_pollok:")
A("s_mov_b64 exec, -1")
poll_publish()
W(0)
A("L_polled2:")
A("s_barrier")
stamp('barC2')
k0_loads()
for r in range(NPRE): dma_kv()
A("L_qend:")
stamp('qproj')
def fK(t): return KFb if t & 1 else KF
def fR(t): return KRb if t & 1 else KR
def fV(t, m): return ((VF0b, VF1b) if t & 1 else (VF0, VF1))[m]
def rdK(t): A(f"ds_read_b128 {v(fK(t),4)}, v{AK} offset:{t*TILE_B}")
def rdR(t): A(f"ds_read_b32 v{fR(t)}, v{AR} offset:{t*TILE_B+2240}")
def rdV(t, m): A(f"ds_read_b128 {v(fV(t,m),4)}, v{AV} offset:{t*TILE_B+1024+608*m}")
def M16(sd): A(f"v_mfma_f32_32x32x16_bf16 {v(sd,16)}, {v(KF,4)}, {v(QM[0],4)}, 0")
def M8(sd): A(f"v_mfma_f32_32x32x8_bf16 {v(sd,16)}, {v(KR,2)}, {v(QR,2)}, {v(sd,16)}")
def M2B(sd, t): A(f"v_mfma_f32_32x32x4_2b_bf16 {v(sd,32)}, {v(fR(t),2)}, {v(QX2,2)}, 0")
def M16A(q, sd, t): A(f"v_mfma_f32_32x32x16_bf16 {v(sd,16)}, {v(fK(t),4)}, {v(QM[q],4)}, {v(sd,16)}")
def PV(q, m, sd, t=0): A(f"v_smfmac_f32_32x32x32_bf16 {v(OO[q],16)}, {v(fV(t,m),4)}, {v(sd+8*m,8)}, v{IDX}")
def EX(sd, a, b):
    for i in range(a, b): A(f"v_exp_f32 v{sd+i}, v{sd+i}")
def rowmax(sd, dst, tmp):
    A(f"v_max3_f32 v{dst}, v{sd}, v{sd+1}, v{sd+2}")
    for i in range(3, 15, 2): A(f"v_max3_f32 v{dst}, v{dst}, v{sd+i}, v{sd+i+1}")
    A(f"v_max_f32 v{dst}, v{dst}, v{sd+15}")
    A(f"v_mov_b32 v{tmp}, v{dst}")
    A("s_nop 1")
    A(f"v_permlane32_swap_b32 v{dst}, v{tmp}")
    A("s_nop 0")
    A(f"v_max_f32 v{dst}, v{dst}, v{tmp}")
def pair_wait(tag, flagoff, addr, dst):
    A(f"L_{tag}:")
    A(f"ds_read_b32 v2, v{vFP} offset:{flagoff}")
    for i in range(3): A(f"ds_read_b128 {v(dst+4*i,4)}, v{addr} offset:{1024*i}")
    A(f"s_add_u32 s{sCNT}, s{sCNT}, 1")
    W(3)
    A(f"v_readfirstlane_b32 s{t2}, v2")
    A(f"s_cmp_gt_u32 s{sCNT}, {SPIN * 16}")
    A(f"s_cbranch_scc1 L_{tag}ok")
    A(f"s_cmp_eq_u32 s{t2}, 1")
    A(f"s_cbranch_scc1 L_{tag}ok")
    W(0)
    A("s_sleep 1")
    A(f"s_branch L_{tag}")
    A(f"L_{tag}ok:")
A.c("Q epilogue: scale by log2(e)/sqrt(18), round, row maximum over key tile 0 (stand-in maximum), LDS exchange")
A("v_mov_b32 v36, 0")
A("v_mov_b32 v37, 0")
A(f"s_cmp_eq_u32 s{sPAR}, 1")
A("s_nop 8")
A("s_cbranch_scc1 L_qodd")
for par in range(2):
    if par == 1: A("L_qodd:")
    b = 2 * par
    r = 8 if par == 0 else 14
    if KSPLIT:
        A(f"ds_write_b128 v{vPW}, {v(DE+b,4)}")
        A(f"ds_write_b128 v{vPW}, {v(DE+b+4,4)} offset:1024")
        A("s_mov_b32 exec_hi, 0")
        A(f"ds_write_b128 v{vPW}, {v(DE+(r & ~3),4)} offset:2048")
        A("s_mov_b32 exec_hi, -1")
        W(0)
        A(f"ds_write_b32 v{vFO}, v2 offset:32")
        pair_wait(f"px{par}", 32, vPR, 48)
        W(1)
        for i in range(4): A(f"v_pk_add_f32 {v(DD+b+2*i,2)}, {v(DD+b+2*i,2)}, {v(48+2*i,2)}")
        W(0)
        A(f"v_pk_add_f32 {v(DD+r,2)}, {v(DD+r,2)}, {v(56+(r & 3),2)}")
    for i in range(4): A(f"v_pk_mul_f32 {v(DD+b+2*i,2)}, {v(DD+b+2*i,2)}, s[{sSC}:{sSC+1}]")
    A(f"v_pk_mul_f32 {v(DD+r,2)}, {v(DD+r,2)}, s[{sSC}:{sSC+1}]")
    for i in range(4): A(f"v_cvt_pk_bf16_f32 v{32+i}, v{DD+b+2*i}, v{DD+b+2*i+1}")
    A("s_mov_b32 exec_hi, 0")
    A(f"v_cvt_pk_bf16_f32 v36, v{DD+r}, v{DD+r+1}")
    if par == 0: A("s_branch L_qdone")
A("L_qdone:")
A("s_mov_b32 exec_hi, -1")
A(f"s_waitcnt vmcnt({NPRE})")
M16(SS[1]); M8(SS[1])
A(f"ds_write_b128 v{vQW}, v[32:35]")
for r in (AK, AV, AR): A(f"v_add_u32 v{r}, s{sHALF}, v{r}")
for i in range(8): A(f"v_mov_b32 v{SS[3]+8+i}, 0")
rowmax(SS[1], T0, T1)
A("s_mov_b32 exec_hi, 0")
A(f"v_cvt_pk_bf16_f32 v37, -v{T0}, 0")
A(f"ds_write_b64 v{vQWr}, v[36:37] offset:1024")
A("s_mov_b32 exec_hi, -1")
A(f"s_mov_b32 s{sCNT}, 0")
A(f"s_waitcnt vmcnt(0) lgkmcnt(0)")
A("s_barrier")
stamp('barD')
rdR(0)
A(f"ds_read_b64 {v(QX2,2)}, v{vQRr} offset:1024")
rdK(0)
A(f"ds_read_b128 {v(QM[0],4)}, v{vQR}")
A(f"ds_read_b128 {v(QM[1],4)}, v{vQR} offset:1280")
A(f"ds_read_b96 v[4:6], v{vFA}")
rdR(1); rdV(0, 0); rdV(0, 1); rdK(1); rdV(1, 0)
W(9)
M2B(SS[0], 0)
W(3)
A(f"v_readfirstlane_b32 s{sFAST}, v4")
A(f"v_readfirstlane_b32 s{sNL}, v5")
A(f"v_readfirstlane_b32 s{sNH}, v6")
A("s_nop 13")
M16A(0, SS[0], 0); M16A(1, SS[1], 0)
A("s_nop 8")
stamp('loop0')
A.c("==================== attention ====================")
def dma_wo(j):
    A(f"s_add_u32 m0, s{sWOM}, {(j % 6) * 7680 + (j // 6) * HALF_B}")
    A(f"s_add_u32 s{t4}, s{sWOS}, {j * 8 * 6912}")
    A(f"buffer_load_dwordx4 v{vWO}, {s(SWO,4)}, s{t4} offen lds")
def ostores(lo, hi, sc):
    A(f"buffer_store_dwordx4 {v(lo,4)}, v{vL16}, {s(SOI,4)}, s{sOW} offen{sc}")
    A("s_mov_b32 exec_hi, 0")
    A(f"buffer_store_dword v{hi}, v{vL16}, {s(SOI,4)}, s{sOR} offen{sc}")
    A("s_mov_b32 exec_hi, -1")
FAIR = [int(c, 16) for c in OPT.get('fair', '15')]
FH = opt('fh', 0)
if FH: FAIR = [int(c, 16) for c in OPT.get('fair', '15')]
PCNT = [0]
def oldprio(p):
    PCNT[0] += 1
    A(f"s_cbranch_vccz L_pr{PCNT[0]}")
    A(f"s_setprio {p}")
    A(f"L_pr{PCNT[0]}:")
def fair_at(h):
    low = (lambda x: x % 16 in FAIR) if FH else (lambda x: (x % 16) // 2 in FAIR)
    if FAIR and low(h) != low(h - 1): oldprio(0 if low(h) else 2)
def body(kind):
    for t in range(8):
        if kind == 'mid' and t == 2:
            A(f"s_cmp_lg_u32 s{sCNT}, 0")
            A("s_cbranch_scc1 L_nobar")
            A("s_waitcnt vmcnt(0)")
            A("s_barrier")
            A(f"s_cmp_lg_u32 s{sW}, 0")
            A("s_cbranch_scc1 L_nobar")
            A(f"v_mov_b32 v4, s{sNL}")
            A(f"v_mov_b32 v5, s{sNH}")
            A(f"s_lshl_b32 s{t0}, s{sHG}, 3")
            A(f"v_mov_b32 v6, s{t0}")
            A("s_mov_b64 exec, 1")
            A(f"buffer_store_dwordx2 v[4:5], v6, {s(SKV,4)}, s{sF2} offen{SC}")
            A("s_mov_b64 exec, -1")
            A("L_nobar:")
        kv = kind == 'kv' and t < 6
        wo = kind == 'wo' and t < 6
        def kvslot(f):
            if kv: A("s_add_u32 m0, m0, 4096")
            f()
            if kv: A(f"buffer_load_dwordx4 v{vL16}, {s(SKV,4)}, m0 offen{SC} lds")
        a0, b0 = SS[2*(t&1)], SS[2*(t&1)+1]
        a1, b1 = SS[2*(1-(t&1))], SS[2*(1-(t&1))+1]
        PV(1, 1, b1, t - 1); fair_at(2*t); EX(a0, 0, 4)
        kvslot(lambda: M2B(a1, t + 1))
        rdR(t + 2)
        if wo: dma_wo(2*t)
        if kind == 'kv' and t == 6: ostores(vPO, vPO, SC)
        EX(a0, 4, 12)
        PV(0, 0, a0, t); EX(a0, 12, 16)
        W(0); rdV(t + 1, 1)
        PV(0, 1, a0, t); fair_at(2*t + 1); EX(b0, 0, 4)
        kvslot(lambda: M16A(0, a1, t + 1))
        if wo: dma_wo(2*t + 1)
        EX(b0, 4, 8)
        M16A(1, b1, t + 1); EX(b0, 8, 12)
        PV(1, 0, b0, t); EX(b0, 12, 16)
        rdK(t + 2); rdV(t + 2, 0)
def bump():
    for r in (AK, AV, AR): A(f"v_add_u32 v{r}, {8*TILE_B}, v{r}")
if FAIR:
    A(f"s_cmp_lt_u32 s{sW}, 4")
    A("s_cselect_b64 vcc, -1, 0")
    A("s_setprio 1")
    oldprio(0 if (15 in FAIR if FH else 7 in FAIR) else 2)
A(f"s_sub_u32 m0, s{sKVO}, 4096")
body('kv')
bump()
A(".p2align 6")
A("L_loop:")
body('mid')
bump()
A(f"s_add_u32 s{sCNT}, s{sCNT}, 1")
A(f"s_cmp_lt_u32 s{sCNT}, 2")
A("s_cbranch_scc1 L_loop")
A("s_waitcnt vmcnt(0)")
A("s_barrier")
A(f"buffer_load_dwordx2 {v(vF2D,2)}, v{vF2}, {s(SKV,4)}, s{sF2} offen{SC}")
body('wo')
PV(1, 1, SS[3], 7)
stamp('loop1')
if FAIR: A("s_setprio 0")
A.c("combine the two key halves: wave kh keeps q-block kh and sends the other one")
O0 = OO[0]
A(f"s_mov_b32 s{t0}, {f32bits(2.0**-32):#x}")
A(f"s_mov_b32 s{t1}, {f32bits(2.0**64):#x}")
A(f"s_mov_b32 s{t4}, 0x7f800000")
A(f"s_mov_b32 s{sCNT}, 0")
A("s_nop 0")
A(f"s_cmp_eq_u32 s{sP}, 1")
A("s_cbranch_scc1 L_send0")
OB = 24; DO = 60
TORD = [0, 2, 4, 6, 1, 3, 5, 7, 8]
PACE = opt('pace', 3)
PRE0 = opt('pre0', 2)
SLOTS = (list(range(80, 120, 4)) + list(range(220, 256, 4)) + list(range(148, 176, 4)) + list(range(180, 212, 4)))[:opt('ns', 30) + 1]
seq = [(t, c) for t in TORD for c in range(5)]
def o_read(n):
    t, c = seq[n]
    b = SLOTS[n % len(SLOTS)]
    a0, a1, off = (WA[0], WA[1], t * 36 * 160) if t < 8 else (WA[2], WA[3], 0)
    A(f"ds_read_b64_tr_b16 {v(b,2)}, v{a0} offset:{off + 32*c}")
    A(f"ds_read_b64_tr_b16 {v(b+2,2)}, v{a1} offset:{off + 32*c}")
def oload(t):
    if t < 8:
        A(f"s_add_u32 s{t1}, s{sOLM}, {2048*t}")
        A(f"buffer_load_dwordx4 {v(OB+4*t,4)}, v{vOM}, {s(SOI,4)}, s{t1} offen{SC}")
    else:
        A(f"buffer_load_dwordx4 {v(OB+32,4)}, v{vOR}, {s(SOI,4)}, s{sOLR} offen{SC}")
def send(q):
    A(f"ds_write_b128 v{vCO}, {v(OO[q],4)}")
    A(f"ds_write_b128 v{vCO}, {v(OO[q]+4,4)} offset:1024")
    A("s_mov_b32 exec_hi, 0")
    A(f"ds_write_b128 v{vCO}, {v(OO[q]+8,4)} offset:2048")
    A("s_mov_b32 exec_hi, -1")
def normalise(o):
    A(f"v_rcp_f32 v{T0}, v{T0}")
    A("s_nop 0")
    A(f"v_mov_b32 v{T1}, v{T0}")
    for i in range(0, 10, 2): A(f"v_pk_mul_f32 {v(o+i,2)}, {v(o+i,2)}, {v(T0,2)}")
    for i in range(5): A(f"v_cvt_pk_bf16_f32 v{16+i}, v{o+2*i}, v{o+2*i+1}")
for kh in range(2):
    o = OO[kh]
    if kh == 0: A("s_nop 4")
    else: A("L_send0:")
    send(1 - kh)
    A("s_waitcnt vmcnt(0)")
    A.c("all eight workgroups of this token block must have poisoned their part before anything is read")
    A(f"L_f2{kh}:")
    A(f"v_xor_b32 v{vF2D}, s{sNL}, v{vF2D}")
    A(f"v_xor_b32 v{vF2D+1}, s{sNH}, v{vF2D+1}")
    A(f"v_or_b32 v2, v{vF2D}, v{vF2D+1}")
    A("v_cmp_ne_u32 vcc, 0, v2")
    A(f"s_cbranch_vccnz L_f2retry{kh}")
    A(f"L_f2ok{kh}:")
    A(f"s_mov_b32 s{sCNT}, 0")
    W(0)
    A("s_barrier")
    stamp('comb')
    for i in range(3): A(f"ds_read_b128 {v(48+4*i,4)}, v{vCP} offset:{1024*i}")
    for n in range(PRE0): o_read(n)
    W(2 * PRE0 + 1)
    for i in range(0, 8, 2): A(f"v_pk_add_f32 {v(o+i,2)}, {v(o+i,2)}, {v(48+i,2)}")
    W(2 * PRE0)
    A("s_mov_b32 exec_hi, 0")
    for i in range(8, 12, 2): A(f"v_pk_add_f32 {v(o+i,2)}, {v(o+i,2)}, {v(48+i,2)}")
    A("s_mov_b32 exec_hi, -1")
    A.c("safety check of the stand-in maximum: 2^-32 <= l <= 2^64 and all O finite")
    A(f"v_mov_b32 v{T0}, v{o+10}")
    A(f"v_mov_b32 v{T1}, v{o+10}")
    A(f"v_maximum3_f32 v{T2}, |v{o}|, |v{o+1}|, |v{o+2}|")
    A(f"v_maximum3_f32 v{T3}, |v{o+3}|, |v{o+4}|, |v{o+5}|")
    A(f"v_permlane32_swap_b32 v{T0}, v{T1}")
    A(f"v_maximum3_f32 v{T2}, v{T2}, |v{o+6}|, |v{o+7}|")
    A(f"v_maximum3_f32 v{T3}, v{T3}, |v{o+8}|, |v{o+9}|")
    A(f"v_cmp_nle_f32 vcc, s{t0}, v{T0}")
    A(f"v_cmp_nge_f32 s[{sM}:{sM+1}], s{t1}, v{T0}")
    A(f"v_maximum3_f32 v{T2}, v{T2}, v{T3}, v{T3}")
    A(f"s_or_b64 vcc, vcc, s[{sM}:{sM+1}]")
    A(f"v_cmp_ngt_f32 s[{sM}:{sM+1}], s{t4}, v{T2}")
    A(f"s_or_b64 vcc, vcc, s[{sM}:{sM+1}]")
    A(f"s_cbranch_vccnz L_slow{kh}")
    normalise(o)
    if kh == 0: A("s_branch L_fin")
A("L_fin:")
if opt('fast', 1):
    A(f"s_cmp_eq_u32 s{sFAST}, 15")
    A("s_cbranch_scc1 L_ofast")
    ostores(16, 20, SC)
    A("s_branch L_odone")
    A("L_ofast:")
    ostores(16, 20, "")
    A("L_odone:")
else:
    ostores(16, 20, SC)
stamp('ostore')
A.c("==================== output projection ====================")
DELAY = opt('odelay', 6)
for n in range(PRE0, PRE0 + DELAY): o_read(n)
if opt('bare', 0): A("s_barrier")
for t in TORD[:PACE]: oload(t)
stamp('barE')
PRE = len(SLOTS) - 1
for n in range(PRE0 + DELAY, PRE): o_read(n)
issued = PRE
for n, (t, c) in enumerate(seq):
    k = n // 5
    if c == 0:
        A(f"L_ochk{k}:")
        A(f"s_waitcnt vmcnt({min(PACE - 1, 8 - k)})")
        A(f"v_max3_u32 v2, v{OB+4*t}, v{OB+4*t+1}, v{OB+4*t+2}")
        A(f"v_max_u32 v2, v2, v{OB+4*t+3}")
        A("v_cmp_eq_u32 vcc, -1, v2")
        A(f"s_cbranch_vccnz L_oretry{k}")
        A(f"L_ook{k}:")
        if k == 0: stamp('oready')
        if k + PACE < 9: oload(TORD[k + PACE])
        if opt('wb', 0) and k == opt('wbk', 6):
            A(f"s_cmp_lg_u32 s{sW}, 7")
            A("s_cbranch_scc1 L_nowb")
            A(f"s_cmp_ge_u32 s2, {opt('wb', 0)}")
            A("s_cbranch_scc1 L_nowb")
            A("buffer_wbl2 sc1")
            A("L_nowb:")
    left = issued - 1 - n
    if n == 0 and PRE > 7: W(0)
    elif n >= PRE or PRE <= 7: W(min(2 * left, 15))
    cc = "0" if k == 0 else v(DO+4*c, 4)
    A(f"v_mfma_f32_16x16x32_bf16 {v(DO+4*c,4)}, {v(SLOTS[n % len(SLOTS)],4)}, {v(OB+4*t,4)}, {cc}")
    if issued < len(seq): o_read(issued); issued += 1
stamp('omfma')
A(f"s_cmp_eq_u32 s{sKH}, 0")
A("s_cbranch_scc0 L_ofin1")
for kh in range(2):
    keep, give = ((0, 1, 4), (2, 3)) if kh == 0 else ((2, 3), (0, 1, 4))
    if kh == 1: A("L_ofin1:")
    A("s_nop 5")
    for c in give: A(f"ds_write_b128 v{vRD}, {v(DO+4*c,4)} offset:{1024*c}")
    W(0)
    A("s_barrier")
    for c in keep: A(f"ds_read_b128 {v(80+4*c,4)}, v{vRD} offset:{1024*c}")
    if opt('wide', 1):
        c0 = keep[0]
        for n, c in enumerate(keep):
            W(len(keep)-1-n)
            for i in (0, 2): A(f"v_pk_add_f32 {v(DO+4*c+i,2)}, {v(DO+4*c+i,2)}, {v(80+4*c+i,2)}")
            A(f"v_cvt_pk_bf16_f32 v{16+2*n}, v{DO+4*c}, v{DO+4*c+1}")
            A(f"v_cvt_pk_bf16_f32 v{17+2*n}, v{DO+4*c+2}, v{DO+4*c+3}")
            if n == 1 and len(keep) == 2: A("s_nop 1")
            if n == len(keep) - 1:
                A("v_permlane16_swap_b32 v16, v18")
                A("v_permlane16_swap_b32 v17, v19")
                A(f"buffer_store_dwordx4 v[16:19], v{vOB}, {s(SOUT,4)}, s{sOUT} offen offset:{32*c0}{OSC}")
                if c == 4:
                    A("s_mov_b32 exec_hi, 0")
                    A(f"buffer_store_dwordx2 v[20:21], v{vOA}, {s(SOUT,4)}, s{sOUT} offen offset:128{OSC}")
    else:
        for n, c in enumerate(keep):
            W(len(keep)-1-n)
            for i in (0, 2): A(f"v_pk_add_f32 {v(DO+4*c+i,2)}, {v(DO+4*c+i,2)}, {v(80+4*c+i,2)}")
            A(f"v_cvt_pk_bf16_f32 v{DO+4*c}, v{DO+4*c}, v{DO+4*c+1}")
            A(f"v_cvt_pk_bf16_f32 v{DO+4*c+1}, v{DO+4*c+2}, v{DO+4*c+3}")
            if c == 4: A("s_mov_b32 exec_hi, 0")
            A(f"buffer_store_dwordx2 {v(DO+4*c,2)}, v{vOA}, {s(SOUT,4)}, s{sOUT} offen offset:{32*c}")
    if kh == 0: A("s_branch L_flush" if DIAG or ECHO else "s_endpgm")
if ECHO:
    a, b = ECHO.split(':')
    A("L_flush:")
    A("s_waitcnt vmcnt(0)")
    A("s_memrealtime s[80:81]")
    A("s_waitcnt lgkmcnt(0)")
    if b == 'end': A(f"s_sub_u32 s82, s80, s{ECHOREG[a]}")
    elif a == b: A("s_mov_b32 s82, 0")
    else: A(f"s_sub_u32 s82, s{ECHOREG[b]}, s{ECHOREG[a]}")
    A("s_min_u32 s82, s82, 20000")
    A("s_mov_b32 s83, s80")
    A("L_echo:")
    A("s_memrealtime s[80:81]")
    A("s_waitcnt lgkmcnt(0)")
    A("s_sub_u32 s81, s80, s83")
    A("s_cmp_lt_u32 s81, s82")
    A("s_cbranch_scc1 L_echo")
if DIAG:
    A("L_flush:")
    A("s_mov_b64 exec, -1")
    stamp('stored')
    A("s_waitcnt vmcnt(0)")
    A("s_memtime s[80:81]")
    A("s_memrealtime s[82:83]")
    A("s_waitcnt lgkmcnt(0)")
    A(f"v_writelane_b32 v{VST}, s80, 30")
    A(f"v_writelane_b32 v{VST}, s82, 31")
    A(f"v_writelane_b32 v{VST}, s{sCNT}, 29")
    A(f"v_writelane_b32 v{VST}, s69, 28")
    A(f"v_writelane_b32 v{VST}, s{sFAST}, 27")
    A(f"s_add_u32 s96, s18, 0x400000")
    A(f"s_addc_u32 s97, s19, 0")
    A("s_mov_b32 s98, 0x80000")
    A("s_mov_b32 s99, 0x00020000")
    A(f"s_lshl_b32 s{t0}, s2, 3")
    A(f"s_add_u32 s{t0}, s{t0}, s{sW}")
    A(f"s_lshl_b32 s{t0}, s{t0}, 7")
    A("s_mov_b32 exec_hi, 0")
    A("v_lshlrev_b32 v2, 2, v1")
    A(f"buffer_store_dword v{VST}, v2, s[96:99], s{t0} offen")
A("L_end:")
A("s_endpgm")
A.c("some O fragment still holds the poison: fetch it and the ones behind it again")
for k in range(9):
    A(f"L_oretry{k}:")
    A(f"s_add_u32 s{sCNT}, s{sCNT}, 1")
    A(f"s_cmp_gt_u32 s{sCNT}, {SPIN}")
    A(f"s_cbranch_scc1 L_ook{k}")
    A("s_waitcnt vmcnt(0)")
    for u in TORD[k:k + PACE]: oload(u)
    A(f"s_branch L_ochk{k}")
for kh in range(2):
    A(f"L_f2retry{kh}:")
    A(f"s_add_u32 s{sCNT}, s{sCNT}, 1")
    A(f"s_cmp_gt_u32 s{sCNT}, {SPIN}")
    A(f"s_cbranch_scc1 L_f2ok{kh}")
    A("s_sleep 2")
    A(f"buffer_load_dwordx2 {v(vF2D,2)}, v{vF2}, {s(SKV,4)}, s{sF2} offen{SC}")
    A("s_waitcnt vmcnt(0)")
    A(f"s_branch L_f2{kh}")
A.c("fallback: online softmax with the true running maximum, K/V fragments straight from memory")
A("L_slow1:")
for i in range(4): A(f"v_mov_b32 v{QM[0]+i}, v{QM[1]+i}")
A("L_slow0:")
W(0)
MM = 9
A(f"s_add_u32 s{t0}, s{sHALF}, {24*TILE_B}")
for r in (AK, AV, AR): A(f"v_subrev_u32 v{r}, s{t0}, v{r}")
A(f"v_mov_b32 v{QR}, v{QX2}")
A(f"v_mov_b32 v{QR+1}, 0")
A(f"s_cmp_eq_u32 s{sP}, 1")
A(f"s_cselect_b64 vcc, -1, 0")
A(f"v_permlane32_swap_b32 v{QR}, v{QX2}")
A("s_nop 1")
A(f"v_cndmask_b32 v{QR}, v{QR}, v{QX2}, vcc")
A("s_mov_b32 exec_lo, 0")
A(f"v_mov_b32 v{QR}, 0")
A("s_mov_b32 exec_lo, -1")
A(f"v_mov_b32 v{MM}, 0xff800000")
for i in range(16): A(f"v_mov_b32 v{O0+i}, 0")
A(f"s_mov_b32 s{t1}, 0")
A("L_sloop:")
A(f"buffer_load_dwordx4 {v(KF,4)}, v{AK}, {s(SKV,4)}, s{t1} offen{SC}")
A(f"buffer_load_dword v{KR}, v{AR}, {s(SKV,4)}, s{t1} offen offset:2240{SC}")
A(f"buffer_load_dwordx4 {v(VF0,4)}, v{AV}, {s(SKV,4)}, s{t1} offen offset:1024{SC}")
A(f"buffer_load_dwordx4 {v(VF1,4)}, v{AV}, {s(SKV,4)}, s{t1} offen offset:1632{SC}")
A("s_waitcnt vmcnt(0)")
M16(SS[0]); M8(SS[0])
A("s_nop 11")
rowmax(SS[0], T0, T1)
A(f"v_max_f32 v{T0}, v{T0}, v{MM}")
A(f"v_sub_f32 v{T1}, v{MM}, v{T0}")
A(f"v_exp_f32 v{T1}, v{T1}")
A(f"v_mov_b32 v{MM}, v{T0}")
for i in range(16): A(f"v_mul_f32 v{O0+i}, v{O0+i}, v{T1}")
for i in range(16): A(f"v_sub_f32 v{SS[0]+i}, v{SS[0]+i}, v{T0}")
EX(SS[0], 0, 16)
A("s_nop 1")
PV(0, 0, SS[0]); PV(0, 1, SS[0])
A(f"s_add_u32 s{t1}, s{t1}, {TILE_B}")
A(f"s_cmp_lt_u32 s{t1}, {KV_B}")
A("s_cbranch_scc1 L_sloop")
A("s_nop 11")
A(f"v_mov_b32 v{T0}, v{O0+10}")
A(f"v_mov_b32 v{T1}, v{O0+10}")
A("s_nop 1")
A(f"v_permlane32_swap_b32 v{T0}, v{T1}")
A(f"s_mov_b32 s{t0}, 0xfffffffe")
normalise(O0)
for i in range(5): A(f"v_min_u32 v{16+i}, s{t0}, v{16+i}")
A("s_branch L_fin")
A("L_codeend:")
kernel_desc(A, NAME, NVGPR, 102)

DOC = '''
; Fused multi-query attention in one launch: 256 workgroups (one per CU) x 8 waves.
;   workgroup (tb, hg) = 64 tokens x 4 heads; it also projects K or V of 16 of its tokens.
;      flag tagged with a per-launch value that workgroup 0 puts in d_debug); waves 1-7 stage x and wq in LDS.
;      f32 P registers directly); a ones row of V^T gives the row sum.  Two waves share each 64 queries, one key
;   4. O is exchanged between the 8 workgroups of a token block through d_ws (poisoned first, re-read until
;      the poison is gone) and multiplied by wo (16x16x32 MFMA).
'''
HEADER = open('standalone__grouped_kv_mqa__prompt.s.ref').read().split('\n')
hdr = [l for l in HEADER if l.startswith(';') and '@launch' not in l]
out = "\n".join(hdr) + "\n; @launch grid=(256,1,1) block=(512,1,1) lds=163840" + DOC + A.text()
path = [a for a in sys.argv[1:] if a.endswith('.s')]
path = path[0] if path else 'standalone__grouped_kv_mqa__prompt.s'
open(path, 'w').write(out)
if DIAG: open(path + '.stamps', 'w').write(' '.join(STAMPS))
print("wrote", path, len(out))
```

```python
import sys, struct, math
sys.path.insert(0, 'work')
from gen_common import *

OPT = dict(a.split('=') for a in sys.argv[1:] if '=' in a)
def opt(k, d): return type(d)(OPT.get(k, d))
S_, D_, H_, DH = 2048, 576, 32, 18
ROWB = D_ * 2
TILE_B = 2368
KV_B = 64 * TILE_B
HALF_B = 32 * TILE_B
FLAG_OFF, FLAG2_OFF, OIMG_OFF = 0x30000, 0x28000, 0x40000
REPL = None
OHALF_B = 36864
OIMG_B = 64 * OHALF_B
CSCALE = (DH ** -0.5) * math.log2(math.e)
def f32bits(x): return struct.unpack('<I', struct.pack('<f', x))[0]
def nib(tab): return sum(t << (4 * i) for i, t in enumerate(tab))
DIAG = 'diag' in sys.argv
ECHO = OPT.get('echo')
SC = " sc1"
NAME = "standalone__grouped_kv_mqa__prompt_kernel"
SPIN = 0x20000
OSC = (' ' + OPT['osc'].replace('+', ' ')) if 'osc' in OPT else ''
REPL = opt('repl', 1)

A = Asm()
VST = 120
STAMPS = []
ECHOREG = {}
if ECHO:
    ea, eb = ECHO.split(':')
    ECHOREG = {ea: 69, eb: 93} if ea != eb else {ea: 69}
def stamp(name, real=False):
    if ECHO and name in ECHOREG:
        A("s_memrealtime s[80:81]")
        A("s_waitcnt lgkmcnt(0)")
        A(f"s_mov_b32 s{ECHOREG[name]}, s80")
        if ECHOREG[name] == 69: A("s_mov_b32 s93, s80")
    if DIAG:
        if name in STAMPS: i = STAMPS.index(name)
        else: i = len(STAMPS); STAMPS.append(name)
        assert i < 27
        A(f"s_mem{'real' if real else ''}time s[80:81]")
        A("s_waitcnt lgkmcnt(0)")
        A(f"v_writelane_b32 v{VST}, s80, {i}")

SX, SWQ, SWKV, SKV, SOI, SWO, SOUT, SDBG = 20, 24, 28, 32, 36, 40, 44, 48
sW, sTB, sHG, sQT, sKIND, sHL, sP = 52, 53, 54, 55, 56, 57, 58
t0, t1, t2, t3, t4, t5 = 59, 60, 61, 62, 63, 64
sKVO, sCNT, sOW, sOR = 65, 66, 67, 68
sXM, sXS, sNL, sNH, sFAST, sPAR = 70, 71, 72, 73, 74, 75
sM = 76
sMK = 82
sF2, sWOM, sWOS, sHALF, sOLM, sOLR, sOUT, sKH, sW1 = 84, 85, 86, 87, 88, 89, 90, 91, 92
sSC = 94
sGW, sGX = [96, 97, 98], [99, 100, 101]
WKVB, XB, QXB = 29184, 87552, 153088
GPOS = [0, 58368, 29184]
PXB = 104448
FASTB = QXB + 10240
PFLG = FASTB + 32
CMB = 46336
def slot(sg): return (sg + 8) % 9
NPRE = 7
vXO, vWQ, vWK, vL16 = 3, 7, 9, 15
vN, PF = 118, 112
AK, AV, AR, IDX, vWO = 124, 125, 126, 127, 128
vQW, vQWr, vQR, vQRr, vFA, vCO, vCP = 129, 130, 131, 132, 133, 134, 135
WA = [136, 137, 138, 139]
vRD, vOA, vOM, vOR, vPA, vFO, vFP, vPW = 140, 141, 142, 143, 144, 145, 146, 147
VF1, VF0, KF, KR = 148, 152, 156, 160
VF1b, VF0b, KFb, KRb = 164, 168, 172, 176
vF2, vT = 178, 179
QM = [32, 40]; QR = 36; QX2 = 46
SS = [48, 64, 80, 96]
OO = [180, 196]
vPO, vF2D, vPR, vOB = 212, 216, 218, 219
NVGPR = 256
T0, T1, T2, T3 = 4, 5, 6, 8
KSPLIT = opt('ksplit', 0)
MERGEB = opt('mergeb', 0)
X2L = opt('x2l', 0)
FLAGAT = opt('flagat', -1)

def W(n): A(f"s_waitcnt lgkmcnt({n})")
def cpf():
    A.c("pull the kernel's own code into L2: one dword per 128-B line")
    A("s_getpc_b64 s[78:79]")
    A("L_pc:")
    A(f"s_sub_u32 s78, s78, L_pc-{NAME}")
    A("s_subb_u32 s79, s79, 0")
    A("v_lshlrev_b32 v4, 7, v1")
    A("v_mov_b32 v5, s79")
    A("v_add_co_u32 v4, vcc, s78, v4")
    A("s_nop 1")
    A("v_addc_co_u32 v5, vcc, 0, v5, vcc")
    for k in range(3):
        A(f"v_cmp_gt_u32 vcc, (L_codeend-{NAME}-{8192*k}+127)/128, v1")
        A("s_and_b64 exec, exec, vcc")
        A(f"global_load_dword v{16+k}, v[4:5], off")
        A("s_mov_b64 exec, -1")
        if k < 2:
            A("v_add_co_u32 v4, vcc, 0x2000, v4")
            A("s_nop 1")
            A("v_addc_co_u32 v5, vcc, 0, v5, vcc")
def dma_x(sg, vreg, extra=0, sreg=None):
    A(f"s_add_u32 m0, s{sXM}, {slot(sg) * 8192 - (sg % 3) * 128 + extra}")
    A(f"s_add_u32 s{t0}, s{sXS if sreg is None else sreg}, s{sGX[sg // 3]}")
    A(f"buffer_load_dwordx4 v{vreg}, {s(SX,4)}, s{t0} offen offset:{(sg % 3)*128} lds")
def wq_group(q): A(f"s_add_u32 s{t5}, s{t3}, s{sGW[q]}")
def dma_wq(i):
    A(f"s_add_u32 m0, s{t2}, {GPOS[i // 32] + (i % 32) * 912}")
    A(f"s_add_u32 s{t0}, s{t5}, {(i % 32) * 6912}")
    A(f"buffer_load_dwordx4 v{vWQ}, {s(SWQ,4)}, s{t0} offen lds")
def wq_mask(on): A(f"s_mov_b32 exec_hi, {(1 << 25) - 1:#x}" if on else "s_mov_b32 exec_hi, -1")

def setup():
    A(f"s_lshr_b32 s{sKH}, s{sW}, 2")
    A(f"s_and_b32 s{sPAR}, s{sHL}, 1")
    A(f"s_mul_i32 s{sHALF}, s{sP}, {HALF_B}")
    A.c("fragment addresses for the Q projection: v10..13 x, v14 / v8 wq")
    A("v_and_b32 v4, 31, v1")
    A("v_lshrrev_b32 v5, 1, v4")
    A("v_and_b32 v5, 7, v5")
    A("v_lshrrev_b32 v6, 5, v1")
    if KSPLIT:
        A(f"s_lshl_b32 s{t0}, s{sP}, 1")
        A(f"v_add_u32 v6, s{t0}, v6")
        A("v_xor_b32 v8, v6, v5")
        A("v_lshlrev_b32 v8, 4, v8")
        A("v_lshl_add_u32 v8, v4, 7, v8")
        A(f"s_lshl_b32 s{t0}, s{sP}, 12")
        A(f"s_add_u32 s{t0}, s{t0}, {XB + 65536}")
        A(f"v_add_u32 v10, s{t0}, v8")
        A("v_xor_b32 v11, 64, v10")
        A(f"s_lshl_b32 s{t0}, s{sP}, 13")
        A(f"s_sub_u32 s{t0}, 0x1000, s{t0}")
        A(f"v_add_u32 v12, s{t0}, v10")
        A(f"v_add_u32 v13, s{t0}, v11")
        A("v_lshrrev_b32 v6, 5, v1")
    else:
        A(f"s_lshl_b32 s{t0}, s{sP}, 5")
        A(f"v_add_u32 v4, s{t0}, v4")
        for u in range(4):
            A(f"v_add_u32 v8, {2*u}, v6")
            A("v_xor_b32 v8, v8, v5")
            A("v_lshlrev_b32 v8, 4, v8")
            A(f"v_lshl_add_u32 v{10+u}, v4, 7, v8")
            A(f"v_add_u32 v{10+u}, {XB + 65536}, v{10+u}")
    A("v_mul_u32_u24 v4, 1216, v6")
    A("v_bfe_u32 v5, v1, 3, 1")
    A("v_mul_u32_u24 v5, 304, v5")
    A("v_add_u32 v4, v4, v5")
    A("v_bfe_u32 v5, v1, 2, 1")
    A("v_mul_u32_u24 v5, 144, v5")
    A("v_add_u32 v4, v4, v5")
    A("v_and_b32 v5, 3, v1")
    A("v_bfe_u32 v8, v1, 4, 1")
    A("v_lshl_add_u32 v5, v8, 2, v5")
    A("v_lshlrev_b32 v5, 2, v5")
    A(f"s_mov_b32 s{t0}, {nib([0,2,1,3,4,0,0,0]):#x}")
    A(f"s_mov_b32 s{t1}, {nib([0,2,1,3,2,4,4,0]):#x}")
    A(f"s_cmp_eq_u32 s{sPAR}, 1")
    A(f"s_cselect_b32 s{t0}, s{t1}, s{t0}")
    A(f"s_mul_i32 s{t1}, s{sHL}, 36")
    A(f"s_and_b32 s{t1}, s{t1}, 0xf8")
    if KSPLIT:
        A(f"s_mul_i32 s{t4}, s{sP}, 2432")
        A(f"s_add_u32 s{t1}, s{t1}, s{t4}")
    A(f"v_lshrrev_b32 v5, v5, s{t0}")
    A("v_and_b32 v5, 15, v5")
    A("v_lshl_add_u32 v14, v5, 3, v4")
    A(f"v_add_u32 v14, s{t1}, v14")
    A(f"v_add_u32 v8, 0x8000, v14")
    A.c("K/V stream")
    A(f"s_mul_i32 s{sKVO}, s{sP}, 74")
    A(f"s_add_u32 s{sKVO}, s{sKVO}, s{sHL}")
    A(f"s_lshl_b32 s{sKVO}, s{sKVO}, 10")
    A(f"s_mov_b32 s{sSC}, {f32bits(CSCALE):#x}")
    A(f"s_mov_b32 s{sSC+1}, {f32bits(CSCALE):#x}")
    A("v_lshrrev_b32 v4, 1, v1")
    A("v_lshlrev_b32 v4, 7, v4")
    A("v_and_b32 v5, 1, v1")
    A(f"v_lshl_add_u32 v{vPA}, v5, 4, v4")
    A(f"v_add_u32 v{vPA}, {FLAG_OFF}, v{vPA}")
    A.c("main-loop LDS addresses")
    A("v_and_b32 v4, 31, v1")
    A(f"v_lshlrev_b32 v{AR}, 2, v4")
    A("v_lshrrev_b32 v5, 2, v4")
    A("v_lshlrev_b32 v5, 2, v5")
    A(f"s_mov_b32 s{t0}, {nib([0,3,1,2,4,0,0,0]):#x}")
    A(f"v_lshrrev_b32 v5, v5, s{t0}")
    A("v_and_b32 v5, 15, v5")
    A("v_and_b32 v6, 3, v4")
    A("v_lshl_add_u32 v5, v5, 2, v6")
    A("v_lshrrev_b32 v6, 5, v1")
    A("v_mul_u32_u24 v2, 304, v6")
    A(f"v_lshl_add_u32 v{AV}, v5, 4, v2")
    A("v_mov_b32 v2, 0x80000")
    A("v_cmp_gt_u32 vcc, 19, v4")
    A(f"v_mov_b32 v{IDX}, 0xdddd")
    A(f"v_mov_b32 v{AK}, v{vL16}")
    A(f"v_cndmask_b32 v{AV}, v2, v{AV}, vcc")
    A(f"v_mov_b32 v{KR+1}, 0x3f803f80")
    A(f"v_mov_b32 v{KRb+1}, 0x3f803f80")
    A("v_mov_b32 v4, 0")
    A("v_mov_b32 v5, 0")
    for i in range(0, 4, 2): A(f"v_pk_mov_b32 {v(VF1b+i,2)}, v[4:5], v[4:5]")
    for i in range(0, 32, 2): A(f"v_pk_mov_b32 {v(OO[0]+i,2)}, v[4:5], v[4:5]")
    A.c("Q exchange, flags")
    A(f"s_mul_i32 s{t1}, s{sW}, 1280")
    A(f"s_add_u32 s{t1}, s{t1}, {QXB}")
    A(f"v_add_u32 v{vQW}, s{t1}, v{vL16}")
    A(f"v_lshl_add_u32 v{vQWr}, v1, 3, s{t1}")
    A(f"s_and_b32 s{t1}, s{sW}, 6")
    A(f"s_mul_i32 s{t1}, s{t1}, 1280")
    A(f"s_add_u32 s{t1}, s{t1}, {QXB}")
    A(f"v_add_u32 v{vQR}, s{t1}, v{vL16}")
    A(f"v_lshl_add_u32 v{vQRr}, v1, 3, s{t1}")
    A(f"v_lshl_add_u32 v{vQRr}, v6, 10, v{vQRr}")
    A(f"v_mov_b32 v{vFA}, {FASTB}")
    A.c("O image, wo stream")
    A(f"s_lshl_b32 s{t0}, s{sTB}, 1")
    A(f"s_add_u32 s{t0}, s{t0}, s{sP}")
    A(f"s_mul_i32 s{t0}, s{t0}, {OHALF_B}")
    A(f"s_lshl_b32 s{t1}, s{sHG}, 2")
    A(f"s_add_u32 s{t1}, s{t1}, s{sHL}")
    A(f"s_lshl_b32 s{t1}, s{t1}, 10")
    A(f"s_add_u32 s{sOW}, s{t0}, s{t1}")
    A(f"s_and_b32 s{t1}, s{sHG}, 1")
    A(f"s_lshl_b32 s{t1}, s{t1}, 1")
    A(f"s_xor_b32 s{t1}, s{t1}, s{sHL}")
    A(f"s_lshl_b32 s{t1}, s{t1}, 2")
    A(f"s_lshl_b32 s{t4}, s{sHG}, 9")
    A(f"s_add_u32 s{t1}, s{t1}, s{t4}")
    A(f"s_add_u32 s{t1}, s{t1}, s{t0}")
    A(f"s_add_u32 s{sOR}, s{t1}, 32768")
    A(f"s_and_b32 s{t4}, s{sW}, 3")
    A(f"s_mul_i32 s{sWOM}, s{sW}, 960")
    A(f"s_mul_i32 s{sWOS}, s{sW}, 6912")
    for i in range(4): A(f"v_mov_b32 v{vPO+i}, -1")
    A(f"v_and_b32 v{vF2}, 7, v1")
    A(f"v_lshlrev_b32 v{vF2}, 3, v{vF2}")
    A(f"s_lshl_b32 s{sF2}, s{sTB}, 7")
    A(f"s_add_u32 s{sF2}, s{sF2}, {FLAG2_OFF}")
    mul, sh = magic_div(10, 64)
    A(f"v_mul_u32_u24 v4, {mul}, v1")
    A(f"v_lshrrev_b32 v4, {sh}, v4")
    A("v_mul_u32_u24 v5, 10, v4")
    A("v_sub_u32 v5, v1, v5")
    A("v_min_u32 v5, 8, v5")
    A(f"v_mul_u32_u24 v{vWO}, {ROWB}, v4")
    A(f"v_lshl_add_u32 v{vWO}, v5, 4, v{vWO}")
    A(f"v_add_u32 v{vWO}, s{sOUT}, v{vWO}")
    A(f"s_mul_i32 s{t0}, s{sHL}, 2560")
    A(f"s_add_u32 s{t0}, s{t0}, {CMB}")
    A(f"s_add_u32 s{t1}, s{sHALF}, s{t0}")
    A(f"v_add_u32 v{vCO}, s{t1}, v{vL16}")
    A(f"s_sub_u32 s{t1}, {HALF_B}, s{sHALF}")
    A(f"s_add_u32 s{t1}, s{t1}, s{t0}")
    A(f"v_add_u32 v{vCP}, s{t1}, v{vL16}")
    A.c("output projection (tt = w&3, kh = w>>2)")
    A("v_and_b32 v6, 15, v1")
    A("v_lshrrev_b32 v5, 4, v1")
    A(f"s_lshl_b32 s{t0}, s{sP}, 4")
    A(f"v_add_u32 v2, s{t0}, v6")
    A("v_lshlrev_b32 v2, 4, v2")
    A(f"v_lshl_add_u32 v{vOR}, v5, 9, v2")
    A(f"v_lshrrev_b32 v{vT}, 5, v1")
    A("v_bfe_u32 v4, v1, 4, 1")
    A(f"v_lshl_add_u32 v{vOM}, v{vT}, 10, v2")
    A(f"v_lshl_add_u32 v{vOM}, v4, 9, v{vOM}")
    A(f"s_lshl_b32 s{t0}, s{sTB}, 1")
    A(f"s_add_u32 s{t0}, s{t0}, s{sPAR}")
    A(f"s_mul_i32 s{t0}, s{t0}, {OHALF_B}")
    A(f"s_lshl_b32 s{t1}, s{sKH}, 14")
    A(f"s_add_u32 s{sOLM}, s{t0}, s{t1}")
    A(f"s_lshl_b32 s{t1}, s{sKH}, 11")
    A(f"s_add_u32 s{sOLR}, s{t0}, s{t1}")
    A(f"s_add_u32 s{sOLR}, s{sOLR}, 32768")
    A(f"s_lshl_b32 s{t0}, s{sTB}, 6")
    A(f"s_lshl_b32 s{t1}, s{t4}, 4")
    A(f"s_add_u32 s{t0}, s{t0}, s{t1}")
    A(f"v_add_u32 v6, s{t0}, v6")
    A(f"v_mul_u32_u24 v6, {ROWB}, v6")
    A(f"v_lshl_add_u32 v{vOA}, v5, 3, v6")
    A(f"v_lshl_add_u32 v{vOB}, v4, 5, v6")
    A(f"v_lshl_add_u32 v{vOB}, v{vT}, 4, v{vOB}")
    A(f"s_mul_i32 s{t0}, s{sPAR}, {HALF_B}")
    A(f"s_mul_i32 s{t1}, s{sP}, 5120")
    A(f"s_add_u32 s{t0}, s{t0}, s{t1}")
    A(f"s_add_u32 s{t0}, s{t0}, {24*TILE_B}")
    A(f"v_add_u32 v{vRD}, s{t0}, v{vL16}")
    A("v_bfe_u32 v2, v1, 2, 2")
    A(f"v_mul_u32_u24 v6, 18, v{vT}")
    A("v_add_u32 v6, v6, v2")
    A(f"v_mul_u32_u24 v{WA[0]}, 12, v4")
    A(f"v_lshl_add_u32 v{WA[1]}, v4, 2, 4")
    A(f"v_add_u32 v{WA[0]}, v6, v{WA[0]}")
    A(f"v_add_u32 v{WA[1]}, v6, v{WA[1]}")
    A("v_mul_u32_u24 v6, 72, v5")
    A(f"v_and_b32 v{vT}, 1, v2")
    A(f"v_add3_u32 v6, v6, v{vT}, 16")
    A("v_lshrrev_b32 v2, 1, v2")
    A("v_lshl_add_u32 v2, v4, 1, v2")
    A(f"v_xor_b32 v{vT}, 2, v2")
    A(f"v_mad_u32_u24 v{WA[2]}, v2, 18, v6")
    A(f"v_mad_u32_u24 v{WA[3]}, v{vT}, 18, v6")
    A("v_and_b32 v2, 3, v1")
    A("v_lshlrev_b32 v2, 3, v2")
    A(f"s_mul_i32 s{t0}, s{sKH}, {HALF_B}")
    A(f"v_add_u32 v2, s{t0}, v2")
    A(f"s_movk_i32 s{t0}, 160")
    for i in range(4): A(f"v_mad_u32_u24 v{WA[i]}, v{WA[i]}, s{t0}, v2")

A('.amdgcn_target "amdgcn-amd-amdhsa--gfx950"')
kernel_begin(A, NAME)
A("s_cmp_ge_u32 s2, 256")
A("s_cbranch_scc1 L_end")
if DIAG: A(f"v_mov_b32 v{VST}, 0")
stamp('entry'); stamp('rt0', True)
A("s_load_dwordx16 s[4:19], s[0:1], 0")
A("v_and_b32 v1, 63, v0")
A("v_lshrrev_b32 v2, 6, v0")
A(f"s_and_b32 s{sTB}, s2, 7")
A(f"v_readfirstlane_b32 s{sW}, v2")
A(f"s_lshr_b32 s{t1}, s2, 6")
A(f"s_lshl_b32 s{t0}, s{t1}, 3")
A(f"s_cmp_lg_u32 s{sW}, {opt('cpfw', 7)}")
A("s_cbranch_scc1 L_nocpf")
cpf()
A("L_nocpf:")
A(f"s_add_u32 s{sTB}, s{sTB}, s{t0}")
A(f"s_lshr_b32 s{sHG}, s2, 3")
A(f"s_and_b32 s{sHG}, s{sHG}, 7")
A(f"s_and_b32 s{sQT}, s{sHG}, 3")
A(f"s_lshr_b32 s{sKIND}, s{sHG}, 2")
A.c("k-group rotation: workgroups that share lines start on different groups")
A(f"s_add_u32 s{t1}, s{t1}, s{sHG}")
A(f"s_mul_i32 s{t2}, s{t1}, 11")
A(f"s_lshr_b32 s{t2}, s{t2}, 5")
A(f"s_mul_i32 s{t2}, s{t2}, 3")
A(f"s_sub_u32 s{t1}, s{t1}, s{t2}")
assert all((n * 11 >> 5) == n // 3 for n in range(11))
for q in range(3):
    A(f"s_mul_i32 s{sGW[q]}, s{t1}, {192*ROWB}")
    A(f"s_mul_i32 s{sGX[q]}, s{t1}, 384")
    if q < 2:
        A(f"s_add_u32 s{t1}, s{t1}, 1")
        A(f"s_cmp_eq_u32 s{t1}, 3")
        A(f"s_cselect_b32 s{t1}, 0, s{t1}")
A("v_lshrrev_b32 v4, 3, v1")
A("v_lshrrev_b32 v5, 4, v1")
A("v_and_b32 v6, 7, v1")
A("v_xor_b32 v5, v5, v6")
A("v_lshlrev_b32 v5, 4, v5")
A(f"s_lshl_b32 s{t0}, s{sTB}, 6")
A(f"v_add_u32 v4, s{t0}, v4")
A(f"v_mul_u32_u24 v{vXO}, {ROWB}, v4")
A(f"v_add_u32 v{vXO}, v{vXO}, v5")
A(f"v_lshlrev_b32 v{vL16}, 4, v1")
A(f"s_lshr_b32 s{sHL}, s{sW}, 1")
A(f"s_and_b32 s{sP}, s{sW}, 1")
A(f"s_sub_u32 s{sW1}, s{sW}, 1")
A(f"s_cmp_eq_u32 s{sW}, 0")
def late_common():
    mul, sh = magic_div(19, 64)
    A(f"v_mul_u32_u24 v4, {mul}, v1")
    A(f"v_lshrrev_b32 v4, {sh}, v4")
    A("v_mul_u32_u24 v5, 19, v4")
    A("v_sub_u32 v5, v1, v5")
    A("v_min_u32 v5, 17, v5")
    A("v_cmp_le_u32 vcc, 9, v5")
    A("v_lshlrev_b32 v4, 1, v4")
    A("v_subrev_u32 v6, 9, v5")
    A("v_cndmask_b32 v5, v5, v6, vcc")
    A("v_addc_co_u32 v4, vcc, 0, v4, vcc")
    A(f"v_mul_u32_u24 v{vWQ}, {ROWB}, v4")
    A(f"v_lshl_add_u32 v{vWQ}, v5, 4, v{vWQ}")
    A(f"s_mul_i32 s{sOUT}, s{sHG}, 144")
    A(f"v_add_u32 v{vWQ}, s{sOUT}, v{vWQ}")
def late_srds():
    srd(A, SWQ, 6, D_ * ROWB)
    srd(A, SKV, 18, 0x40000)
    A(f"s_add_u32 s{SOI}, s18, {OIMG_OFF}")
    A(f"s_addc_u32 s{SOI+1}, s19, 0")
    A(f"s_mov_b32 s{SOI+2}, {OIMG_B}")
    A(f"s_mov_b32 s{SOI+3}, 0x00020000")
    srd(A, SWO, 12, D_ * ROWB)
    srd(A, SOUT, 14, S_ * ROWB)
W0FIRST = opt('w0first', 1)
def emit_bulk():
    A("L_bulk:")
    A(f"s_lshl_b32 s{t0}, s{sQT}, 1")
    A(f"s_add_u32 s{t0}, s{t0}, s{sW}")
    A(f"s_add_u32 s{t0}, s{t0}, 1")
    A(f"s_and_b32 s{t0}, s{t0}, 7")
    A(f"s_lshl_b32 s{sXM}, s{t0}, 10")
    A(f"s_add_u32 s{sXM}, s{sXM}, {XB}")
    A(f"s_mul_i32 s{sXS}, s{t0}, 9216")
    A(f"s_and_b32 s{t0}, s{t0}, 1")
    A(f"s_lshl_b32 s{t0}, s{t0}, 6")
    A(f"v_xor_b32 v{vXO}, s{t0}, v{vXO}")
    late_common()
    A(f"v_mov_b32 v{vN}, 0")
    A(f"v_mov_b32 v{vN+1}, 0")
    A(f"s_mul_i32 s{t2}, s{sW1}, {4*912}")
    A(f"s_mul_i32 s{t3}, s{sW1}, {4*6912}")
    A("s_waitcnt lgkmcnt(0)")
    srd(A, SX, 4, S_ * ROWB)
    srd(A, SDBG, 16, 256)
    late_srds()
    A("L_setup:")
    setup()
    stamp('setup')
    A(f"s_cmp_eq_u32 s{sW}, 0")
    A("s_cbranch_scc1 L_flag")
    A.c("==================== waves 1..7: bulk staging of x and wq ====================")
    A("L_issue:")
    if opt('bar0', 0): A("s_barrier")
    for q in range(2):
        if opt('gprio', 1): A(f"s_setprio {2 if q == 0 else 0}")
        wq_group(q)
        A(f"s_cmp_eq_u32 s{sW}, 7")
        A(f"s_cbranch_scc1 L_b7_{q}")
        for sg in range(3*q, 3*q + 3): dma_x(sg, vXO)
        wq_mask(1)
        A(f"s_branch L_bc_{q}")
        A(f"L_b7_{q}:")
        wq_mask(1)
        for j in range(4, 8): dma_wq(32*q + j)
        A(f"L_bc_{q}:")
        for j in range(4): dma_wq(32*q + j)
        wq_mask(0)
    if not X2L:
        A(f"s_cmp_eq_u32 s{sW}, 7")
        A("s_cbranch_scc1 L_nox2")
        for sg in range(6, 9): dma_x(sg, vXO)
        A("L_nox2:")
    stamp('issued')
    A("L_wait:")
    A(f"s_cmp_eq_u32 s{sW}, 7")
    A("s_cbranch_scc1 L_x2w8")
    A(f"s_waitcnt vmcnt({7 if X2L else 10})")
    A("s_branch L_join")
    A("L_x2w8:")
    A(f"s_waitcnt vmcnt(8)")
    A("s_branch L_join")
def emit_w0():
    A.c("==================== wave 0: K/V projection of 16 tokens ====================")
    A("L_w0:")
    A("s_setprio 3")
    A("s_memrealtime s[78:79]")
    mul, sh = magic_div(3, 64)
    A(f"v_mul_u32_u24 v4, {mul}, v1")
    A(f"v_lshrrev_b32 v4, {sh}, v4")
    A("v_mul_u32_u24 v5, 3, v4")
    A("v_sub_u32 v5, v1, v5")
    A(f"v_mul_u32_u24 v{vWK}, 36, v4")
    A(f"v_lshl_add_u32 v{vWK}, v5, 4, v{vWK}")
    A(f"v_xor_b32 v8, 64, v{vXO}")
    A(f"s_lshl_b32 s{sXM}, s{sQT}, 11")
    A(f"s_add_u32 s{sXM}, s{sXM}, {XB}")
    A(f"s_mul_i32 s{sXS}, s{sQT}, {2*9216}")
    A(f"s_add_u32 s{t1}, s{sXS}, 9216")
    A("v_mov_b32 v6, 0")
    A("s_waitcnt lgkmcnt(0)")
    stamp('karg')
    A(f"s_cmp_eq_u32 s{sKIND}, 1")
    A(f"s_cselect_b32 s{SWKV}, s10, s8")
    A(f"s_cselect_b32 s{SWKV+1}, s11, s9")
    A(f"s_mov_b32 s{SWKV+2}, {D_*36}")
    A(f"s_mov_b32 s{SWKV+3}, 0x00020000")
    srd(A, SX, 4, S_ * ROWB)
    srd(A, SDBG, 16, 256)
    A("s_cmp_lg_u32 s2, 0")
    A("s_cbranch_scc1 L_nononce")
    A("s_or_b32 s78, s78, 1")
    A("v_mov_b32 v4, s78")
    A("v_mov_b32 v5, s79")
    A("s_mov_b64 exec, 1")
    A(f"buffer_store_dwordx2 v[4:5], v6, {s(SDBG,4)}, 0 offen{SC}")
    A("s_mov_b64 exec, -1")
    A("L_nononce:")
    for wi in range(28):
        A(f"s_mov_b32 m0, {WKVB + 1008 * wi}")
        A(f"s_mov_b32 s{t0}, {756 * wi}")
        A(f"buffer_load_dwordx4 v{vWK}, {s(SWKV,4)}, s{t0} offen lds")
        if wi == 13:
            for sg in range(3): dma_x(sg, vXO); dma_x(sg, 8, 1024, t1)
    for sg in range(3, 9):
        dma_x(sg, vXO); dma_x(sg, 8, 1024, t1)
    A(f"buffer_load_dwordx2 v[{vN}:{vN+1}], v6, {s(SDBG,4)}, 0 offen{SC}")
    if opt('bar0', 0): A("s_barrier")
    stamp('call')
    late_srds()
    late_common()
    A("v_and_b32 v4, 15, v1")
    A(f"s_lshl_b32 s{t0}, s{sQT}, 4")
    A(f"v_add_u32 v4, s{t0}, v4")
    A("v_lshrrev_b32 v5, 1, v4")
    A("v_and_b32 v5, 7, v5")
    A("v_lshrrev_b32 v6, 4, v1")
    A("v_xor_b32 v8, v6, v5")
    A("v_lshlrev_b32 v8, 4, v8")
    A("v_lshl_add_u32 v10, v4, 7, v8")
    A(f"v_add_u32 v10, {XB}, v10")
    A("v_xor_b32 v11, 64, v10")
    A("v_bfe_u32 v4, v1, 2, 2")
    A("v_lshl_add_u32 v4, v6, 3, v4")
    A("v_mul_u32_u24 v4, 48, v4")
    A("v_and_b32 v5, 3, v1")
    A("v_lshl_add_u32 v12, v5, 3, v4")
    A(f"v_add_u32 v12, {WKVB}, v12")
    for q in range(3):
        A(f"s_mul_i32 s{t0}, s{sGX[q]}, 24")
        A(f"v_add_u32 v{121+q}, s{t0}, v12")
    A("v_add_u32 v13, 0x10000, v10")
    A("v_add_u32 v14, 0x10000, v11")
    A(f"s_lshl_b32 s{t0}, s{sTB}, 1")
    A(f"s_lshr_b32 s{t1}, s{sQT}, 1")
    A(f"s_add_u32 s{t0}, s{t0}, s{t1}")
    A(f"s_mul_i32 s{t0}, s{t0}, {TILE_B}")
    A(f"s_and_b32 s{t1}, s{sQT}, 1")
    A("v_and_b32 v4, 15, v1")
    A("v_lshrrev_b32 v5, 5, v1")
    A("v_bfe_u32 v6, v1, 4, 1")
    KD = [20, 24]; KFB = 32
    def kv_reads(t):
        b = KFB + 12 * (t % 3)
        sg = t >> 1
        if t % 2 == 0 and (sg == 0 or sg >= 3): A(f"s_waitcnt vmcnt({13 if sg == 0 else 17 - 2*sg})")
        if sg == 0: A(f"ds_read_b128 {v(b,4)}, v{13 + (t & 1)}")
        else: A(f"ds_read_b128 {v(b,4)}, v{10 + (t & 1)} offset:{(sg - 1) * 8192}")
        for ct in range(2):
            for p in range(2):
                A(f"ds_read_b64_tr_b16 {v(b+4+4*ct+2*p,2)}, v{121 + t // 6} offset:{(t % 6)*1536 + p*192 + ct*32}")
    A(f"s_cmp_eq_u32 s{sKIND}, 1")
    A("s_cbranch_scc1 L_vproj")
    for which in ("k", "v"):
        if which == "v": A("L_vproj:")
        if which == "k":
            A(f"s_lshl_b32 s{t2}, s{t1}, 8")
            A(f"s_add_u32 s{t2}, s{t2}, s{t0}")
            A(f"s_lshl_b32 s{t4}, s{t1}, 6")
            A(f"s_add_u32 s{t4}, s{t4}, s{t0}")
            A("v_lshlrev_b32 v5, 9, v5")
            A("v_lshl_add_u32 v5, v4, 4, v5")
            A("v_lshl_add_u32 v16, v6, 3, v5")
            A("v_lshlrev_b32 v17, 2, v4")
        else:
            A(f"s_mul_i32 s{t2}, s{t1}, 608")
            A(f"s_add_u32 s{t2}, s{t2}, s{t0}")
            A("v_mul_u32_u24 v5, 304, v5")
            A("v_lshl_add_u32 v5, v4, 4, v5")
            A("v_lshl_add_u32 v16, v6, 3, v5")
            A("v_cmp_eq_u32 vcc, 2, v4")
            A(f"v_cmp_gt_u32 s[{sM}:{sM+1}], 3, v4")
            A("v_mov_b32 v2, 0x3f803f80")
        kv_reads(0); kv_reads(1)
        for t in range(18):
            if t + 2 < 18:
                kv_reads(t + 2)
                W(10)
            else:
                W(5 * (17 - t))
            b = KFB + 12 * (t % 3)
            for ct in range(2):
                cc = "0" if t == 0 else v(KD[ct], 4)
                if which == "k": A(f"v_mfma_f32_16x16x32_bf16 {v(KD[ct],4)}, {v(b+4+4*ct,4)}, {v(b,4)}, {cc}")
                else: A(f"v_mfma_f32_16x16x32_bf16 {v(KD[ct],4)}, {v(b,4)}, {v(b+4+4*ct,4)}, {cc}")
        if opt('kv16', 0):
            A("s_nop 6")
            A(f"v_cvt_pk_bf16_f32 v28, v{KD[0]}, v{KD[0]+1}")
            A(f"v_cvt_pk_bf16_f32 v29, v{KD[0]+2}, v{KD[0]+3}")
            A(f"v_cvt_pk_bf16_f32 v30, v{KD[0]}, v{KD[0]+1}")
            A(f"v_cvt_pk_bf16_f32 v31, v{KD[0]+2}, v{KD[0]+3}")
            A(f"v_cvt_pk_bf16_f32 v20, v{KD[1]}, v{KD[1]+1}")
            if which == "v":
                A(f"v_cvt_pk_bf16_f32 v21, v{KD[1]+2}, v{KD[1]+3}")
                A("v_cndmask_b32 v20, v20, v2, vcc")
                A("v_cndmask_b32 v21, v21, v2, vcc")
                A("v_mov_b32 v22, v20")
                A("v_mov_b32 v23, v21")
            else:
                A("s_nop 0")
            A("v_permlane16_swap_b32 v28, v30")
            A("v_permlane16_swap_b32 v29, v31")
            if which == "v":
                A("v_permlane16_swap_b32 v20, v22")
                A("v_permlane16_swap_b32 v21, v23")
            A("s_mov_b32 exec_lo, 0xffff")
            A("s_mov_b32 exec_hi, 0xffff")
            if which == "k":
                A(f"buffer_store_dwordx4 v[28:31], v16, {s(SKV,4)}, s{t2} offen{SC}")
                A("s_mov_b32 exec_hi, 0")
                A(f"buffer_store_dword v20, v17, {s(SKV,4)}, s{t4} offen offset:2240{SC}")
            else:
                A(f"buffer_store_dwordx4 v[28:31], v16, {s(SKV,4)}, s{t2} offen offset:1024{SC}")
                A("s_mov_b32 exec_lo, 7")
                A("s_mov_b32 exec_hi, 7")
                A(f"buffer_store_dwordx4 v[20:23], v16, {s(SKV,4)}, s{t2} offen offset:{1024+256}{SC}")
        else:
            A("s_nop 6")
            A(f"v_cvt_pk_bf16_f32 v28, v{KD[0]}, v{KD[0]+1}")
            A(f"v_cvt_pk_bf16_f32 v29, v{KD[0]+2}, v{KD[0]+3}")
            A(f"v_cvt_pk_bf16_f32 v30, v{KD[1]}, v{KD[1]+1}")
            if which == "k":
                A(f"buffer_store_dwordx2 v[28:29], v16, {s(SKV,4)}, s{t2} offen{SC}")
                A("s_mov_b64 exec, 0xffff")
                A(f"buffer_store_dword v30, v17, {s(SKV,4)}, s{t4} offen offset:2240{SC}")
            else:
                A(f"v_cvt_pk_bf16_f32 v31, v{KD[1]+2}, v{KD[1]+3}")
                A(f"buffer_store_dwordx2 v[28:29], v16, {s(SKV,4)}, s{t2} offen offset:1024{SC}")
                A("v_cndmask_b32 v30, v30, v2, vcc")
                A("v_cndmask_b32 v31, v31, v2, vcc")
                A(f"s_mov_b64 exec, s[{sM}:{sM+1}]")
                A(f"buffer_store_dwordx2 v[30:31], v16, {s(SKV,4)}, s{t2} offen offset:{1024+256}{SC}")
        A("s_mov_b64 exec, -1")
        stamp('kvst')
        A("s_branch L_setup")
if W0FIRST:
    A("s_cbranch_scc0 L_bulk")
    emit_w0(); emit_bulk()
else:
    A("s_cbranch_scc1 L_w0")
    emit_bulk(); emit_w0()
def flag_code(first):
    A(f"s_getreg_b32 s{t0}, hwreg(HW_REG_XCC_ID, 0, 4)")
    A(f"s_mov_b32 s{sCNT}, 0")
    A("v_mov_b32 v6, 0")
    A(f"s_waitcnt vmcnt({first})")
    A("L_nonce:")
    A(f"v_readfirstlane_b32 s{sNL}, v{vN}")
    A(f"v_readfirstlane_b32 s{sNH}, v{vN+1}")
    A(f"s_add_u32 s{sCNT}, s{sCNT}, 1")
    A(f"s_cmp_gt_u32 s{sCNT}, {SPIN}")
    A("s_cbranch_scc1 L_gotnonce")
    A(f"s_cmp_lg_u32 s{sNL}, 0")
    A("s_cbranch_scc1 L_gotnonce")
    A(f"buffer_load_dwordx2 v[{vN}:{vN+1}], v6, {s(SDBG,4)}, 0 offen{SC}")
    A("s_waitcnt vmcnt(0)")
    A("s_branch L_nonce")
    A("L_gotnonce:")
    A(f"s_and_b32 s{sNH}, s{sNH}, 0x0fffffff")
    if REPL:
        A(f"s_and_b32 s{t1}, s{t0}, 7")
        A(f"s_lshl_b32 s{t1}, s{t1}, 13")
        A(f"v_add_u32 v{vPA}, s{t1}, v{vPA}")
        A("v_lshlrev_b32 v6, 13, v1")
    A(f"s_lshl_b32 s{t0}, s{t0}, 28")
    A(f"s_or_b32 s{sFAST}, s{sNH}, s{t0}")
    A(f"s_lshl_b32 s{t0}, s{sTB}, 8")
    A(f"s_lshl_b32 s{t1}, s{sKIND}, 7")
    A(f"s_add_u32 s{t0}, s{t0}, s{t1}")
    A(f"s_lshl_b32 s{t1}, s{sQT}, 3")
    A(f"s_add_u32 s{t0}, s{t0}, s{t1}")
    A(f"s_add_u32 s{t0}, s{t0}, {FLAG_OFF}")
    A(f"v_mov_b32 v4, s{sNL}")
    A(f"v_mov_b32 v5, s{sFAST}")
    A("s_mov_b64 exec, 0xff" if REPL else "s_mov_b64 exec, 1")
    A(f"buffer_store_dwordx2 v[4:5], v6, {s(SKV,4)}, s{t0} offen{SC}")
    A("s_mov_b64 exec, -1")
    stamp('flag')
A("L_flag:")
if FLAGAT < 0: flag_code(0)
A("s_setprio 0")
A.c("==================== Q projection ====================")
A("L_join:")
A(f"s_mul_i32 s{t2}, s{sW}, {4*912}")
A(f"s_mul_i32 s{t3}, s{sW}, {4*6912}")
wq_group(2)
A("s_barrier")
stamp('barA')
G2I = opt('g2i', 1)
if not G2I:
    wq_mask(1)
    for j in range(4): dma_wq(64 + j)
    wq_mask(0)
if X2L:
    A(f"s_cmp_lt_u32 s{sW1}, 6")
    A("s_cbranch_scc0 L_nox2")
    for sg in range(6, 9): dma_x(sg, vXO)
    A("L_nox2:")
def poll_loads():
    A(f"buffer_load_dwordx4 {v(PF,4)}, v{vPA}, {s(SKV,4)}, 0 offen{SC}")
    A(f"s_movk_i32 s{t1}, 0x1000")
    A(f"buffer_load_dwordx4 {v(PF2,4)}, v{vPA}, {s(SKV,4)}, s{t1} offen{SC}")
PF, PF2, vT2 = 104, 108, 112
def dma_kv():
    A(f"s_mov_b32 m0, s{sKVO}")
    A(f"s_add_u32 s{sKVO}, s{sKVO}, 4096")
    A(f"buffer_load_dwordx4 v{vL16}, {s(SKV,4)}, m0 offen{SC} lds")
DD, DE, FB = 16, 80, 32
NST = 6 if KSPLIT else 12
NRD = 4 if KSPLIT else 3
NBUF, FSZ = opt('ahead', 3) + 1, 8
def q_reads(n):
    q, i = divmod(n, NST)
    b = FB + FSZ * (n % NBUF)
    t = 12 * q + (2 * i if KSPLIT else i)
    sg = t >> 2
    if t == 4:
        for u in range(4): A(f"v_subrev_u32 v{10+u}, 0x10000, v{10+u}")
    xo = 0 if sg == 0 else (sg - 1) * 8192
    off = GPOS[q] + (t % 12) * 2432
    wa = 14
    if off >= 32768: wa, off = 8, off - 32768
    A(f"ds_read_b64_tr_b16 {v(b,2)}, v{wa} offset:{off}")
    A(f"ds_read_b64_tr_b16 {v(b+2,2)}, v{wa} offset:{off+608}")
    if KSPLIT:
        A(f"ds_read_b128 {v(b+4,4)}, v{10 + (i & 1)} offset:{xo}")
        A(f"ds_read_b128 {v(b+8,4)}, v{12 + (i & 1)} offset:{xo}")
    else:
        A(f"ds_read_b128 {v(b+4,4)}, v{10 + (t & 3)} offset:{xo}")
POLLAT = opt('pollat', 6)
AHEAD = opt('ahead', 3)
ESYNC = opt('esync', 1)
def syncB():
    stamp('g0done')
    A(f"s_cmp_lt_u32 s{sW1}, 6")
    A("s_cbranch_scc1 L_w7")
    A("s_waitcnt vmcnt(4)")
    A("s_branch L_w4")
    A("L_w7:")
    A("s_waitcnt vmcnt(7)")
    A("L_w4:")
    A("s_barrier")
def poll_eval():
    A("s_waitcnt vmcnt(0)")
    A(f"v_xor_b32 v4, s{sNL}, v{PF}")
    A(f"v_xor_b32 v5, s{sNL}, v{PF+2}")
    A(f"v_xor_b32 v6, s{sNL}, v{PF+4}")
    A(f"v_or3_b32 v4, v4, v5, v6")
    A(f"v_xor_b32 v2, s{sNL}, v{PF+6}")
    A(f"v_xor_b32 v5, s{sFAST}, v{PF+1}")
    A(f"v_xor_b32 v6, s{sFAST}, v{PF+3}")
    A(f"v_or_b32 v{vT2}, v5, v6")
    A(f"v_xor_b32 v5, s{sFAST}, v{PF+5}")
    A(f"v_xor_b32 v6, s{sFAST}, v{PF+7}")
    A(f"v_or_b32 v{vT2+1}, v5, v6")
    A(f"v_or_b32 v5, v{vT2}, v{vT2+1}")
    A(f"v_and_b32 v5, 0x0fffffff, v5")
    A(f"v_or3_b32 v4, v4, v2, v5")
    A(f"s_add_u32 s{sCNT}, s{sCNT}, 1")
    A(f"v_cmp_ne_u32 vcc, 0, v4")
def poll_publish():
    A.c("all eight workgroups of this token block on this XCD?")
    A(f"v_cmp_eq_u32 vcc, 0, v{vT2}")
    A(f"v_cmp_eq_u32 s[{sM}:{sM+1}], 0, v{vT2+1}")
    A(f"s_cmp_ge_u32 s{sTB}, 16")
    A(f"s_cselect_b64 s[{sM}:{sM+1}], s[{sM}:{sM+1}], vcc")
    A(f"s_and_b32 s{t0}, s{sTB}, 15")
    A(f"s_lshl_b32 s{t0}, s{t0}, 2")
    A(f"s_lshr_b64 s[{sM}:{sM+1}], s[{sM}:{sM+1}], s{t0}")
    A(f"s_and_b32 s{t0}, s{sM}, 15")
    A(f"v_mov_b32 v4, s{t0}")
    A(f"v_mov_b32 v5, s{sNL}")
    A(f"v_mov_b32 v6, s{sNH}")
    A(f"ds_write_b96 v{vFA}, v[4:6]")
    if DIAG: A(f"s_mov_b32 s69, s{sCNT}")
def syncC():
    stamp('g1done')
    A(f"s_cmp_lg_u32 s{sW}, 0")
    A("s_cbranch_scc1 L_polled")
    A.c("wave 0 looks at every workgroup's flag once; if some are missing the Q projection is finished first")
    A(f"s_mov_b32 s{sCNT}, 0")
    poll_eval()
    A(f"s_mov_b64 s[{sMK}:{sMK+1}], vcc")
    A("v_mov_b32 v2, 0")
    A("s_cbranch_vccnz L_notyet")
    poll_publish()
    A("v_mov_b32 v2, 1")
    A("L_notyet:")
    A(f"ds_write_b32 v{vFA}, v2 offset:16")
    A("L_polled:")
    A("s_waitcnt vmcnt(0) lgkmcnt(0)")
    stamp('g2landed')
    A("s_barrier")
    stamp('barC')
    A(f"ds_read_b32 v2, v{vFA} offset:16")
def k0_loads():
    A(f"buffer_load_dwordx4 {v(KF,4)}, v{AK}, {s(SKV,4)}, 0 offen{SC}")
    A(f"buffer_load_dword v{KR}, v{AR}, {s(SKV,4)}, 0 offen offset:2240{SC}")
def qstep(n, extra=0):
    nx = n + AHEAD
    if nx == 12: syncB()
    if nx == 24: syncC()
    if nx < 36: q_reads(nx)
    W(NRD * (min(nx, 35) - n) + extra)
    b = FB + FSZ * (n % NBUF)
    A(f"v_mfma_f32_32x32x16_bf16 {v(DD,16)}, {v(b,4)}, {v(b+4,4)}, {'0' if n == 0 else v(DD,16)}")
NS0 = 24 - AHEAD
for n in range(AHEAD): q_reads(n)
for n in range(NS0 + 2):
    qstep(n)
    if n < 4:
        wq_mask(1); dma_wq(64 + n); wq_mask(0)
    if n == 12 + POLLAT:
        A(f"s_cmp_lg_u32 s{sW}, 0")
        A("s_cbranch_scc1 L_nopoll")
        poll_loads()
        A("L_nopoll:")
W(2 * NRD)
A(f"v_readfirstlane_b32 s{t0}, v2")
A(f"s_cmp_eq_u32 s{t0}, 1")
A("s_cbranch_scc0 L_late")
k0_loads()
dma_kv(); dma_kv()
nkv = 2
for n in range(NS0 + 2, 36):
    qstep(n)
    if nkv < NPRE and str(n - NS0 - 2) in OPT.get('kvat', '01246'):
        dma_kv(); nkv += 1
assert nkv == NPRE
A("s_branch L_qend")
A("L_late:")
for n in range(NS0 + 2, 36): qstep(n)
A(f"s_cmp_lg_u32 s{sW}, 0")
A("s_cbranch_scc1 L_polled2")
A(f"s_mov_b64 vcc, s[{sMK}:{sMK+1}]")
A("L_poll:")
A("s_mov_b64 exec, vcc")
poll_loads()
poll_eval()
A(f"s_cmp_gt_u32 s{sCNT}, {SPIN}")
A("s_cbranch_scc1 L_pollok")
A("s_cbranch_vccz L_pollok")
A(f"s_sleep {opt('psleep', 2)}")
A("s_branch L_poll")
A("L_pollok:")
A("s_mov_b64 exec, -1")
poll_publish()
W(0)
A("L_polled2:")
A("s_barrier")
stamp('barC2')
k0_loads()
for r in range(NPRE): dma_kv()
A("L_qend:")
stamp('qproj')
def fK(t): return KFb if t & 1 else KF
def fR(t): return KRb if t & 1 else KR
def fV(t, m): return ((VF0b, VF1b) if t & 1 else (VF0, VF1))[m]
def rdK(t): A(f"ds_read_b128 {v(fK(t),4)}, v{AK} offset:{t*TILE_B}")
def rdR(t): A(f"ds_read_b32 v{fR(t)}, v{AR} offset:{t*TILE_B+2240}")
def rdV(t, m): A(f"ds_read_b128 {v(fV(t,m),4)}, v{AV} offset:{t*TILE_B+1024+608*m}")
def M16(sd): A(f"v_mfma_f32_32x32x16_bf16 {v(sd,16)}, {v(KF,4)}, {v(QM[0],4)}, 0")
def M8(sd): A(f"v_mfma_f32_32x32x8_bf16 {v(sd,16)}, {v(KR,2)}, {v(QR,2)}, {v(sd,16)}")
def M2B(sd, t): A(f"v_mfma_f32_32x32x4_2b_bf16 {v(sd,32)}, {v(fR(t),2)}, {v(QX2,2)}, 0")
def M16A(q, sd, t): A(f"v_mfma_f32_32x32x16_bf16 {v(sd,16)}, {v(fK(t),4)}, {v(QM[q],4)}, {v(sd,16)}")
def PV(q, m, sd, t=0): A(f"v_smfmac_f32_32x32x32_bf16 {v(OO[q],16)}, {v(fV(t,m),4)}, {v(sd+8*m,8)}, v{IDX}")
def EX(sd, a, b):
    for i in range(a, b): A(f"v_exp_f32 v{sd+i}, v{sd+i}")
def rowmax(sd, dst, tmp):
    A(f"v_max3_f32 v{dst}, v{sd}, v{sd+1}, v{sd+2}")
    for i in range(3, 15, 2): A(f"v_max3_f32 v{dst}, v{dst}, v{sd+i}, v{sd+i+1}")
    A(f"v_max_f32 v{dst}, v{dst}, v{sd+15}")
    A(f"v_mov_b32 v{tmp}, v{dst}")
    A("s_nop 1")
    A(f"v_permlane32_swap_b32 v{dst}, v{tmp}")
    A("s_nop 0")
    A(f"v_max_f32 v{dst}, v{dst}, v{tmp}")
def pair_wait(tag, flagoff, addr, dst):
    A(f"L_{tag}:")
    A(f"ds_read_b32 v2, v{vFP} offset:{flagoff}")
    for i in range(3): A(f"ds_read_b128 {v(dst+4*i,4)}, v{addr} offset:{1024*i}")
    A(f"s_add_u32 s{sCNT}, s{sCNT}, 1")
    W(3)
    A(f"v_readfirstlane_b32 s{t2}, v2")
    A(f"s_cmp_gt_u32 s{sCNT}, {SPIN * 16}")
    A(f"s_cbranch_scc1 L_{tag}ok")
    A(f"s_cmp_eq_u32 s{t2}, 1")
    A(f"s_cbranch_scc1 L_{tag}ok")
    W(0)
    A("s_sleep 1")
    A(f"s_branch L_{tag}")
    A(f"L_{tag}ok:")
A.c("Q epilogue: scale by log2(e)/sqrt(18), round, row maximum over key tile 0 (stand-in maximum), LDS exchange")
A("v_mov_b32 v36, 0")
A("v_mov_b32 v37, 0")
A(f"s_cmp_eq_u32 s{sPAR}, 1")
A("s_nop 8")
A("s_cbranch_scc1 L_qodd")
for par in range(2):
    if par == 1: A("L_qodd:")
    b = 2 * par
    r = 8 if par == 0 else 14
    if KSPLIT:
        A(f"ds_write_b128 v{vPW}, {v(DE+b,4)}")
        A(f"ds_write_b128 v{vPW}, {v(DE+b+4,4)} offset:1024")
        A("s_mov_b32 exec_hi, 0")
        A(f"ds_write_b128 v{vPW}, {v(DE+(r & ~3),4)} offset:2048")
        A("s_mov_b32 exec_hi, -1")
        W(0)
        A(f"ds_write_b32 v{vFO}, v2 offset:32")
        pair_wait(f"px{par}", 32, vPR, 48)
        W(1)
        for i in range(4): A(f"v_pk_add_f32 {v(DD+b+2*i,2)}, {v(DD+b+2*i,2)}, {v(48+2*i,2)}")
        W(0)
        A(f"v_pk_add_f32 {v(DD+r,2)}, {v(DD+r,2)}, {v(56+(r & 3),2)}")
    for i in range(4): A(f"v_pk_mul_f32 {v(DD+b+2*i,2)}, {v(DD+b+2*i,2)}, s[{sSC}:{sSC+1}]")
    A(f"v_pk_mul_f32 {v(DD+r,2)}, {v(DD+r,2)}, s[{sSC}:{sSC+1}]")
    for i in range(4): A(f"v_cvt_pk_bf16_f32 v{32+i}, v{DD+b+2*i}, v{DD+b+2*i+1}")
    A("s_mov_b32 exec_hi, 0")
    A(f"v_cvt_pk_bf16_f32 v36, v{DD+r}, v{DD+r+1}")
    if par == 0: A("s_branch L_qdone")
A("L_qdone:")
A("s_mov_b32 exec_hi, -1")
A(f"s_waitcnt vmcnt({NPRE})")
M16(SS[1]); M8(SS[1])
A(f"ds_write_b128 v{vQW}, v[32:35]")
for r in (AK, AV, AR): A(f"v_add_u32 v{r}, s{sHALF}, v{r}")
for i in range(8): A(f"v_mov_b32 v{SS[3]+8+i}, 0")
rowmax(SS[1], T0, T1)
A("s_mov_b32 exec_hi, 0")
A(f"v_cvt_pk_bf16_f32 v37, -v{T0}, 0")
A(f"ds_write_b64 v{vQWr}, v[36:37] offset:1024")
A("s_mov_b32 exec_hi, -1")
A(f"s_mov_b32 s{sCNT}, 0")
A(f"s_waitcnt vmcnt(0) lgkmcnt(0)")
A("s_barrier")
stamp('barD')
rdR(0)
A(f"ds_read_b64 {v(QX2,2)}, v{vQRr} offset:1024")
rdK(0)
A(f"ds_read_b128 {v(QM[0],4)}, v{vQR}")
A(f"ds_read_b128 {v(QM[1],4)}, v{vQR} offset:1280")
A(f"ds_read_b96 v[4:6], v{vFA}")
rdR(1); rdV(0, 0); rdV(0, 1); rdK(1); rdV(1, 0)
W(9)
M2B(SS[0], 0)
W(3)
A(f"v_readfirstlane_b32 s{sFAST}, v4")
A(f"v_readfirstlane_b32 s{sNL}, v5")
A(f"v_readfirstlane_b32 s{sNH}, v6")
A("s_nop 13")
M16A(0, SS[0], 0); M16A(1, SS[1], 0)
A("s_nop 8")
stamp('loop0')
A.c("==================== attention ====================")
def dma_wo(j):
    A(f"s_add_u32 m0, s{sWOM}, {(j % 6) * 7680 + (j // 6) * HALF_B}")
    A(f"s_add_u32 s{t4}, s{sWOS}, {j * 8 * 6912}")
    A(f"buffer_load_dwordx4 v{vWO}, {s(SWO,4)}, s{t4} offen lds")
def ostores(lo, hi, sc):
    A(f"buffer_store_dwordx4 {v(lo,4)}, v{vL16}, {s(SOI,4)}, s{sOW} offen{sc}")
    A("s_mov_b32 exec_hi, 0")
    A(f"buffer_store_dword v{hi}, v{vL16}, {s(SOI,4)}, s{sOR} offen{sc}")
    A("s_mov_b32 exec_hi, -1")
FAIR = [int(c, 16) for c in OPT.get('fair', '15')]
FH = opt('fh', 0)
if FH: FAIR = [int(c, 16) for c in OPT.get('fair', '15')]
PCNT = [0]
def oldprio(p):
    PCNT[0] += 1
    A(f"s_cbranch_vccz L_pr{PCNT[0]}")
    A(f"s_setprio {p}")
    A(f"L_pr{PCNT[0]}:")
def fair_at(h):
    low = (lambda x: x % 16 in FAIR) if FH else (lambda x: (x % 16) // 2 in FAIR)
    if FAIR and low(h) != low(h - 1): oldprio(0 if low(h) else 2)
def body(kind):
    for t in range(8):
        if kind == 'mid' and t == 2:
            A(f"s_cmp_lg_u32 s{sCNT}, 0")
            A("s_cbranch_scc1 L_nobar")
            A("s_waitcnt vmcnt(0)")
            A("s_barrier")
            A(f"s_cmp_lg_u32 s{sW}, 0")
            A("s_cbranch_scc1 L_nobar")
            A(f"v_mov_b32 v4, s{sNL}")
            A(f"v_mov_b32 v5, s{sNH}")
            A(f"s_lshl_b32 s{t0}, s{sHG}, 3")
            A(f"v_mov_b32 v6, s{t0}")
            A("s_mov_b64 exec, 1")
            A(f"buffer_store_dwordx2 v[4:5], v6, {s(SKV,4)}, s{sF2} offen{SC}")
            A("s_mov_b64 exec, -1")
            A("L_nobar:")
        kv = kind == 'kv' and t < 6
        wo = kind == 'wo' and t < 6
        def kvslot(f):
            if kv: A("s_add_u32 m0, m0, 4096")
            f()
            if kv: A(f"buffer_load_dwordx4 v{vL16}, {s(SKV,4)}, m0 offen{SC} lds")
        a0, b0 = SS[2*(t&1)], SS[2*(t&1)+1]
        a1, b1 = SS[2*(1-(t&1))], SS[2*(1-(t&1))+1]
        PV(1, 1, b1, t - 1); fair_at(2*t); EX(a0, 0, 4)
        kvslot(lambda: M2B(a1, t + 1))
        rdR(t + 2)
        if wo: dma_wo(2*t)
        if kind == 'kv' and t == 6: ostores(vPO, vPO, SC)
        EX(a0, 4, 12)
        PV(0, 0, a0, t); EX(a0, 12, 16)
        W(0); rdV(t + 1, 1)
        PV(0, 1, a0, t); fair_at(2*t + 1); EX(b0, 0, 4)
        kvslot(lambda: M16A(0, a1, t + 1))
        if wo: dma_wo(2*t + 1)
        EX(b0, 4, 8)
        M16A(1, b1, t + 1); EX(b0, 8, 12)
        PV(1, 0, b0, t); EX(b0, 12, 16)
        rdK(t + 2); rdV(t + 2, 0)
def bump():
    for r in (AK, AV, AR): A(f"v_add_u32 v{r}, {8*TILE_B}, v{r}")
if FAIR:
    A(f"s_cmp_lt_u32 s{sW}, 4")
    A("s_cselect_b64 vcc, -1, 0")
    A("s_setprio 1")
    oldprio(0 if (15 in FAIR if FH else 7 in FAIR) else 2)
A(f"s_sub_u32 m0, s{sKVO}, 4096")
body('kv')
bump()
A(".p2align 6")
A("L_loop:")
body('mid')
bump()
A(f"s_add_u32 s{sCNT}, s{sCNT}, 1")
A(f"s_cmp_lt_u32 s{sCNT}, 2")
A("s_cbranch_scc1 L_loop")
A("s_waitcnt vmcnt(0)")
A("s_barrier")
A(f"buffer_load_dwordx2 {v(vF2D,2)}, v{vF2}, {s(SKV,4)}, s{sF2} offen{SC}")
body('wo')
PV(1, 1, SS[3], 7)
stamp('loop1')
if FAIR: A("s_setprio 0")
A.c("combine the two key halves: wave kh keeps q-block kh and sends the other one")
O0 = OO[0]
A(f"s_mov_b32 s{t0}, {f32bits(2.0**-32):#x}")
A(f"s_mov_b32 s{t1}, {f32bits(2.0**64):#x}")
A(f"s_mov_b32 s{t4}, 0x7f800000")
A(f"s_mov_b32 s{sCNT}, 0")
A("s_nop 0")
A(f"s_cmp_eq_u32 s{sP}, 1")
A("s_cbranch_scc1 L_send0")
OB = 24; DO = 60
TORD = [0, 2, 4, 6, 1, 3, 5, 7, 8]
PACE = opt('pace', 3)
PRE0 = opt('pre0', 2)
SLOTS = (list(range(80, 120, 4)) + list(range(220, 256, 4)) + list(range(148, 176, 4)) + list(range(180, 212, 4)))[:opt('ns', 30) + 1]
seq = [(t, c) for t in TORD for c in range(5)]
def o_read(n):
    t, c = seq[n]
    b = SLOTS[n % len(SLOTS)]
    a0, a1, off = (WA[0], WA[1], t * 36 * 160) if t < 8 else (WA[2], WA[3], 0)
    A(f"ds_read_b64_tr_b16 {v(b,2)}, v{a0} offset:{off + 32*c}")
    A(f"ds_read_b64_tr_b16 {v(b+2,2)}, v{a1} offset:{off + 32*c}")
def oload(t):
    if t < 8:
        A(f"s_add_u32 s{t1}, s{sOLM}, {2048*t}")
        A(f"buffer_load_dwordx4 {v(OB+4*t,4)}, v{vOM}, {s(SOI,4)}, s{t1} offen{SC}")
    else:
        A(f"buffer_load_dwordx4 {v(OB+32,4)}, v{vOR}, {s(SOI,4)}, s{sOLR} offen{SC}")
def send(q):
    A(f"ds_write_b128 v{vCO}, {v(OO[q],4)}")
    A(f"ds_write_b128 v{vCO}, {v(OO[q]+4,4)} offset:1024")
    A("s_mov_b32 exec_hi, 0")
    A(f"ds_write_b128 v{vCO}, {v(OO[q]+8,4)} offset:2048")
    A("s_mov_b32 exec_hi, -1")
def normalise(o):
    A(f"v_rcp_f32 v{T0}, v{T0}")
    A("s_nop 0")
    A(f"v_mov_b32 v{T1}, v{T0}")
    for i in range(0, 10, 2): A(f"v_pk_mul_f32 {v(o+i,2)}, {v(o+i,2)}, {v(T0,2)}")
    for i in range(5): A(f"v_cvt_pk_bf16_f32 v{16+i}, v{o+2*i}, v{o+2*i+1}")
for kh in range(2):
    o = OO[kh]
    if kh == 0: A("s_nop 4")
    else: A("L_send0:")
    send(1 - kh)
    A("s_waitcnt vmcnt(0)")
    A.c("all eight workgroups of this token block must have poisoned their part before anything is read")
    A(f"L_f2{kh}:")
    A(f"v_xor_b32 v{vF2D}, s{sNL}, v{vF2D}")
    A(f"v_xor_b32 v{vF2D+1}, s{sNH}, v{vF2D+1}")
    A(f"v_or_b32 v2, v{vF2D}, v{vF2D+1}")
    A("v_cmp_ne_u32 vcc, 0, v2")
    A(f"s_cbranch_vccnz L_f2retry{kh}")
    A(f"L_f2ok{kh}:")
    A(f"s_mov_b32 s{sCNT}, 0")
    W(0)
    A("s_barrier")
    stamp('comb')
    for i in range(3): A(f"ds_read_b128 {v(48+4*i,4)}, v{vCP} offset:{1024*i}")
    for n in range(PRE0): o_read(n)
    W(2 * PRE0 + 1)
    for i in range(0, 8, 2): A(f"v_pk_add_f32 {v(o+i,2)}, {v(o+i,2)}, {v(48+i,2)}")
    W(2 * PRE0)
    A("s_mov_b32 exec_hi, 0")
    for i in range(8, 12, 2): A(f"v_pk_add_f32 {v(o+i,2)}, {v(o+i,2)}, {v(48+i,2)}")
    A("s_mov_b32 exec_hi, -1")
    A.c("safety check of the stand-in maximum: 2^-32 <= l <= 2^64 and all O finite")
    A(f"v_mov_b32 v{T0}, v{o+10}")
    A(f"v_mov_b32 v{T1}, v{o+10}")
    A(f"v_maximum3_f32 v{T2}, |v{o}|, |v{o+1}|, |v{o+2}|")
    A(f"v_maximum3_f32 v{T3}, |v{o+3}|, |v{o+4}|, |v{o+5}|")
    A(f"v_permlane32_swap_b32 v{T0}, v{T1}")
    A(f"v_maximum3_f32 v{T2}, v{T2}, |v{o+6}|, |v{o+7}|")
    A(f"v_maximum3_f32 v{T3}, v{T3}, |v{o+8}|, |v{o+9}|")
    A(f"v_cmp_nle_f32 vcc, s{t0}, v{T0}")
    A(f"v_cmp_nge_f32 s[{sM}:{sM+1}], s{t1}, v{T0}")
    A(f"v_maximum3_f32 v{T2}, v{T2}, v{T3}, v{T3}")
    A(f"s_or_b64 vcc, vcc, s[{sM}:{sM+1}]")
    A(f"v_cmp_ngt_f32 s[{sM}:{sM+1}], s{t4}, v{T2}")
    A(f"s_or_b64 vcc, vcc, s[{sM}:{sM+1}]")
    A(f"s_cbranch_vccnz L_slow{kh}")
    normalise(o)
    if kh == 0: A("s_branch L_fin")
A("L_fin:")
if opt('fast', 1):
    A(f"s_cmp_eq_u32 s{sFAST}, 15")
    A("s_cbranch_scc1 L_ofast")
    ostores(16, 20, SC)
    A("s_branch L_odone")
    A("L_ofast:")
    ostores(16, 20, "")
    A("L_odone:")
else:
    ostores(16, 20, SC)
stamp('ostore')
A.c("==================== output projection ====================")
DELAY = opt('odelay', 6)
for n in range(PRE0, PRE0 + DELAY): o_read(n)
if opt('bare', 0): A("s_barrier")
for t in TORD[:PACE]: oload(t)
stamp('barE')
PRE = len(SLOTS) - 1
for n in range(PRE0 + DELAY, PRE): o_read(n)
issued = PRE
for n, (t, c) in enumerate(seq):
    k = n // 5
    if c == 0:
        A(f"L_ochk{k}:")
        A(f"s_waitcnt vmcnt({min(PACE - 1, 8 - k)})")
        A(f"v_max3_u32 v2, v{OB+4*t}, v{OB+4*t+1}, v{OB+4*t+2}")
        A(f"v_max_u32 v2, v2, v{OB+4*t+3}")
        A("v_cmp_eq_u32 vcc, -1, v2")
        A(f"s_cbranch_vccnz L_oretry{k}")
        A(f"L_ook{k}:")
        if k == 0: stamp('oready')
        if k + PACE < 9: oload(TORD[k + PACE])
        if opt('wb', 0) and k == opt('wbk', 6):
            A(f"s_cmp_lg_u32 s{sW}, 7")
            A("s_cbranch_scc1 L_nowb")
            A(f"s_cmp_ge_u32 s2, {opt('wb', 0)}")
            A("s_cbranch_scc1 L_nowb")
            A("buffer_wbl2 sc1")
            A("L_nowb:")
    left = issued - 1 - n
    if n == 0 and PRE > 7: W(0)
    elif n >= PRE or PRE <= 7: W(min(2 * left, 15))
    cc = "0" if k == 0 else v(DO+4*c, 4)
    A(f"v_mfma_f32_16x16x32_bf16 {v(DO+4*c,4)}, {v(SLOTS[n % len(SLOTS)],4)}, {v(OB+4*t,4)}, {cc}")
    if issued < len(seq): o_read(issued); issued += 1
stamp('omfma')
A(f"s_cmp_eq_u32 s{sKH}, 0")
A("s_cbranch_scc0 L_ofin1")
for kh in range(2):
    keep, give = ((0, 1, 4), (2, 3)) if kh == 0 else ((2, 3), (0, 1, 4))
    if kh == 1: A("L_ofin1:")
    A("s_nop 5")
    for c in give: A(f"ds_write_b128 v{vRD}, {v(DO+4*c,4)} offset:{1024*c}")
    W(0)
    A("s_barrier")
    for c in keep: A(f"ds_read_b128 {v(80+4*c,4)}, v{vRD} offset:{1024*c}")
    if opt('wide', 1):
        c0 = keep[0]
        for n, c in enumerate(keep):
            W(len(keep)-1-n)
            for i in (0, 2): A(f"v_pk_add_f32 {v(DO+4*c+i,2)}, {v(DO+4*c+i,2)}, {v(80+4*c+i,2)}")
            A(f"v_cvt_pk_bf16_f32 v{16+2*n}, v{DO+4*c}, v{DO+4*c+1}")
            A(f"v_cvt_pk_bf16_f32 v{17+2*n}, v{DO+4*c+2}, v{DO+4*c+3}")
            if n == 1 and len(keep) == 2: A("s_nop 1")
            if n == len(keep) - 1:
                A("v_permlane16_swap_b32 v16, v18")
                A("v_permlane16_swap_b32 v17, v19")
                A(f"buffer_store_dwordx4 v[16:19], v{vOB}, {s(SOUT,4)}, s{sOUT} offen offset:{32*c0}{OSC}")
                if c == 4:
                    A("s_mov_b32 exec_hi, 0")
                    A(f"buffer_store_dwordx2 v[20:21], v{vOA}, {s(SOUT,4)}, s{sOUT} offen offset:128{OSC}")
    else:
        for n, c in enumerate(keep):
            W(len(keep)-1-n)
            for i in (0, 2): A(f"v_pk_add_f32 {v(DO+4*c+i,2)}, {v(DO+4*c+i,2)}, {v(80+4*c+i,2)}")
            A(f"v_cvt_pk_bf16_f32 v{DO+4*c}, v{DO+4*c}, v{DO+4*c+1}")
            A(f"v_cvt_pk_bf16_f32 v{DO+4*c+1}, v{DO+4*c+2}, v{DO+4*c+3}")
            if c == 4: A("s_mov_b32 exec_hi, 0")
            A(f"buffer_store_dwordx2 {v(DO+4*c,2)}, v{vOA}, {s(SOUT,4)}, s{sOUT} offen offset:{32*c}")
    if kh == 0: A("s_branch L_flush" if DIAG or ECHO else "s_endpgm")
if ECHO:
    a, b = ECHO.split(':')
    A("L_flush:")
    A("s_waitcnt vmcnt(0)")
    A("s_memrealtime s[80:81]")
    A("s_waitcnt lgkmcnt(0)")
    if b == 'end': A(f"s_sub_u32 s82, s80, s{ECHOREG[a]}")
    elif a == b: A("s_mov_b32 s82, 0")
    else: A(f"s_sub_u32 s82, s{ECHOREG[b]}, s{ECHOREG[a]}")
    A("s_min_u32 s82, s82, 20000")
    A("s_mov_b32 s83, s80")
    A("L_echo:")
    A("s_memrealtime s[80:81]")
    A("s_waitcnt lgkmcnt(0)")
    A("s_sub_u32 s81, s80, s83")
    A("s_cmp_lt_u32 s81, s82")
    A("s_cbranch_scc1 L_echo")
if DIAG:
    A("L_flush:")
    A("s_mov_b64 exec, -1")
    stamp('stored')
    A("s_waitcnt vmcnt(0)")
    A("s_memtime s[80:81]")
    A("s_memrealtime s[82:83]")
    A("s_waitcnt lgkmcnt(0)")
    A(f"v_writelane_b32 v{VST}, s80, 30")
    A(f"v_writelane_b32 v{VST}, s82, 31")
    A(f"v_writelane_b32 v{VST}, s{sCNT}, 29")
    A(f"v_writelane_b32 v{VST}, s69, 28")
    A(f"v_writelane_b32 v{VST}, s{sFAST}, 27")
    A(f"s_add_u32 s96, s18, 0x400000")
    A(f"s_addc_u32 s97, s19, 0")
    A("s_mov_b32 s98, 0x80000")
    A("s_mov_b32 s99, 0x00020000")
    A(f"s_lshl_b32 s{t0}, s2, 3")
    A(f"s_add_u32 s{t0}, s{t0}, s{sW}")
    A(f"s_lshl_b32 s{t0}, s{t0}, 7")
    A("s_mov_b32 exec_hi, 0")
    A("v_lshlrev_b32 v2, 2, v1")
    A(f"buffer_store_dword v{VST}, v2, s[96:99], s{t0} offen")
A("L_end:")
A("s_endpgm")
A.c("some O fragment still holds the poison: fetch it and the ones behind it again")
for k in range(9):
    A(f"L_oretry{k}:")
    A(f"s_add_u32 s{sCNT}, s{sCNT}, 1")
    A(f"s_cmp_gt_u32 s{sCNT}, {SPIN}")
    A(f"s_cbranch_scc1 L_ook{k}")
    A("s_waitcnt vmcnt(0)")
    for u in TORD[k:k + PACE]: oload(u)
    A(f"s_branch L_ochk{k}")
for kh in range(2):
    A(f"L_f2retry{kh}:")
    A(f"s_add_u32 s{sCNT}, s{sCNT}, 1")
    A(f"s_cmp_gt_u32 s{sCNT}, {SPIN}")
    A(f"s_cbranch_scc1 L_f2ok{kh}")
    A("s_sleep 2")
    A(f"buffer_load_dwordx2 {v(vF2D,2)}, v{vF2}, {s(SKV,4)}, s{sF2} offen{SC}")
    A("s_waitcnt vmcnt(0)")
    A(f"s_branch L_f2{kh}")
A.c("fallback: online softmax with the true running maximum, K/V fragments straight from memory")
A("L_slow1:")
for i in range(4): A(f"v_mov_b32 v{QM[0]+i}, v{QM[1]+i}")
A("L_slow0:")
W(0)
MM = 9
A(f"s_add_u32 s{t0}, s{sHALF}, {24*TILE_B}")
for r in (AK, AV, AR): A(f"v_subrev_u32 v{r}, s{t0}, v{r}")
A(f"v_mov_b32 v{QR}, v{QX2}")
A(f"v_mov_b32 v{QR+1}, 0")
A(f"s_cmp_eq_u32 s{sP}, 1")
A(f"s_cselect_b64 vcc, -1, 0")
A(f"v_permlane32_swap_b32 v{QR}, v{QX2}")
A("s_nop 1")
A(f"v_cndmask_b32 v{QR}, v{QR}, v{QX2}, vcc")
A("s_mov_b32 exec_lo, 0")
A(f"v_mov_b32 v{QR}, 0")
A("s_mov_b32 exec_lo, -1")
A(f"v_mov_b32 v{MM}, 0xff800000")
for i in range(16): A(f"v_mov_b32 v{O0+i}, 0")
A(f"s_mov_b32 s{t1}, 0")
A("L_sloop:")
A(f"buffer_load_dwordx4 {v(KF,4)}, v{AK}, {s(SKV,4)}, s{t1} offen{SC}")
A(f"buffer_load_dword v{KR}, v{AR}, {s(SKV,4)}, s{t1} offen offset:2240{SC}")
A(f"buffer_load_dwordx4 {v(VF0,4)}, v{AV}, {s(SKV,4)}, s{t1} offen offset:1024{SC}")
A(f"buffer_load_dwordx4 {v(VF1,4)}, v{AV}, {s(SKV,4)}, s{t1} offen offset:1632{SC}")
A("s_waitcnt vmcnt(0)")
M16(SS[0]); M8(SS[0])
A("s_nop 11")
rowmax(SS[0], T0, T1)
A(f"v_max_f32 v{T0}, v{T0}, v{MM}")
A(f"v_sub_f32 v{T1}, v{MM}, v{T0}")
A(f"v_exp_f32 v{T1}, v{T1}")
A(f"v_mov_b32 v{MM}, v{T0}")
for i in range(16): A(f"v_mul_f32 v{O0+i}, v{O0+i}, v{T1}")
for i in range(16): A(f"v_sub_f32 v{SS[0]+i}, v{SS[0]+i}, v{T0}")
EX(SS[0], 0, 16)
A("s_nop 1")
PV(0, 0, SS[0]); PV(0, 1, SS[0])
A(f"s_add_u32 s{t1}, s{t1}, {TILE_B}")
A(f"s_cmp_lt_u32 s{t1}, {KV_B}")
A("s_cbranch_scc1 L_sloop")
A("s_nop 11")
A(f"v_mov_b32 v{T0}, v{O0+10}")
A(f"v_mov_b32 v{T1}, v{O0+10}")
A("s_nop 1")
A(f"v_permlane32_swap_b32 v{T0}, v{T1}")
A(f"s_mov_b32 s{t0}, 0xfffffffe")
normalise(O0)
for i in range(5): A(f"v_min_u32 v{16+i}, s{t0}, v{16+i}")
A("s_branch L_fin")
A("L_codeend:")
kernel_desc(A, NAME, NVGPR, 102)

DOC = '''
; Fused multi-query attention in one launch: 256 workgroups (one per CU) x 8 waves.
;   workgroup (tb, hg) = 64 tokens x 4 heads; it also projects K or V of 16 of its tokens.
;      flag tagged with a per-launch value that workgroup 0 puts in d_debug); waves 1-7 stage x and wq in LDS.
;      f32 P registers directly); a ones row of V^T gives the row sum.  Two waves share each 64 queries, one key
;   4. O is exchanged between the 8 workgroups of a token block through d_ws (poisoned first, re-read until
;      the poison is gone) and multiplied by wo (16x16x32 MFMA).
'''
HEADER = open('standalone__grouped_kv_mqa__prompt.s.ref').read().split('\n')
hdr = [l for l in HEADER if l.startswith(';') and '@launch' not in l]
out = "\n".join(hdr) + "\n; @launch grid=(256,1,1) block=(512,1,1) lds=163840" + DOC + A.text()
path = [a for a in sys.argv[1:] if a.endswith('.s')]
path = path[0] if path else 'standalone__grouped_kv_mqa__prompt.s'
open(path, 'w').write(out)
if DIAG: open(path + '.stamps', 'w').write(' '.join(STAMPS))
print("wrote", path, len(out))
```
